```python
import torch

def _softmax(x, axis=-1):
    return torch.softmax(x, dim=axis)
def _gelu(x):
    return torch.nn.functional.gelu(x, approximate="tanh")
def _silu(x):
    return torch.nn.functional.silu(x)
def _sigmoid(x):
    return torch.sigmoid(x)
def _layernorm(x, axis=-1, eps=1e-5):
    m = x.mean(dim=axis, keepdim=True)
    v = x.var(dim=axis, keepdim=True, unbiased=False)
    return (x - m) / torch.sqrt(v + eps)
def _scatter_add(tgt, idx, src, axis=0):
    return tgt.clone().index_add_(axis, idx, src)
def _segment_sum(src, seg, n):
    out = torch.zeros((n,) + src.shape[1:], dtype=src.dtype)
    return out.index_add_(0, seg, src)
def _pad(x, pw):
    flat = tuple(v for pair in reversed(pw) for v in pair)
    return torch.nn.functional.pad(x, flat)

kernel_name = 'interleave_layers__gqa_block_cached__glu_gated_reglu__decode'

def setup_inputs():

    _w = (lambda a: (lambda t: t.to(torch.bfloat16) if t.is_floating_point() else t)(torch.as_tensor(a)))
    def _A_setup():
        B, Sq, D = 1, 1, 512
        Hq, Hkv, Sk, Dh = 32, 8, 65536, 128
        assert Hq % Hkv == 0, (Hq, Hkv)
        return {
            "x": _w((lambda *s: torch.randn(*s, dtype=torch.bfloat16) * 0.05)(B, Sq, D)),
            "k_cache": _w((lambda *s: torch.randn(*s, dtype=torch.bfloat16) * 0.8)(B, Hkv, Sk, Dh)),
            "v_cache": _w((lambda *s: torch.randn(*s, dtype=torch.bfloat16) * 1.6)(B, Hkv, Sk, Dh)),
            "wq": _w((lambda *s: torch.randn(*s, dtype=torch.bfloat16) * 0.8)(D, Hq * Dh) * (D ** -0.5)),
            "wo": _w((lambda *s: torch.randn(*s, dtype=torch.bfloat16) * 1.6)(Hq * Dh, D) * ((Hq * Dh) ** -0.5)),
        }
    _A_in = _A_setup()

    def _B_setup():
        B, S, D, F = 1, 1, 512, 1792
        return {
            "x": _w((lambda *s: torch.randn(*s, dtype=torch.bfloat16) * 0.05)(B, S, D)),
            "W_gate": _w((lambda *s: torch.randn(*s, dtype=torch.bfloat16) * 0.2)(D, F) * (2.0 / D) ** 0.5),
            "W_up": _w((lambda *s: torch.randn(*s, dtype=torch.bfloat16) * 0.2)(D, F) * (2.0 / D) ** 0.5),
            "W_down": _w((lambda *s: torch.randn(*s, dtype=torch.bfloat16) * 0.2)(F, D) * (1.0 / F) ** 0.5),
        }
    _B_in = _B_setup()

    return {
        "A_x": _A_in["x"],
        "A_k_cache": _A_in["k_cache"],
        "A_v_cache": _A_in["v_cache"],
        "A_wq": _A_in["wq"],
        "A_wo": _A_in["wo"],
        "B_x": _B_in["x"],
        "B_W_gate": _B_in["W_gate"],
        "B_W_up": _B_in["W_up"],
        "B_W_down": _B_in["W_down"],
    }

def reference(A_x, A_k_cache, A_v_cache, A_wq, A_wo, B_x, B_W_gate, B_W_up, B_W_down):
    def _A_ref(x, k_cache, v_cache, wq, wo):
        B, Sq, D = x.shape
        Hq, Dh = 32, 128
        Hkv = k_cache.shape[1]
        rep = Hq // Hkv
        q = (lambda x, *d: x.permute(*d))((x @ wq).reshape(B, Sq, Hq, Dh), 0, 2, 1, 3)
        k = (lambda x, n, axis: torch.repeat_interleave(x, n, dim=axis))(k_cache, rep, axis=1)
        v = (lambda x, n, axis: torch.repeat_interleave(x, n, dim=axis))(v_cache, rep, axis=1)
        scores = torch.einsum("bhqd,bhkd->bhqk", q, k) * (Dh ** -0.5)
        p = _softmax(scores, axis=-1)
        o = torch.einsum("bhqk,bhkd->bhqd", p, v)
        return (lambda x, *d: x.permute(*d))(o, 0, 2, 1, 3).reshape(B, Sq, Hq * Dh) @ wo

    def _B_ref(x, W_gate, W_up, W_down):
        gate = torch.einsum("bsd,df->bsf", x, W_gate)
        up = torch.einsum("bsd,df->bsf", x, W_up)
        gate = gate * (lambda x, dt: x.to(dt))(gate > 0, gate.dtype)
        h = gate * up
        return torch.einsum("bsf,fd->bsd", h, W_down)

    x = A_x
    x = x + _A_ref(_layernorm(x, axis=-1), A_k_cache, A_v_cache, A_wq, A_wo)
    x = x + _B_ref(_layernorm(x, axis=-1), B_W_gate, B_W_up, B_W_down)
    x = x + _A_ref(_layernorm(x, axis=-1), A_k_cache, A_v_cache, A_wq, A_wo)
    x = x + _B_ref(_layernorm(x, axis=-1), B_W_gate, B_W_up, B_W_down)
    return x
```

```python
import re

TRANS = ("v_exp_f32", "v_rcp_f32", "v_rsq_f32", "v_sqrt_f32", "v_log_f32", "v_sin_f32", "v_cos_f32")

_reg1 = re.compile(r"^-?(?:abs\()?([vas])(\d+)\)?$")
_regN = re.compile(r"^-?([vas])\[(\d+):(\d+)\]$")


def split_ops(s):
    out, depth, cur = [], 0, ""
    for ch in s:
        if ch == "[":
            depth += 1
        elif ch == "]":
            depth -= 1
        if ch == "," and depth == 0:
            out.append(cur.strip())
            cur = ""
        else:
            cur += ch
    if cur.strip():
        out.append(cur.strip())
    return out


def regs_of(tok):
    tok = tok.split()[0] if tok else tok
    if tok in ("vcc", "exec"):
        return [tok]
    m = _reg1.match(tok)
    if m:
        return [m.group(1) + m.group(2)]
    m = _regN.match(tok)
    if m:
        return [m.group(1) + str(i) for i in range(int(m.group(2)), int(m.group(3)) + 1)]
    return []


class Asm:
    def __init__(self):
        self.lines = []

    def __call__(self, s):
        for l in s.split("\n"):
            l = l.strip()
            if l:
                self.lines.append(l)

    def label(self, name):
        self.lines.append(name + ":")

    def comment(self, s):
        self.lines.append("; " + s)

    def finalize(self):
        out = []
        pos = 0
        valu_w, trans_w, mfma_w, mfma_c, vsgpr_w, st_data = {}, {}, {}, {}, {}, {}
        mfma_dst_sig = {}

        def need(d, regs, req):
            n = 0
            for r in regs:
                if r in d:
                    dist = pos - d[r] - 1
                    n = max(n, req - dist)
            return n

        for l in self.lines:
            if l.startswith(";"):
                out.append("    " + l)
                continue
            if l.endswith(":"):
                out.append(l)
                out.append("    s_nop 7")
                out.append("    s_nop 1")
                pos += 10
                continue
            code = l.split(";")[0].strip()
            parts = code.split(None, 1)
            mn = parts[0]
            ops = split_ops(parts[1]) if len(parts) > 1 else []
            nn = 0
            dst, src = [], []
            kind = None
            if mn == "s_nop":
                out.append("    " + l)
                pos += int(ops[0], 0) + 1
                continue
            if mn.startswith("v_mfma"):
                kind = "mfma"
                dst = regs_of(ops[0])
                A, B, C = regs_of(ops[1]), regs_of(ops[2]), regs_of(ops[3])
                nn = max(nn, need(valu_w, A + B + C, 2))
                nn = max(nn, need(mfma_w, A + B, 8))
                sig = (dst[0], dst[-1])
                csig = (C[0], C[-1]) if C else None
                for r in C:
                    if r in mfma_w and mfma_dst_sig.get(r) != csig:
                        nn = max(nn, need(mfma_w, [r], 6))
                for r in dst:
                    if r in mfma_w and mfma_dst_sig.get(r) != sig:
                        nn = max(nn, need(mfma_w, [r], 6))
            elif mn.startswith("v_"):
                kind = "valu"
                if mn.startswith("v_permlane") and "swap" in mn:
                    dst = regs_of(ops[0]) + regs_of(ops[1])
                    src = list(dst)
                    nn = max(nn, need(valu_w, src, 2))
                elif mn.startswith("v_add_co") or mn.startswith("v_addc_co") or mn.startswith("v_sub_co"):
                    dst = regs_of(ops[0]) + regs_of(ops[1])
                    for o in ops[2:]:
                        src += regs_of(o)
                else:
                    dst = regs_of(ops[0])
                    for o in ops[1:]:
                        src += regs_of(o)
                    if mn.startswith("v_fmac") or "_dpp" in mn:
                        src += dst
                vsrc = [r for r in src if r[0] in "va" and r not in ("vcc",)]
                ssrc = [r for r in src if r[0] == "s" or r == "vcc"]
                vdst = [r for r in dst if r[0] in "va" and r != "vcc"]
                if "_dpp" in mn:
                    nn = max(nn, need(valu_w, vsrc, 2))
                if mn.startswith("v_readlane") or mn.startswith("v_readfirstlane"):
                    nn = max(nn, need(valu_w, vsrc, 1))
                if mn not in TRANS:
                    nn = max(nn, need(trans_w, vsrc, 1))
                else:
                    nn = max(nn, need(trans_w, vsrc, 1))
                nn = max(nn, need(vsgpr_w, ssrc, 2))
                nn = max(nn, need(mfma_w, vsrc + vdst, 8))
                nn = max(nn, need(mfma_c, vdst, 3))
                nn = max(nn, need(st_data, vdst, 2))
                if mn.startswith("v_cndmask") and len(ops) == 3:
                    nn = max(nn, need(vsgpr_w, ["vcc"], 2))
            elif mn.startswith("buffer_") or mn.startswith("global_"):
                kind = "vmem"
                isload = "_load" in mn
                allr = []
                for o in ops:
                    allr += regs_of(o)
                if isload:
                    dst = regs_of(ops[0])
                    for o in ops[1:]:
                        src += regs_of(o)
                else:
                    src = allr
                nn = max(nn, need(vsgpr_w, [r for r in src if r[0] == "s"], 5))
                nn = max(nn, need(mfma_w, [r for r in src + dst if r[0] in "va"], 8))
                nn = max(nn, need(st_data, dst, 1))
            elif mn.startswith("ds_"):
                kind = "ds"
                if mn.startswith("ds_write"):
                    for o in ops:
                        src += regs_of(o)
                else:
                    dst = regs_of(ops[0])
                    for o in ops[1:]:
                        src += regs_of(o)
                nn = max(nn, need(mfma_w, [r for r in src + dst if r[0] in "va"], 8))
                nn = max(nn, need(st_data, dst, 1))
            elif mn.startswith("s_"):
                kind = "salu"
                for o in ops:
                    src += regs_of(o)
                nn = max(nn, need(vsgpr_w, [r for r in src if r[0] == "s" or r == "vcc"], 1))
            else:
                raise ValueError("unknown instr " + l)
            while nn > 0:
                k = min(nn, 16)
                out.append("    s_nop %d" % (k - 1))
                pos += k
                nn -= k
            out.append("    " + l)
            if kind == "mfma":
                for r in dst:
                    mfma_w[r] = pos
                    mfma_dst_sig[r] = (dst[0], dst[-1])
                for r in regs_of(ops[3]):
                    mfma_c[r] = pos
            elif kind == "valu":
                for r in dst:
                    if r[0] in "va" and r != "vcc":
                        valu_w[r] = pos
                        if mn in TRANS:
                            trans_w[r] = pos
                        else:
                            trans_w.pop(r, None)
                    else:
                        vsgpr_w[r] = pos
            elif kind == "vmem":
                if ("store" in mn) and ("x4" in mn or "x3" in mn):
                    for r in regs_of(ops[0]):
                        st_data[r] = pos
            pos += 1
        return "\n".join(out)
```

```python
import struct
import sys
from asmlib import Asm

NAME = "interleave_layers__gqa_block_cached__glu_gated_reglu__decode_kernel"
NT = " nt"
DEBUG = False

O_PART, O_ML, O_Y, O_H, O_DN, O_Q = 0x0, 0x80000, 0x84000, 0x8C000, 0x8E000, 0x92000
ITS = 0x100000
WS_BYTES = 0x400000
O_DBG = 0x200000

NLDS = 36
L_SCR = 0
L_V = 16384
L_A = L_SCR
L_ML = L_A + 8192
L_B = L_ML + 128
L_X = L_B + 4096
LDS_BYTES = 163840
assert L_X + 2048 <= L_V and L_V + 4 * NLDS * 1024 <= LDS_BYTES

SRD_K, SRD_V, SRD_WS, SRD_WQ, SRD_WO, SRD_WG, SRD_WU, SRD_WD, SRD_X, SRD_OUT, SRD_DBG = [
    "s[%d:%d]" % (i, i + 3) for i in range(8, 52, 4)]
S_WAVE, S_OFF, S_IT, S_WSOFF, S_TMO, S_SELLO, S_SELHI, S_HIM, S_C = [
    "s%d" % i for i in range(52, 61)]
S_R0, S_R1, S_R2, S_R3 = "s61", "s62", "s63", "s64"
S_T0, S_T1, S_T2, S_T3 = "s65", "s66", "s67", "s68"
S_WSNEXT = "s69"

V_TID, V_LANE, V_KOFF, V_VOFF = "v0", "v1", "v2", "v3"
T = ["v%d" % i for i in range(4, 10)]
V_M, V_L = "v10", "v11"
QOP = 12
Z = 16
PK = 24
PKS = 28
D = 32
ACC = 48
LAND = 80
VC = 144


def v(i):
    return "v%d" % i


def vr(i, n):
    return "v[%d:%d]" % (i, i + n - 1)


def f32bits(x):
    return "0x%08x" % struct.unpack("<I", struct.pack("<f", x))[0]


g = Asm()
_lbl = [0]


def newlabel(p):
    _lbl[0] += 1
    return "L_%s_%d" % (p, _lbl[0])


def dpp(op, dst, s0, s1, ctl, row=0xF, bank=0xF):
    g("v_%s_dpp %s, %s, %s %s row_mask:0x%x bank_mask:0x%x" % (op, dst, s0, s1, ctl, row, bank))


def reduce_row3(regs, op="add_f32"):
    for ctl in ("quad_perm:[1,0,3,2]", "quad_perm:[2,3,0,1]", "row_ror:4", "row_ror:8"):
        for r in regs:
            dpp(op, r, r, r, ctl)
    for r in regs:
        dpp(op, r, r, r, "row_bcast:15", row=0xA)
    for r in regs:
        dpp(op, r, r, r, "row_bcast:31", row=0xC)


def rne1(dst, src):
    g("v_cvt_pk_bf16_f32 %s, %s, %s" % (dst, src, src))
    g("v_lshlrev_b32 %s, 16, %s" % (dst, dst))


def rne2(a, b, tmp):
    g("v_cvt_pk_bf16_f32 %s, %s, %s" % (tmp, a, b))
    g("v_lshlrev_b32 %s, 16, %s" % (a, tmp))
    g("v_and_b32 %s, %s, %s" % (b, S_HIM, tmp))


def poll(issue, regs, tmp):
    lp, done = newlabel("poll"), newlabel("pdone")
    g.label(lp)
    issue()
    g("s_waitcnt vmcnt(0)")
    rs = list(regs)
    first = True
    if len(rs) == 1:
        g("v_mov_b32 %s, %s" % (tmp, rs[0]))
        rs = []
        first = False
    while rs:
        if first:
            if len(rs) >= 3:
                g("v_max3_u32 %s, %s, %s, %s" % (tmp, rs[0], rs[1], rs[2]))
                rs = rs[3:]
            else:
                g("v_max_u32 %s, %s, %s" % (tmp, rs[0], rs[1]))
                rs = rs[2:]
            first = False
        else:
            if len(rs) >= 2:
                g("v_max3_u32 %s, %s, %s, %s" % (tmp, tmp, rs[0], rs[1]))
                rs = rs[2:]
            else:
                g("v_max_u32 %s, %s, %s" % (tmp, tmp, rs[0]))
                rs = rs[1:]
    g("v_cmp_eq_u32 vcc, -1, %s" % tmp)
    g("s_cbranch_vccz %s" % done)
    g("s_sub_u32 %s, %s, 1" % (S_TMO, S_TMO))
    g("s_cmp_eq_u32 %s, 0" % S_TMO)
    g("s_cbranch_scc0 %s" % lp)
    g("s_mov_b32 %s, 1" % S_TMO)
    g.label(done)


def layernorm(X, XN, t0, t1, t2):
    g("v_add_f32 %s, %s, %s" % (t0, X[0], X[1]))
    for i in range(2, 8):
        g("v_add_f32 %s, %s, %s" % (t0, t0, X[i]))
    reduce_row3([t0])
    g("v_readlane_b32 %s, %s, 63" % (S_R0, t0))
    g("v_mov_b32 %s, %s" % (t1, S_R0))
    g("v_mul_f32 %s, %s, %s" % (t1, f32bits(1.0 / 512), t1))
    for i in range(8):
        g("v_sub_f32 %s, %s, %s" % (XN[i], X[i], t1))
    g("v_mul_f32 %s, %s, %s" % (t0, XN[0], XN[0]))
    for i in range(1, 8):
        g("v_fmac_f32 %s, %s, %s" % (t0, XN[i], XN[i]))
    reduce_row3([t0])
    g("v_readlane_b32 %s, %s, 63" % (S_R0, t0))
    g("v_mov_b32 %s, %s" % (t0, S_R0))
    g("v_mul_f32 %s, %s, %s" % (t0, f32bits(1.0 / 512), t0))
    rne1(t1, t1)
    rne1(t0, t0)
    g("v_add_f32 %s, %s, %s" % (t0, f32bits(1e-5), t0))
    rne1(t0, t0)
    g("v_sqrt_f32 %s, %s" % (t0, t0))
    rne1(t0, t0)
    g("v_rcp_f32 %s, %s" % (t2, t0))
    for i in range(0, 8, 2):
        g("v_sub_f32 %s, %s, %s" % (XN[i], X[i], t1))
        g("v_sub_f32 %s, %s, %s" % (XN[i + 1], X[i + 1], t1))
        rne2(XN[i], XN[i + 1], X[i])
        for k in (i, i + 1):
            g("v_mul_f32 %s, %s, %s" % (X[k], XN[k], t2))
            g("v_fma_f32 %s, -%s, %s, %s" % (XN[k], X[k], t0, XN[k]))
            g("v_fma_f32 %s, %s, %s, %s" % (XN[k], XN[k], t2, X[k]))
        rne2(XN[i], XN[i + 1], X[i])


def fma_pairs(acc, wregs, x, t):
    for k, w in enumerate(wregs):
        g("v_lshlrev_b32 %s, 16, %s" % (t, w))
        g("v_fmac_f32 %s, %s, %s" % (acc[2 * k], x, t))
        g("v_and_b32 %s, %s, %s" % (t, S_HIM, w))
        g("v_fmac_f32 %s, %s, %s" % (acc[2 * k + 1], x, t))


def stream_piece(srd, voff, piece, slot):
    base = LAND + 32 * slot
    for half in range(2):
        g("s_mov_b32 %s, 0x%x" % (S_OFF, piece * 8192 + half * 4096))
        for n in range(4):
            r = base + 16 * half + 4 * n
            g("buffer_load_dwordx4 %s, %s, %s, %s offen offset:%d%s" % (vr(r, 4), voff, srd, S_OFF, n * 1024, NT))


def lane63():
    g("s_mov_b32 exec_lo, 0")
    g("s_mov_b32 exec_hi, 0x80000000")


def exec_all():
    g("s_mov_b64 exec, -1")


def qproj_loads(W):
    g("v_lshlrev_b32 %s, 16, %s" % (T[0], V_LANE))
    g("s_lshl_b32 %s, s2, 5" % S_T0)
    g("s_lshl_b32 %s, %s, 3" % (S_T1, S_WAVE))
    g("s_add_u32 %s, %s, %s" % (S_T0, S_T0, S_T1))
    g("v_add_u32 %s, %s, %s" % (T[0], S_T0, T[0]))
    for i in range(8):
        g("s_mov_b32 %s, 0x%x" % (S_OFF, i * 8192))
        g("buffer_load_dwordx2 %s, %s, %s, %s offen" % (vr(W + 2 * i, 2), T[0], SRD_WQ, S_OFF))


def qproj_compute_publish(W, XN, A, soff):
    acc = [v(A + i) for i in range(4)]
    for a in acc:
        g("v_mov_b32 %s, 0" % a)
    for i in range(8):
        fma_pairs(acc, [v(W + 2 * i), v(W + 2 * i + 1)], XN[i], T[1])
    reduce_row3(acc)
    rne2(acc[0], acc[1], T[1])
    rne2(acc[2], acc[3], T[1])
    g("s_lshl_b32 %s, s2, 6" % S_T0)
    g("s_lshl_b32 %s, %s, 4" % (S_T1, S_WAVE))
    g("s_add_u32 %s, %s, %s" % (S_T0, S_T0, S_T1))
    g("s_add_u32 %s, %s, 0x%x" % (S_T0, S_T0, O_Q))
    g("v_mov_b32 %s, %s" % (T[1], S_T0))
    lane63()
    g("buffer_store_dwordx4 %s, %s, %s, %s offen sc1" % (vr(A, 4), T[1], SRD_WS, soff))
    exec_all()


def gather_q(soff):
    g("v_and_b32 %s, 3, %s" % (T[0], V_LANE))
    g("v_lshlrev_b32 %s, 9, %s" % (T[0], T[0]))
    g("v_lshrrev_b32 %s, 4, %s" % (T[1], V_LANE))
    g("v_lshlrev_b32 %s, 7, %s" % (T[1], T[1]))
    g("v_add_u32 %s, %s, %s" % (T[0], T[0], T[1]))
    g("v_bfe_u32 %s, %s, 2, 2" % (T[1], V_LANE))
    g("v_lshlrev_b32 %s, 5, %s" % (T[1], T[1]))
    g("v_add_u32 %s, %s, %s" % (T[0], T[0], T[1]))
    g("s_lshr_b32 %s, s2, 5" % S_T0)
    g("s_lshl_b32 %s, %s, 11" % (S_T0, S_T0))
    g("s_add_u32 %s, %s, 0x%x" % (S_T0, S_T0, O_Q))
    g("v_add_u32 %s, %s, %s" % (T[0], S_T0, T[0]))

    def issue():
        g("buffer_load_dwordx4 %s, %s, %s, %s offen sc1" % (vr(D, 4), T[0], SRD_WS, soff))
        g("buffer_load_dwordx4 %s, %s, %s, %s offen offset:16 sc1" % (vr(D + 4, 4), T[0], SRD_WS, soff))
    poll(issue, [v(D + i) for i in range(8)], T[1])
    for p in range(4):
        g("v_cvt_pk_bf16_f32 %s, %s, %s" % (v(QOP + p), v(D + 2 * p), v(D + 2 * p + 1)))


def vop_loc(o):
    if o < 64:
        return ("a", 4 * o)
    if o < 64 + NLDS:
        return ("l", (o - 64) * 1024)
    return ("v", VC + 4 * (o - 64 - NLDS))


def dbg_store(regs_first, n, off_sgpr_expr_bytes, tag):
    pass


g("s_load_dwordx16 s[64:79], s[0:1], 0")
g("s_load_dwordx8 s[80:87], s[0:1], 64")
g("v_and_b32 %s, 63, %s" % (V_LANE, V_TID))
g("v_lshrrev_b32 %s, 6, %s" % (T[0], V_TID))
g("v_readfirstlane_b32 %s, %s" % (S_WAVE, T[0]))
g("s_cmp_ge_u32 s2, 256")
g("s_cbranch_scc1 L_exit")
g("s_waitcnt lgkmcnt(0)")


def mk_srd(srd, plo, nbytes):
    b = int(srd[2:].split(":")[0])
    g("s_mov_b32 s%d, s%d" % (b, plo))
    g("s_and_b32 s%d, s%d, 0xffff" % (b + 1, plo + 1))
    g("s_mov_b32 s%d, 0x%x" % (b + 2, nbytes))
    g("s_mov_b32 s%d, 0x00020000" % (b + 3))


mk_srd(SRD_X, 64, 1024)
mk_srd(SRD_K, 66, 0x8000000)
mk_srd(SRD_V, 68, 0x8000000)
mk_srd(SRD_WQ, 70, 512 * 4096 * 2)
mk_srd(SRD_WO, 72, 4096 * 512 * 2)
mk_srd(SRD_WG, 76, 512 * 1792 * 2)
mk_srd(SRD_WU, 78, 512 * 1792 * 2)
mk_srd(SRD_WD, 80, 1792 * 512 * 2)
mk_srd(SRD_OUT, 82, 1024)
mk_srd(SRD_DBG, 84, 256)
mk_srd(SRD_WS, 86, WS_BYTES)
g("s_mov_b32 %s, 0" % S_IT)
g("s_mov_b32 %s, 0" % S_WSOFF)
g("s_mov_b32 %s, 0x%x" % (S_WSNEXT, ITS))
g("s_mov_b32 %s, 400000" % S_TMO)
g("s_mov_b32 %s, 0x05040100" % S_SELLO)
g("s_mov_b32 %s, 0x07060302" % S_SELHI)
g("s_mov_b32 %s, 0xffff0000" % S_HIM)
g("s_mov_b32 %s, %s" % (S_C, f32bits(128 ** -0.5 * 1.4426950408889634)))
g("s_lshl_b32 %s, s2, 19" % S_T0)
g("s_lshl_b32 %s, %s, 17" % (S_T1, S_WAVE))
g("s_add_u32 %s, %s, %s" % (S_T0, S_T0, S_T1))
g("v_bfe_u32 %s, %s, 2, 2" % (T[0], V_LANE))
g("v_lshlrev_b32 %s, 8, %s" % (T[0], T[0]))
g("v_lshrrev_b32 %s, 4, %s" % (T[1], V_LANE))
g("v_lshlrev_b32 %s, 6, %s" % (T[1], T[1]))
g("v_and_b32 %s, 3, %s" % (T[2], V_LANE))
g("v_lshlrev_b32 %s, 4, %s" % (T[2], T[2]))
g("v_add3_u32 %s, %s, %s, %s" % (V_KOFF, T[0], T[1], T[2]))
g("v_add_u32 %s, %s, %s" % (V_KOFF, S_T0, V_KOFF))
g("v_lshlrev_b32 %s, 4, %s" % (V_VOFF, V_LANE))
g("v_add_u32 %s, %s, %s" % (V_VOFF, S_T0, V_VOFF))

g("v_mov_b32 %s, -1" % T[4])
g("v_mov_b32 %s, -1" % T[5])
g("v_lshlrev_b32 %s, 3, %s" % (T[0], V_TID))
g("s_lshl_b32 %s, s2, 11" % S_T0)
g("v_add_u32 %s, %s, %s" % (T[0], S_T0, T[0]))
g("buffer_store_dwordx2 %s, %s, %s, 0 offen sc1" % (vr(8, 2), T[0], SRD_WS))
g("buffer_store_dwordx2 %s, %s, %s, %s offen sc1" % (vr(8, 2), T[0], SRD_WS, S_WSNEXT))
g("s_cmp_lg_u32 %s, 0" % S_WAVE)
g("s_cbranch_scc1 L_noclear")
g("v_lshlrev_b32 %s, 2, %s" % (T[1], V_LANE))


def clear_small(nl, sbase_code):
    sbase_code()
    g("v_add_u32 %s, %s, %s" % (T[0], S_T0, T[1]))
    g("s_mov_b64 exec, 0x%x" % ((1 << nl) - 1))
    g("buffer_store_dword %s, %s, %s, 0 offen sc1" % (T[4], T[0], SRD_WS))
    g("buffer_store_dword %s, %s, %s, %s offen sc1" % (T[4], T[0], SRD_WS, S_WSNEXT))
    exec_all()


def _ml():
    g("s_lshl_b32 %s, s2, 5" % S_T0)
    g("s_add_u32 %s, %s, 0x%x" % (S_T0, S_T0, O_ML))


def _y():
    g("s_lshl_b32 %s, s2, 7" % S_T0)
    g("s_add_u32 %s, %s, 0x%x" % (S_T0, S_T0, O_Y))


def _h():
    g("s_lshl_b32 %s, s2, 5" % S_T0)
    g("s_add_u32 %s, %s, 0x%x" % (S_T0, S_T0, O_H))


def _dn():
    g("s_lshl_b32 %s, s2, 6" % S_T0)
    g("s_add_u32 %s, %s, 0x%x" % (S_T0, S_T0, O_DN))


def _q():
    g("s_lshl_b32 %s, s2, 6" % S_T0)
    g("s_add_u32 %s, %s, 0x%x" % (S_T0, S_T0, O_Q))


clear_small(8, _ml)
clear_small(32, _y)
clear_small(16, _dn)
clear_small(16, _q)
g("s_cmp_ge_u32 s2, 224")
g("s_cbranch_scc1 L_noclear")
clear_small(8, _h)
g.label("L_noclear")

XR = ACC + 16
XF = [v(ACC + 20 + i) for i in range(8)]
XN = [v(Z + i) for i in range(8)]
g("v_lshlrev_b32 %s, 4, %s" % (T[2], V_LANE))
g("buffer_load_dwordx4 %s, %s, %s, 0 offen" % (vr(XR, 4), T[2], SRD_X))
qproj_loads(ACC)
stream_piece(SRD_V, V_VOFF, 0, 0)
stream_piece(SRD_V, V_VOFF, 1, 1)
g("s_waitcnt vmcnt(16)")
for i in range(4):
    g("v_lshlrev_b32 %s, 16, %s" % (XF[2 * i], v(XR + i)))
    g("v_and_b32 %s, %s, %s" % (XF[2 * i + 1], S_HIM, v(XR + i)))
g("s_cmp_lg_u32 %s, 0" % S_WAVE)
g("s_cbranch_scc1 L_nox")
g("v_lshlrev_b32 %s, 5, %s" % (T[2], V_LANE))
g("ds_write_b128 %s, %s offset:%d" % (T[2], vr(ACC + 20, 4), L_X))
g("ds_write_b128 %s, %s offset:%d" % (T[2], vr(ACC + 24, 4), L_X + 16))
g("s_waitcnt lgkmcnt(0)")
g.label("L_nox")
layernorm(XF, XN, T[2], T[3], T[4])
qproj_compute_publish(ACC, XN, PK, "0")
g("s_waitcnt vmcnt(0)")
g("s_barrier")
g("s_cmp_lg_u32 %s, 0" % S_WAVE)
g("s_cbranch_scc1 L_noarr")
g("v_mov_b32 %s, 0" % T[0])
g("v_mov_b32 %s, 1" % T[1])
g("s_mov_b64 exec, 1")
g("buffer_atomic_add %s, %s, %s, 0 offen sc1" % (T[1], T[0], SRD_DBG))
exec_all()
g.label("L_noarr")

g("v_lshlrev_b32 %s, 4, %s" % (T[5], V_LANE))
g("s_mul_i32 %s, %s, %d" % (S_T0, S_WAVE, NLDS * 1024))
g("s_add_u32 %s, %s, %d" % (S_T0, S_T0, L_V))
g("v_add_u32 %s, %s, %s" % (T[5], S_T0, T[5]))
V_LDSV = T[5]
for u in range(16):
    slot = u % 2
    R = LAND + 32 * slot
    g("s_waitcnt vmcnt(8)")
    for s in range(8):
        w_, b = s // 2, s % 2
        kind, loc = vop_loc(8 * u + s)
        sel = S_SELHI if b else S_SELLO
        tmpb = D + 4 * (s % 4)
        for p in range(4):
            dst = v(loc + p) if kind == "v" else v(tmpb + p)
            g("v_perm_b32 %s, %s, %s, %s" % (dst, v(R + 4 * (2 * p + 1) + w_), v(R + 4 * (2 * p) + w_), sel))
        if kind == "a":
            for p in range(4):
                g("v_accvgpr_write_b32 a%d, %s" % (loc + p, v(tmpb + p)))
        elif kind == "l":
            g("ds_write_b128 %s, %s offset:%d" % (V_LDSV, vr(tmpb, 4), loc))
            if s % 4 == 3:
                g("s_waitcnt lgkmcnt(0)")
    if u + 2 < 16:
        stream_piece(SRD_V, V_VOFF, u + 2, slot)
    else:
        stream_piece(SRD_K, V_KOFF, u + 2 - 16, slot)
    if u == 12:
        g.comment("wait for every WG's arrival (clears + q1 published), then fetch q1")
        lp, done = newlabel("cnt"), newlabel("cdone")
        g("v_mov_b32 %s, 0" % T[0])
        g.label(lp)
        g("buffer_load_dword %s, %s, %s, 0 offen sc1" % (T[1], T[0], SRD_DBG))
        g("s_waitcnt vmcnt(0)")
        g("v_readfirstlane_b32 %s, %s" % (S_T0, T[1]))
        g("s_cmp_ge_u32 %s, 256" % S_T0)
        g("s_cbranch_scc1 %s" % done)
        g("s_sub_u32 %s, %s, 1" % (S_TMO, S_TMO))
        g("s_cmp_eq_u32 %s, 0" % S_TMO)
        g("s_cbranch_scc0 %s" % lp)
        g("s_mov_b32 %s, 1" % S_TMO)
        g.label(done)
        gather_q("0")
g("s_waitcnt lgkmcnt(0)")

g.label("L_main")
for s in range(8):
    for r in range(4):
        g("v_mov_b32 %s, 0" % v(ACC + 4 * s + r))
g("v_mov_b32 %s, 0" % V_L)
for ch in range(4):
    for pn in range(4):
        i = 4 * ch + pn
        slot = i % 2
        R = LAND + 32 * slot
        g("s_waitcnt vmcnt(%d)" % (8 if i < 15 else 0))

        def qk_mfma(n):
            g("v_mfma_f32_16x16x32_bf16 %s, %s, %s, 0" % (vr(D + 4 * (n % 4), 4), vr(R + 4 * n, 4), vr(QOP, 4)))

        def qk_red(n):
            db = D + 4 * (n % 4)
            others = [t for t in range(4) if t != pn]
            first = True
            for k, t in enumerate(others):
                rot = (16 - 4 * (t - pn)) % 16
                src1 = v(db + pn) if first else T[0]
                last = k == 2
                dst = v(Z + n) if last else T[0]
                dpp("add_f32", dst, v(db + t), src1, "row_ror:%d" % rot, bank=(1 << pn) if last else 0xF)
                first = False
        for n in range(4):
            qk_mfma(n)
        for n in range(4):
            qk_red(n)
            qk_mfma(n + 4)
        if i + 2 < 16:
            stream_piece(SRD_K, V_KOFF, i + 2, slot)
        for n in range(4, 8):
            qk_red(n)
    g.comment("softmax for chunk %d" % ch)
    g("v_max3_f32 %s, %s, %s, %s" % (T[0], v(Z), v(Z + 1), v(Z + 2)))
    g("v_max3_f32 %s, %s, %s, %s" % (T[0], T[0], v(Z + 3), v(Z + 4)))
    g("v_max3_f32 %s, %s, %s, %s" % (T[0], T[0], v(Z + 5), v(Z + 6)))
    g("v_max_f32 %s, %s, %s" % (T[0], T[0], v(Z + 7)))
    dpp("max_f32", T[0], T[0], T[0], "row_ror:4")
    dpp("max_f32", T[0], T[0], T[0], "row_ror:8")
    for sw in ("16", "32"):
        g("v_mov_b32 %s, %s" % (T[1], T[0]))
        g("v_permlane%s_swap_b32 %s, %s" % (sw, T[0], T[1]))
        g("v_max_f32 %s, %s, %s" % (T[0], T[0], T[1]))
    if ch == 0:
        g("v_mov_b32 %s, %s" % (V_M, T[0]))
    else:
        g("v_max_f32 %s, %s, %s" % (T[0], T[0], V_M))
        g("v_sub_f32 %s, %s, %s" % (T[1], V_M, T[0]))
        g("v_mul_f32 %s, %s, %s" % (T[1], S_C, T[1]))
        g("v_exp_f32 %s, %s" % (T[1], T[1]))
        g("v_mov_b32 %s, %s" % (V_M, T[0]))
        g("v_mul_f32 %s, %s, %s" % (V_L, V_L, T[1]))
        for r, sr in enumerate((S_R0, S_R1, S_R2, S_R3)):
            g("v_readlane_b32 %s, %s, %d" % (sr, T[1], r))
        for s in range(8):
            for r, sr in enumerate((S_R0, S_R1, S_R2, S_R3)):
                g("v_mul_f32 %s, %s, %s" % (v(ACC + 4 * s + r), sr, v(ACC + 4 * s + r)))
    g("v_mul_f32 %s, %s, %s" % (T[1], S_C, V_M))
    for a in range(8):
        g("v_fma_f32 %s, %s, %s, -%s" % (v(Z + a), v(Z + a), S_C, T[1]))
    for a in range(8):
        g("v_exp_f32 %s, %s" % (v(Z + a), v(Z + a)))
    for a in range(8):
        g("v_add_f32 %s, %s, %s" % (V_L, V_L, v(Z + a)))
    for p in range(4):
        g("v_cvt_pk_bf16_f32 %s, %s, %s" % (v(PK + p), v(Z + 2 * p), v(Z + 2 * p + 1)))
    g.comment("PV for chunk %d" % ch)
    ops = [(pn, s) for pn in range(4) for s in range(8)]
    ldsq = [k for k, (pn, s) in enumerate(ops) if vop_loc(32 * ch + k)[0] == "l"]
    issued = 0

    def issue_lds(k):
        slotr = D + 4 * (ldsq.index(k) % 4)
        g("ds_read_b128 %s, %s offset:%d" % (vr(slotr, 4), V_LDSV, vop_loc(32 * ch + k)[1]))
    for k in ldsq[:4]:
        issue_lds(k)
        issued += 1
    for k, (pn, s) in enumerate(ops):
        if s == 0 and pn > 0:
            for p in range(4):
                g("v_mov_b32_dpp %s, %s row_shl:%d row_mask:0xf bank_mask:0xf" % (v(PKS + p), v(PK + p), 4 * pn))
        A = vr(PK if pn == 0 else PKS, 4)
        kind, loc = vop_loc(32 * ch + k)
        if kind == "a":
            B = "a[%d:%d]" % (loc, loc + 3)
        elif kind == "v":
            B = vr(loc, 4)
        else:
            idx = ldsq.index(k)
            B = vr(D + 4 * (idx % 4), 4)
            g("s_waitcnt lgkmcnt(%d)" % (issued - idx - 1))
        g("v_mfma_f32_16x16x32_bf16 %s, %s, %s, %s" % (vr(ACC + 4 * s, 4), A, B, vr(ACC + 4 * s, 4)))
        if kind == "l" and issued < len(ldsq):
            issue_lds(ldsq[issued])
            issued += 1

WW = LAND
g("s_lshr_b32 %s, s2, 4" % S_T0)
g("s_lshl_b32 %s, %s, 18" % (S_T0, S_T0))
g("s_and_b32 %s, s2, 15" % S_T1)
g("s_lshl_b32 %s, %s, 6" % (S_T1, S_T1))
g("s_add_u32 %s, %s, %s" % (S_T0, S_T0, S_T1))
g("s_lshl_b32 %s, %s, 4" % (S_T1, S_WAVE))
g("s_add_u32 %s, %s, %s" % (S_T0, S_T0, S_T1))
g("v_lshlrev_b32 %s, 12, %s" % (T[0], V_LANE))
g("v_add_u32 %s, %s, %s" % (T[0], S_T0, T[0]))
for i in range(4):
    g("buffer_load_dwordx4 %s, %s, %s, 0 offen offset:%d" % (vr(WW + 4 * i, 4), T[0], SRD_WO, i * 1024))
dpp("add_f32", V_L, V_L, V_L, "row_ror:4")
dpp("add_f32", V_L, V_L, V_L, "row_ror:8")
for sw in ("16", "32"):
    g("v_mov_b32 %s, %s" % (T[1], V_L))
    g("v_permlane%s_swap_b32 %s, %s" % (sw, V_L, T[1]))
    g("v_add_f32 %s, %s, %s" % (V_L, V_L, T[1]))
g("s_lshl_b32 %s, %s, 11" % (S_T0, S_WAVE))
g("v_lshlrev_b32 %s, 4, %s" % (T[0], V_LANE))
g("v_add_u32 %s, %s, %s" % (T[0], S_T0, T[0]))
g("s_lshl_b32 %s, %s, 5" % (S_T0, S_WAVE))
g("v_lshlrev_b32 %s, 3, %s" % (T[1], V_LANE))
g("v_add_u32 %s, %s, %s" % (T[1], S_T0, T[1]))
g("s_mov_b64 exec, 0xffff")
for s in range(8):
    g("ds_write_b128 %s, %s offset:%d" % (T[0], vr(ACC + 4 * s, 4), L_A + 256 * s))
g("s_mov_b64 exec, 0xf")
g("ds_write_b64 %s, %s offset:%d" % (T[1], vr(10, 2), L_ML))
exec_all()
g("s_waitcnt lgkmcnt(0)")
g("s_barrier")
g("v_and_b32 %s, 3, %s" % (T[0], V_LANE))
g("v_lshlrev_b32 %s, 9, %s" % (T[0], T[0]))
g("v_lshrrev_b32 %s, 2, %s" % (T[1], V_LANE))
g("v_lshlrev_b32 %s, 4, %s" % (T[1], T[1]))
g("v_add_u32 %s, %s, %s" % (T[0], T[0], T[1]))
g("s_lshl_b32 %s, %s, 2" % (S_T0, S_WAVE))
g("v_add_u32 %s, %s, %s" % (T[0], S_T0, T[0]))
g("s_lshl_b32 %s, %s, 3" % (S_T0, S_WAVE))
g("v_mov_b32 %s, %s" % (T[1], S_T0))
for vv in range(4):
    g("ds_read_b32 %s, %s offset:%d" % (v(D + 2 * vv), T[0], L_A + 2048 * vv))
    g("ds_read_b32 %s, %s offset:%d" % (v(D + 2 * vv + 1), T[0], L_A + 2048 * vv + 256))
    g("ds_read_b64 %s, %s offset:%d" % (vr(Z + 2 * vv, 2), T[1], L_ML + 32 * vv))
g("s_waitcnt lgkmcnt(0)")
g("v_max3_f32 %s, %s, %s, %s" % (T[2], v(Z), v(Z + 2), v(Z + 4)))
g("v_max_f32 %s, %s, %s" % (T[2], T[2], v(Z + 6)))
for vv in range(4):
    g("v_sub_f32 %s, %s, %s" % (v(Z + 2 * vv), v(Z + 2 * vv), T[2]))
    g("v_mul_f32 %s, %s, %s" % (v(Z + 2 * vv), S_C, v(Z + 2 * vv)))
    g("v_exp_f32 %s, %s" % (v(Z + 2 * vv), v(Z + 2 * vv)))
g("v_mul_f32 %s, %s, %s" % (v(PK), v(Z), v(D)))
g("v_mul_f32 %s, %s, %s" % (v(PK + 1), v(Z), v(D + 1)))
g("v_mul_f32 %s, %s, %s" % (T[3], v(Z), v(Z + 1)))
for vv in range(1, 4):
    g("v_fmac_f32 %s, %s, %s" % (v(PK), v(Z + 2 * vv), v(D + 2 * vv)))
    g("v_fmac_f32 %s, %s, %s" % (v(PK + 1), v(Z + 2 * vv), v(D + 2 * vv + 1)))
    g("v_fmac_f32 %s, %s, %s" % (T[3], v(Z + 2 * vv), v(Z + 2 * vv + 1)))
g("v_lshlrev_b32 %s, 3, %s" % (T[0], V_TID))
g("s_lshl_b32 %s, s2, 11" % S_T0)
g("v_add_u32 %s, %s, %s" % (T[0], S_T0, T[0]))
g("buffer_store_dwordx2 %s, %s, %s, %s offen sc1" % (vr(PK, 2), T[0], SRD_WS, S_WSOFF))
g("s_lshl_b32 %s, s2, 5" % S_T0)
g("s_lshl_b32 %s, %s, 3" % (S_T1, S_WAVE))
g("s_add_u32 %s, %s, %s" % (S_T0, S_T0, S_T1))
g("s_add_u32 %s, %s, 0x%x" % (S_T0, S_T0, O_ML))
g("v_mov_b32 %s, %s" % (T[1], S_T0))
g("s_mov_b64 exec, 1")
g("buffer_store_dwordx2 %s, %s, %s, %s offen sc1" % (vr(6, 2), T[1], SRD_WS, S_WSOFF))
exec_all()

GO = LAND + 16
GML = LAND + 48
g("s_lshr_b32 %s, s2, 5" % S_T0)
g("s_lshl_b32 %s, %s, 16" % (S_T0, S_T0))
g("s_lshl_b32 %s, %s, 14" % (S_T1, S_WAVE))
g("s_add_u32 %s, %s, %s" % (S_T0, S_T0, S_T1))
g("s_bfe_u32 %s, s2, 0x10004" % S_T1)
g("s_lshl_b32 %s, %s, 10" % (S_T1, S_T1))
g("s_add_u32 %s, %s, %s" % (S_T0, S_T0, S_T1))
g("v_lshlrev_b32 %s, 4, %s" % (T[0], V_LANE))
g("v_add_u32 %s, %s, %s" % (T[0], S_T0, T[0]))
g("s_lshr_b32 %s, s2, 5" % S_T0)
g("s_lshl_b32 %s, %s, 10" % (S_T0, S_T0))
g("s_bfe_u32 %s, s2, 0x10004" % S_T1)
g("s_lshl_b32 %s, %s, 4" % (S_T1, S_T1))
g("s_add_u32 %s, %s, %s" % (S_T0, S_T0, S_T1))
g("s_add_u32 %s, %s, 0x%x" % (S_T0, S_T0, O_ML))
g("v_and_b32 %s, 31, %s" % (T[1], V_LANE))
g("v_lshlrev_b32 %s, 5, %s" % (T[1], T[1]))
g("v_lshrrev_b32 %s, 5, %s" % (T[2], V_LANE))
g("v_lshlrev_b32 %s, 3, %s" % (T[2], T[2]))
g("v_add3_u32 %s, %s, %s, %s" % (T[1], T[1], T[2], S_T0))


def e1_issue():
    for i in range(8):
        g("s_add_u32 %s, %s, 0x%x" % (S_OFF, S_WSOFF, i * 2048))
        g("buffer_load_dwordx4 %s, %s, %s, %s offen sc1" % (vr(GO + 4 * i, 4), T[0], SRD_WS, S_OFF))
    g("buffer_load_dwordx2 %s, %s, %s, %s offen sc1" % (vr(GML, 2), T[1], SRD_WS, S_WSOFF))


poll(e1_issue, [v(GO + i) for i in range(32)] + [v(GML), v(GML + 1)], T[2])
g("v_mov_b32 %s, %s" % (T[2], v(GML)))
for ctl in ("quad_perm:[1,0,3,2]", "quad_perm:[2,3,0,1]", "row_ror:4", "row_ror:8"):
    dpp("max_f32", T[2], T[2], T[2], ctl)
g("v_mov_b32 %s, %s" % (T[3], T[2]))
g("v_permlane16_swap_b32 %s, %s" % (T[2], T[3]))
g("v_max_f32 %s, %s, %s" % (T[2], T[2], T[3]))
g("v_sub_f32 %s, %s, %s" % (T[2], v(GML), T[2]))
g("v_mul_f32 %s, %s, %s" % (T[2], S_C, T[2]))
g("v_exp_f32 %s, %s" % (T[2], T[2]))
g("v_mul_f32 %s, %s, %s" % (T[3], T[2], v(GML + 1)))
for ctl in ("quad_perm:[1,0,3,2]", "quad_perm:[2,3,0,1]", "row_ror:4", "row_ror:8"):
    dpp("add_f32", T[3], T[3], T[3], ctl)
g("v_mov_b32 %s, %s" % (T[4], T[3]))
g("v_permlane16_swap_b32 %s, %s" % (T[3], T[4]))
g("v_add_f32 %s, %s, %s" % (T[3], T[3], T[4]))
g("v_rcp_f32 %s, %s" % (T[4], T[3]))
g("v_fma_f32 %s, -%s, %s, 1.0" % (T[3], T[3], T[4]))
g("v_fma_f32 %s, %s, %s, %s" % (T[4], T[3], T[4], T[4]))
g("v_mul_f32 %s, %s, %s" % (T[2], T[2], T[4]))
g("v_and_b32 %s, 32, %s" % (T[3], V_LANE))
g("s_lshl_b32 %s, %s, 3" % (S_T0, S_WAVE))
g("v_add_u32 %s, %s, %s" % (T[3], S_T0, T[3]))
g("v_lshlrev_b32 %s, 2, %s" % (T[3], T[3]))
for i in range(8):
    g("v_add_u32 %s, %d, %s" % (T[4], 4 * i, T[3]))
    g("ds_bpermute_b32 %s, %s, %s" % (v(Z + i), T[4], T[2]))
g("s_waitcnt lgkmcnt(0)")
for e in range(4):
    g("v_mul_f32 %s, %s, %s" % (v(PK + e), v(Z), v(GO + e)))
for i in range(1, 8):
    for e in range(4):
        g("v_fmac_f32 %s, %s, %s" % (v(PK + e), v(Z + i), v(GO + 4 * i + e)))
g("s_lshl_b32 %s, %s, 10" % (S_T0, S_WAVE))
g("v_lshlrev_b32 %s, 4, %s" % (T[0], V_LANE))
g("v_add_u32 %s, %s, %s" % (T[1], S_T0, T[0]))
g("ds_write_b128 %s, %s offset:%d" % (T[1], vr(PK, 4), L_B))
g("s_waitcnt lgkmcnt(0)")
g("s_barrier")
for vv in range(4):
    g("ds_read_b128 %s, %s offset:%d" % (vr(D + 4 * vv, 4), T[0], L_B + 1024 * vv))
g("s_waitcnt lgkmcnt(0)")
for e in range(4):
    g("v_add_f32 %s, %s, %s" % (v(D + e), v(D + e), v(D + 4 + e)))
    g("v_add_f32 %s, %s, %s" % (v(D + 8 + e), v(D + 8 + e), v(D + 12 + e)))
    g("v_add_f32 %s, %s, %s" % (v(D + e), v(D + e), v(D + 8 + e)))
rne2(v(D), v(D + 1), T[2])
rne2(v(D + 2), v(D + 3), T[2])
acc8 = [v(Z + i) for i in range(8)]
for a in acc8:
    g("v_mov_b32 %s, 0" % a)
for i in range(4):
    fma_pairs(acc8, [v(WW + 4 * i + k) for k in range(4)], v(D + i), T[2])
GW = ACC
g("s_cmp_ge_u32 s2, 224")
g("s_cbranch_scc1 L_nogw")
g("s_cmp_ge_u32 %s, 2" % S_WAVE)
g("s_cbranch_scc1 L_nogw")
g("s_mov_b32 %s, %d" % (S_T0, 8 * 3584))
g("v_mul_lo_u32 %s, %s, %s" % (T[2], S_T0, V_LANE))
g("s_lshl_b32 %s, s2, 4" % S_T0)
g("s_lshl_b32 %s, %s, 3" % (S_T1, S_WAVE))
g("s_add_u32 %s, %s, %s" % (S_T0, S_T0, S_T1))
g("v_add_u32 %s, %s, %s" % (T[2], S_T0, T[2]))
for i in range(8):
    g("s_mov_b32 %s, %d" % (S_OFF, i * 3584))
    g("buffer_load_dwordx2 %s, %s, %s, %s offen" % (vr(GW + 2 * i, 2), T[2], SRD_WG, S_OFF))
    g("buffer_load_dwordx2 %s, %s, %s, %s offen" % (vr(GW + 16 + 2 * i, 2), T[2], SRD_WU, S_OFF))
g.label("L_nogw")
reduce_row3(acc8)
g("s_lshl_b32 %s, s2, 7" % S_T0)
g("s_lshl_b32 %s, %s, 5" % (S_T1, S_WAVE))
g("s_add_u32 %s, %s, %s" % (S_T0, S_T0, S_T1))
g("s_add_u32 %s, %s, 0x%x" % (S_T0, S_T0, O_Y))
g("v_mov_b32 %s, %s" % (T[2], S_T0))
lane63()
g("buffer_store_dwordx4 %s, %s, %s, %s offen sc1" % (vr(Z, 4), T[2], SRD_WS, S_WSOFF))
g("buffer_store_dwordx4 %s, %s, %s, %s offen offset:16 sc1" % (vr(Z + 4, 4), T[2], SRD_WS, S_WSOFF))
exec_all()


def residual_update(nparts, obase):
    GP = LAND
    g("s_lshl_b32 %s, %s, 9" % (S_T0, S_WAVE))
    g("v_lshlrev_b32 %s, 3, %s" % (T[0], V_LANE))
    g("v_add_u32 %s, %s, %s" % (T[0], S_T0, T[0]))
    g("ds_read_b64 %s, %s offset:%d" % (vr(D, 2), T[0], L_X))
    g("v_add_u32 %s, 0x%x, %s" % (T[1], obase, T[0]))

    def issue():
        for i in range(nparts):
            g("s_add_u32 %s, %s, 0x%x" % (S_OFF, S_WSOFF, i * 2048))
            g("buffer_load_dwordx2 %s, %s, %s, %s offen sc1" % (vr(GP + 2 * i, 2), T[1], SRD_WS, S_OFF))
    poll(issue, [v(GP + i) for i in range(2 * nparts)], T[2])
    for i in range(1, nparts):
        g("v_add_f32 %s, %s, %s" % (v(GP), v(GP), v(GP + 2 * i)))
        g("v_add_f32 %s, %s, %s" % (v(GP + 1), v(GP + 1), v(GP + 2 * i + 1)))
    rne2(v(GP), v(GP + 1), T[2])
    g("s_waitcnt lgkmcnt(0)")
    g("v_add_f32 %s, %s, %s" % (v(D), v(D), v(GP)))
    g("v_add_f32 %s, %s, %s" % (v(D + 1), v(D + 1), v(GP + 1)))
    rne2(v(D), v(D + 1), T[2])


def read_x_all(XFb):
    g("v_lshlrev_b32 %s, 5, %s" % (T[0], V_LANE))
    g("ds_read_b128 %s, %s offset:%d" % (vr(XFb, 4), T[0], L_X))
    g("ds_read_b128 %s, %s offset:%d" % (vr(XFb + 4, 4), T[0], L_X + 16))
    g("s_waitcnt lgkmcnt(0)")


residual_update(16, O_Y)
g("ds_write_b64 %s, %s offset:%d" % (T[0], vr(D, 2), L_X))
g("s_waitcnt lgkmcnt(0)")
g("s_barrier")
DW = LAND + 32
g("s_lshr_b32 %s, s2, 5" % S_T0)
g("s_mul_i32 %s, %s, %d" % (S_T0, S_T0, 224 * 1024))
g("s_and_b32 %s, s2, 31" % S_T1)
g("s_lshl_b32 %s, %s, 5" % (S_T1, S_T1))
g("s_add_u32 %s, %s, %s" % (S_T0, S_T0, S_T1))
g("s_lshl_b32 %s, %s, 3" % (S_T1, S_WAVE))
g("s_add_u32 %s, %s, %s" % (S_T0, S_T0, S_T1))
g("v_lshlrev_b32 %s, 12, %s" % (T[4], V_LANE))
g("v_add_u32 %s, %s, %s" % (T[4], S_T0, T[4]))
g("s_mov_b32 exec_lo, -1")
g("s_mov_b32 exec_hi, 0x00ffffff")
for i in range(4):
    g("buffer_load_dwordx2 %s, %s, %s, 0 offen offset:%d" % (vr(DW + 2 * i, 2), T[4], SRD_WD, i * 1024))
exec_all()
g("s_cmp_ge_u32 s2, 224")
g("s_cbranch_scc1 L_nogu")
g("s_cmp_ge_u32 %s, 2" % S_WAVE)
g("s_cbranch_scc1 L_nogu")
XFb = D
read_x_all(XFb)
layernorm([v(XFb + i) for i in range(8)], XN, T[0], T[1], T[2])
accg = [v(PK + i) for i in range(8)]
for a in accg:
    g("v_mov_b32 %s, 0" % a)
g("s_waitcnt vmcnt(0)")
for i in range(8):
    fma_pairs(accg[0:4], [v(GW + 2 * i), v(GW + 2 * i + 1)], XN[i], T[0])
    fma_pairs(accg[4:8], [v(GW + 16 + 2 * i), v(GW + 16 + 2 * i + 1)], XN[i], T[0])
reduce_row3(accg)
for k in range(0, 8, 2):
    rne2(accg[k], accg[k + 1], T[0])
for k in range(4):
    g("v_max_f32 %s, 0, %s" % (accg[k], accg[k]))
    g("v_mul_f32 %s, %s, %s" % (accg[k], accg[k], accg[4 + k]))
rne2(accg[0], accg[1], T[0])
rne2(accg[2], accg[3], T[0])
g("s_lshl_b32 %s, s2, 5" % S_T0)
g("s_lshl_b32 %s, %s, 4" % (S_T1, S_WAVE))
g("s_add_u32 %s, %s, %s" % (S_T0, S_T0, S_T1))
g("s_add_u32 %s, %s, 0x%x" % (S_T0, S_T0, O_H))
g("v_mov_b32 %s, %s" % (T[0], S_T0))
lane63()
g("buffer_store_dwordx4 %s, %s, %s, %s offen sc1" % (vr(PK, 4), T[0], SRD_WS, S_WSOFF))
exec_all()
g.label("L_nogu")

g("s_lshr_b32 %s, s2, 5" % S_T0)
g("s_mul_i32 %s, %s, %d" % (S_T0, S_T0, 224 * 4))
g("s_add_u32 %s, %s, 0x%x" % (S_T0, S_T0, O_H))
g("v_lshlrev_b32 %s, 4, %s" % (T[0], V_LANE))
g("v_add_u32 %s, %s, %s" % (T[0], S_T0, T[0]))
accd = [v(PK + i) for i in range(4)]
for a in accd:
    g("v_mov_b32 %s, 0" % a)
g("s_mov_b32 exec_lo, -1")
g("s_mov_b32 exec_hi, 0x00ffffff")


def e3_issue():
    g("buffer_load_dwordx4 %s, %s, %s, %s offen sc1" % (vr(D, 4), T[0], SRD_WS, S_WSOFF))


poll(e3_issue, [v(D + i) for i in range(4)], T[1])
for i in range(4):
    fma_pairs(accd, [v(DW + 2 * i), v(DW + 2 * i + 1)], v(D + i), T[1])
exec_all()
reduce_row3(accd)
g("s_lshl_b32 %s, s2, 6" % S_T0)
g("s_lshl_b32 %s, %s, 4" % (S_T1, S_WAVE))
g("s_add_u32 %s, %s, %s" % (S_T0, S_T0, S_T1))
g("s_add_u32 %s, %s, 0x%x" % (S_T0, S_T0, O_DN))
g("v_mov_b32 %s, %s" % (T[0], S_T0))
lane63()
g("buffer_store_dwordx4 %s, %s, %s, %s offen sc1" % (vr(PK, 4), T[0], SRD_WS, S_WSOFF))
exec_all()
g("s_cmp_lg_u32 %s, 0" % S_IT)
g("s_cbranch_scc1 L_final")

qproj_loads(ACC)
residual_update(8, O_DN)
g("ds_write_b64 %s, %s offset:%d" % (T[0], vr(D, 2), L_X))
stream_piece(SRD_K, V_KOFF, 0, 0)
stream_piece(SRD_K, V_KOFF, 1, 1)
g("s_waitcnt lgkmcnt(0)")
g("s_barrier")
read_x_all(XFb)
layernorm([v(XFb + i) for i in range(8)], XN, T[0], T[1], T[2])
qproj_compute_publish(ACC, XN, PK, S_WSNEXT)
gather_q(S_WSNEXT)
g("s_mov_b32 %s, 1" % S_IT)
g("s_mov_b32 %s, 0x%x" % (S_WSOFF, ITS))
g("s_branch L_main")

g.label("L_final")
g("s_cmp_lg_u32 s2, 0")
g("s_cbranch_scc1 L_exit")
residual_update(8, O_DN)
g("v_cvt_pk_bf16_f32 %s, %s, %s" % (T[2], v(D), v(D + 1)))
g("v_lshrrev_b32 %s, 1, %s" % (T[0], T[0]))
g("buffer_store_dword %s, %s, %s, 0 offen" % (T[2], T[0], SRD_OUT))
g("s_waitcnt vmcnt(0)")
g.label("L_exit")
g("s_endpgm")

body = g.finalize()

ref = open("interleave_layers__gqa_block_cached__glu_gated_reglu__decode.s.ref").read()
head = []
for l in ref.splitlines():
    if l.startswith("; @launch"):
        head.append("; @launch grid=(256,1,1) block=(256,1,1) lds=%d" % LDS_BYTES)
        break
    head.append(l)
out = "\n".join(head) + """
.amdgcn_target "amdgcn-amd-amdhsa--gfx950"
.text
.globl %s
.p2align 8
.type %s,@function
%s:
""" % (NAME, NAME, NAME) + body + """
.section .rodata,"a"
.p2align 6
.amdhsa_kernel %s
  .amdhsa_next_free_vgpr 512
  .amdhsa_next_free_sgpr 102
  .amdhsa_accum_offset 256
  .amdhsa_group_segment_fixed_size 0
  .amdhsa_kernarg_size 96
  .amdhsa_user_sgpr_count 2
  .amdhsa_user_sgpr_kernarg_segment_ptr 1
  .amdhsa_system_sgpr_workgroup_id_x 1
  .amdhsa_float_denorm_mode_32 3
.end_amdhsa_kernel
""" % NAME
path = sys.argv[1] if len(sys.argv) > 1 else "interleave_layers__gqa_block_cached__glu_gated_reglu__decode.s"
open(path, "w").write(out)
print("wrote", path, len(out.splitlines()), "lines")
```

```python
import os
import struct
import sys
from asmlib import Asm

NAME = "interleave_layers__gqa_block_cached__glu_gated_reglu__decode_kernel"
NT = " nt"
DEBUG = len(sys.argv) > 2 and sys.argv[2].startswith("dbg")
VST = len(sys.argv) > 2 and sys.argv[2] == "dbgv"

O_PART, O_ML, O_Y, O_H, O_DN, O_Q = 0x0, 0x80000, 0xA0000, 0xC0000, 0xD0000, 0xF0000
ITS = 0x200000
WS_BYTES = 0x800000
O_DBG = 0x400000

NLDS = 36
L_SCR = 0
L_V = 16384
L_A = L_SCR
L_ML = L_A + 8192
L_B = L_ML + 128
L_X = L_B + 4096
LDS_BYTES = 163840
assert L_X + 2048 <= L_V and L_V + 4 * NLDS * 1024 <= LDS_BYTES

SRD_K, SRD_V, SRD_WS, SRD_WQ, SRD_WO, SRD_WG, SRD_WU, SRD_WD, SRD_X, SRD_OUT, SRD_DBG = [
    "s[%d:%d]" % (i, i + 3) for i in range(8, 52, 4)]
S_WAVE, S_OFF, S_IT, S_WSOFF, S_TMO, S_SELLO, S_SELHI, S_HIM, S_C = [
    "s%d" % i for i in range(52, 61)]
S_R0, S_R1, S_R2, S_R3 = "s61", "s62", "s63", "s64"
S_T0, S_T1, S_T2, S_T3 = "s65", "s66", "s67", "s68"
S_WSNEXT = "s69"
S_WR, S_HR, S_PM, S_UR, S_UH = "s3", "s4", "s5", "s6", "s7"

V_TID, V_LANE, V_KOFF, V_VOFF = "v0", "v1", "v2", "v3"
T = ["v%d" % i for i in range(4, 10)]
V_M, V_L = "v10", "v11"
QOP = 12
Z = 16
PK = 24
PKS = 28
D = 32
ACC = 48
LAND = 80
VC = 144


def v(i):
    return "v%d" % i


def vr(i, n):
    return "v[%d:%d]" % (i, i + n - 1)


def f32bits(x):
    return "0x%08x" % struct.unpack("<I", struct.pack("<f", x))[0]


g = Asm()
_lbl = [0]


def newlabel(p):
    _lbl[0] += 1
    return "L_%s_%d" % (p, _lbl[0])


def dpp(op, dst, s0, s1, ctl, row=0xF, bank=0xF):
    g("v_%s_dpp %s, %s, %s %s row_mask:0x%x bank_mask:0x%x" % (op, dst, s0, s1, ctl, row, bank))


def reduce_row3(regs, op="add_f32"):
    for ctl in ("quad_perm:[1,0,3,2]", "quad_perm:[2,3,0,1]", "row_ror:4", "row_ror:8"):
        for r in regs:
            dpp(op, r, r, r, ctl)
    for r in regs:
        dpp(op, r, r, r, "row_bcast:15", row=0xA)
    for r in regs:
        dpp(op, r, r, r, "row_bcast:31", row=0xC)


def rne1(dst, src):
    g("v_cvt_pk_bf16_f32 %s, %s, %s" % (dst, src, src))
    g("v_lshlrev_b32 %s, 16, %s" % (dst, dst))


def rne2(a, b, tmp):
    g("v_cvt_pk_bf16_f32 %s, %s, %s" % (tmp, a, b))
    g("v_lshlrev_b32 %s, 16, %s" % (a, tmp))
    g("v_and_b32 %s, %s, %s" % (b, S_HIM, tmp))


def umax(tmp, rs):
    rs = list(rs)
    if len(rs) == 1:
        g("v_mov_b32 %s, %s" % (tmp, rs[0]))
        return
    if len(rs) >= 3:
        g("v_max3_u32 %s, %s, %s, %s" % (tmp, rs[0], rs[1], rs[2]))
        rs = rs[3:]
    else:
        g("v_max_u32 %s, %s, %s" % (tmp, rs[0], rs[1]))
        rs = rs[2:]
    while rs:
        if len(rs) >= 2:
            g("v_max3_u32 %s, %s, %s, %s" % (tmp, tmp, rs[0], rs[1]))
            rs = rs[2:]
        else:
            g("v_max_u32 %s, %s, %s" % (tmp, tmp, rs[0]))
            rs = rs[1:]


def timeout_loop(lp):
    g("s_sub_u32 %s, %s, 1" % (S_TMO, S_TMO))
    g("s_cmp_eq_u32 %s, 0" % S_TMO)
    g("s_cbranch_scc0 %s" % lp)
    g("s_mov_b32 %s, 1" % S_TMO)


def poll(issue, regs, tmp, restore=None):
    lp, done = newlabel("poll"), newlabel("pdone")
    g.label(lp)
    issue()
    g("s_waitcnt vmcnt(0)")
    umax(tmp, regs)
    g("v_cmp_eq_u32 vcc, -1, %s" % tmp)
    g("s_cbranch_vccz %s" % done)
    g("s_mov_b64 exec, vcc")
    timeout_loop(lp)
    g.label(done)
    (restore or exec_all)()


def poll_instr(issues, regsets, tmp):
    lp, done = newlabel("poll"), newlabel("pdone")
    g("s_mov_b32 %s, 0x%x" % (S_PM, (1 << len(issues)) - 1))
    g.label(lp)
    for i, iss in enumerate(issues):
        g("s_bitcmp1_b32 %s, %d" % (S_PM, i))
        g("s_cselect_b64 exec, -1, 0")
        iss()
    exec_all()
    g("s_waitcnt vmcnt(0)")
    g("s_mov_b32 %s, 0" % S_PM)
    for i, rs in enumerate(regsets):
        umax(tmp, rs)
        g("v_cmp_eq_u32 vcc, -1, %s" % tmp)
        g("s_cmp_lg_u64 vcc, 0")
        g("s_cselect_b32 %s, %d, 0" % (S_T3, 1 << i))
        g("s_or_b32 %s, %s, %s" % (S_PM, S_PM, S_T3))
    g("s_cmp_eq_u32 %s, 0" % S_PM)
    g("s_cbranch_scc1 %s" % done)
    timeout_loop(lp)
    g.label(done)


def layernorm(X, XN, t0, t1, t2):
    g("v_add_f32 %s, %s, %s" % (t0, X[0], X[1]))
    for i in range(2, 8):
        g("v_add_f32 %s, %s, %s" % (t0, t0, X[i]))
    reduce_row3([t0])
    g("v_readlane_b32 %s, %s, 63" % (S_R0, t0))
    g("v_mov_b32 %s, %s" % (t1, S_R0))
    g("v_mul_f32 %s, %s, %s" % (t1, f32bits(1.0 / 512), t1))
    for i in range(8):
        g("v_sub_f32 %s, %s, %s" % (XN[i], X[i], t1))
    g("v_mul_f32 %s, %s, %s" % (t0, XN[0], XN[0]))
    for i in range(1, 8):
        g("v_fmac_f32 %s, %s, %s" % (t0, XN[i], XN[i]))
    reduce_row3([t0])
    g("v_readlane_b32 %s, %s, 63" % (S_R0, t0))
    g("v_mov_b32 %s, %s" % (t0, S_R0))
    g("v_mul_f32 %s, %s, %s" % (t0, f32bits(1.0 / 512), t0))
    rne1(t1, t1)
    rne1(t0, t0)
    g("v_add_f32 %s, %s, %s" % (t0, f32bits(1e-5), t0))
    rne1(t0, t0)
    g("v_sqrt_f32 %s, %s" % (t0, t0))
    rne1(t0, t0)
    g("v_rcp_f32 %s, %s" % (t2, t0))
    for i in range(0, 8, 2):
        g("v_sub_f32 %s, %s, %s" % (XN[i], X[i], t1))
        g("v_sub_f32 %s, %s, %s" % (XN[i + 1], X[i + 1], t1))
        rne2(XN[i], XN[i + 1], X[i])
        for k in (i, i + 1):
            g("v_mul_f32 %s, %s, %s" % (X[k], XN[k], t2))
            g("v_fma_f32 %s, -%s, %s, %s" % (XN[k], X[k], t0, XN[k]))
            g("v_fma_f32 %s, %s, %s, %s" % (XN[k], XN[k], t2, X[k]))
        rne2(XN[i], XN[i + 1], X[i])


def fma_pairs(acc, wregs, x, t):
    for k, w in enumerate(wregs):
        g("v_lshlrev_b32 %s, 16, %s" % (t, w))
        g("v_fmac_f32 %s, %s, %s" % (acc[2 * k], x, t))
        g("v_and_b32 %s, %s, %s" % (t, S_HIM, w))
        g("v_fmac_f32 %s, %s, %s" % (acc[2 * k + 1], x, t))


def stream_piece(srd, voff, piece, slot):
    base = LAND + 32 * slot
    for half in range(2):
        g("s_mov_b32 %s, 0x%x" % (S_OFF, piece * 8192 + half * 4096))
        for n in range(4):
            r = base + 16 * half + 4 * n
            g("buffer_load_dwordx4 %s, %s, %s, %s offen offset:%d%s" % (vr(r, 4), voff, srd, S_OFF, n * 1024, NT))


def lane63():
    g("s_mov_b32 exec_lo, 0")
    g("s_mov_b32 exec_hi, 0x80000000")


def exec_all():
    g("s_mov_b64 exec, -1")


def qproj_loads(W):
    g("v_lshlrev_b32 %s, 16, %s" % (T[0], V_LANE))
    g("s_lshl_b32 %s, %s, 5" % (S_T0, S_WR))
    g("s_lshl_b32 %s, %s, 3" % (S_T1, S_WAVE))
    g("s_add_u32 %s, %s, %s" % (S_T0, S_T0, S_T1))
    g("v_add_u32 %s, %s, %s" % (T[0], S_T0, T[0]))
    for i in range(8):
        g("s_mov_b32 %s, 0x%x" % (S_OFF, i * 8192))
        g("buffer_load_dwordx2 %s, %s, %s, %s offen" % (vr(W + 2 * i, 2), T[0], SRD_WQ, S_OFF))


def qproj_compute_publish(W, XN, A, soff):
    acc = [v(A + i) for i in range(4)]
    for a in acc:
        g("v_mov_b32 %s, 0" % a)
    for i in range(8):
        fma_pairs(acc, [v(W + 2 * i), v(W + 2 * i + 1)], XN[i], T[1])
    reduce_row3(acc)
    rne2(acc[0], acc[1], T[1])
    rne2(acc[2], acc[3], T[1])
    g("s_add_u32 %s, %s, 0x%x" % (S_T0, S_UR, O_Q))
    g("v_mov_b32 %s, %s" % (T[1], S_T0))
    lane63()
    g("buffer_store_dwordx4 %s, %s, %s, %s offen sc1" % (vr(A, 4), T[1], SRD_WS, soff))
    exec_all()


def gather_q_addr():
    g("v_and_b32 %s, 3, %s" % (T[0], V_LANE))
    g("v_lshlrev_b32 %s, 12, %s" % (T[0], T[0]))
    g("v_lshrrev_b32 %s, 4, %s" % (T[1], V_LANE))
    g("v_lshlrev_b32 %s, 10, %s" % (T[1], T[1]))
    g("v_add_u32 %s, %s, %s" % (T[0], T[0], T[1]))
    g("v_bfe_u32 %s, %s, 2, 2" % (T[1], V_LANE))
    g("v_lshlrev_b32 %s, 8, %s" % (T[1], T[1]))
    g("v_add_u32 %s, %s, %s" % (T[0], T[0], T[1]))
    g("s_lshr_b32 %s, s2, 5" % S_T0)
    g("s_lshl_b32 %s, %s, 14" % (S_T0, S_T0))
    g("s_add_u32 %s, %s, 0x%x" % (S_T0, S_T0, O_Q))
    g("v_add_u32 %s, %s, %s" % (T[0], S_T0, T[0]))


def gather_q(soff):
    gather_q_addr()

    def issue():
        g("buffer_load_dwordx4 %s, %s, %s, %s offen sc1" % (vr(D, 4), T[0], SRD_WS, soff))
        g("buffer_load_dwordx4 %s, %s, %s, %s offen offset:128 sc1" % (vr(D + 4, 4), T[0], SRD_WS, soff))
    poll(issue, [v(D + i) for i in range(8)], T[1])
    for p in range(4):
        g("v_cvt_pk_bf16_f32 %s, %s, %s" % (v(QOP + p), v(D + 2 * p), v(D + 2 * p + 1)))


def vop_loc(o):
    if o < 64:
        return ("a", 4 * o)
    if o < 64 + NLDS:
        return ("l", (o - 64) * 1024)
    return ("v", VC + 4 * (o - 64 - NLDS))


def stamp(k):
    if not DEBUG:
        return
    g("s_memrealtime s[100:101]")
    g("s_waitcnt lgkmcnt(0)")
    g("s_mov_b32 s%d, s100" % (70 + k))


def stamp_shift():
    if not DEBUG or VST:
        return
    for k in range(12):
        g("s_mov_b32 s%d, s%d" % (87 + k, 75 + k))


def stamp_dump():
    if not DEBUG:
        return
    g("s_lshl_b32 s100, s2, 2")
    g("s_add_u32 s100, s100, %s" % S_WAVE)
    g("s_lshl_b32 s100, s100, 8")
    g("s_add_u32 s100, s100, 0x%x" % O_DBG)
    g("s_mov_b64 exec, 1")
    g("v_mov_b32 v255, s100")
    for k in range(29):
        g("v_mov_b32 v254, s%d" % (70 + k))
        g("buffer_store_dword v254, v255, %s, 0 offen offset:%d" % (SRD_WS, 4 * k))
        g("s_waitcnt vmcnt(0)")
    g("s_mov_b64 exec, -1")


g("s_load_dwordx16 s[64:79], s[0:1], 0")
g("s_load_dwordx8 s[80:87], s[0:1], 64")
g("v_and_b32 %s, 63, %s" % (V_LANE, V_TID))
g("v_lshrrev_b32 %s, 6, %s" % (T[0], V_TID))
g("v_readfirstlane_b32 %s, %s" % (S_WAVE, T[0]))
g("s_cmp_ge_u32 s2, 256")
g("s_cbranch_scc1 L_exit")
g("s_waitcnt lgkmcnt(0)")


def mk_srd(srd, plo, nbytes):
    b = int(srd[2:].split(":")[0])
    g("s_mov_b32 s%d, s%d" % (b, plo))
    g("s_and_b32 s%d, s%d, 0xffff" % (b + 1, plo + 1))
    g("s_mov_b32 s%d, 0x%x" % (b + 2, nbytes))
    g("s_mov_b32 s%d, 0x00020000" % (b + 3))


mk_srd(SRD_X, 64, 1024)
mk_srd(SRD_K, 66, 0x8000000)
mk_srd(SRD_V, 68, 0x8000000)
mk_srd(SRD_WQ, 70, 512 * 4096 * 2)
mk_srd(SRD_WO, 72, 4096 * 512 * 2)
mk_srd(SRD_WG, 76, 512 * 1792 * 2)
mk_srd(SRD_WU, 78, 512 * 1792 * 2)
mk_srd(SRD_WD, 80, 1792 * 512 * 2)
mk_srd(SRD_OUT, 82, 1024)
mk_srd(SRD_DBG, 84, 256)
mk_srd(SRD_WS, 86, WS_BYTES)
g("s_mov_b32 %s, 0" % S_IT)
stamp(0)
g("s_mov_b32 %s, 0" % S_WSOFF)
g("s_and_b32 %s, s2, 7" % S_T0)
g("s_lshr_b32 %s, s2, 3" % S_T1)
g("s_lshl_b32 %s, %s, 5" % (S_WR, S_T0))
g("s_add_u32 %s, %s, %s" % (S_WR, S_WR, S_T1))
g("s_mul_i32 %s, %s, 28" % (S_HR, S_T0))
g("s_add_u32 %s, %s, %s" % (S_HR, S_HR, S_T1))
g("s_lshl_b32 %s, %s, 2" % (S_UR, S_WR))
g("s_add_u32 %s, %s, %s" % (S_UR, S_UR, S_WAVE))
g("s_lshl_b32 %s, %s, 7" % (S_UR, S_UR))
g("s_lshl_b32 %s, %s, 1" % (S_UH, S_HR))
g("s_add_u32 %s, %s, %s" % (S_UH, S_UH, S_WAVE))
g("s_lshl_b32 %s, %s, 7" % (S_UH, S_UH))
g("s_mov_b32 %s, 0x%x" % (S_WSNEXT, ITS))
g("s_mov_b32 %s, 400000" % S_TMO)
g("s_mov_b32 %s, 0x05040100" % S_SELLO)
g("s_mov_b32 %s, 0x07060302" % S_SELHI)
g("s_mov_b32 %s, 0xffff0000" % S_HIM)
g("s_mov_b32 %s, %s" % (S_C, f32bits(128 ** -0.5 * 1.4426950408889634)))
g("s_lshl_b32 %s, s2, 19" % S_T0)
g("s_lshl_b32 %s, %s, 17" % (S_T1, S_WAVE))
g("s_add_u32 %s, %s, %s" % (S_T0, S_T0, S_T1))
g("v_bfe_u32 %s, %s, 2, 2" % (T[0], V_LANE))
g("v_lshlrev_b32 %s, 8, %s" % (T[0], T[0]))
g("v_lshrrev_b32 %s, 4, %s" % (T[1], V_LANE))
g("v_lshlrev_b32 %s, 6, %s" % (T[1], T[1]))
g("v_and_b32 %s, 3, %s" % (T[2], V_LANE))
g("v_lshlrev_b32 %s, 4, %s" % (T[2], T[2]))
g("v_add3_u32 %s, %s, %s, %s" % (V_KOFF, T[0], T[1], T[2]))
g("v_add_u32 %s, %s, %s" % (V_KOFF, S_T0, V_KOFF))
g("v_lshlrev_b32 %s, 4, %s" % (V_VOFF, V_LANE))
g("v_add_u32 %s, %s, %s" % (V_VOFF, S_T0, V_VOFF))

g("v_mov_b32 %s, -1" % T[4])
g("v_mov_b32 %s, -1" % T[5])
g("v_lshlrev_b32 %s, 3, %s" % (T[0], V_TID))
g("s_lshl_b32 %s, s2, 11" % S_T0)
g("v_add_u32 %s, %s, %s" % (T[0], S_T0, T[0]))
g("buffer_store_dwordx2 %s, %s, %s, 0 offen sc1" % (vr(8, 2), T[0], SRD_WS))
g("buffer_store_dwordx2 %s, %s, %s, %s offen sc1" % (vr(8, 2), T[0], SRD_WS, S_WSNEXT))
g("v_lshlrev_b32 %s, 3, %s" % (T[1], V_LANE))


def clear_small(nl, sbase_code):
    sbase_code()
    g("v_add_u32 %s, %s, %s" % (T[0], S_T0, T[1]))
    g("s_mov_b64 exec, 0x%x" % ((1 << nl) - 1))
    g("buffer_store_dwordx2 %s, %s, %s, 0 offen sc1" % (vr(8, 2), T[0], SRD_WS))
    g("buffer_store_dwordx2 %s, %s, %s, %s offen sc1" % (vr(8, 2), T[0], SRD_WS, S_WSNEXT))
    exec_all()


def _ml():
    g("s_lshl_b32 %s, s2, 2" % S_T0)
    g("s_add_u32 %s, %s, %s" % (S_T0, S_T0, S_WAVE))
    g("s_lshl_b32 %s, %s, 7" % (S_T0, S_T0))
    g("s_add_u32 %s, %s, 0x%x" % (S_T0, S_T0, O_ML))


clear_small(1, _ml)
clear_small(4, lambda: g("s_add_u32 %s, %s, 0x%x" % (S_T0, S_UR, O_Y)))
clear_small(2, lambda: g("s_add_u32 %s, %s, 0x%x" % (S_T0, S_UR, O_DN)))
clear_small(2, lambda: g("s_add_u32 %s, %s, 0x%x" % (S_T0, S_UR, O_Q)))
g("s_cmp_ge_u32 s2, 224")
g("s_cbranch_scc1 L_noclear")
g("s_cmp_ge_u32 %s, 2" % S_WAVE)
g("s_cbranch_scc1 L_noclear")
clear_small(2, lambda: g("s_add_u32 %s, %s, 0x%x" % (S_T0, S_UH, O_H)))
g.label("L_noclear")

XR = ACC + 16
XF = [v(ACC + 20 + i) for i in range(8)]
XN = [v(Z + i) for i in range(8)]
DUM = ACC + 28
CNT = ACC + 16
QG = ACC
ops = []


def note(tag, n):
    ops.extend([tag] * n)


def wait_for(tag):
    last = max(i for i, t in enumerate(ops) if t == tag)
    g("s_waitcnt vmcnt(%d)" % (len(ops) - 1 - last))


def exec56():
    g("s_mov_b32 exec_lo, -1")
    g("s_mov_b32 exec_hi, 0x00ffffff")


def warm(which):
    g("s_and_b32 %s, s2, 7" % S_T0)
    g("s_lshr_b32 %s, s2, 3" % S_T1)
    if which == "wq":
        g("s_lshl_b32 %s, %s, 10" % (S_T0, S_T0))
        g("s_lshl_b32 %s, %s, 17" % (S_T1, S_T1))
        g("s_add_u32 %s, %s, %s" % (S_T0, S_T0, S_T1))
        g("s_lshl_b32 %s, %s, 15" % (S_T1, S_WAVE))
        g("s_add_u32 %s, %s, %s" % (S_T0, S_T0, S_T1))
        for i in range(4):
            g("s_add_u32 %s, %s, 0x%x" % (S_OFF, S_T0, i * 8192))
            g("buffer_load_dwordx4 %s, %s, %s, %s offen" % (vr(DUM, 4), T[3], SRD_WQ, S_OFF))
        note("warm", 4)
    elif which == "wo":
        g("s_lshl_b32 %s, %s, 19" % (S_T0, S_T0))
        g("s_lshl_b32 %s, %s, 14" % (S_T1, S_T1))
        g("s_add_u32 %s, %s, %s" % (S_T0, S_T0, S_T1))
        g("s_lshl_b32 %s, %s, 12" % (S_T1, S_WAVE))
        g("s_add_u32 %s, %s, %s" % (S_T0, S_T0, S_T1))
        for i in range(4):
            g("buffer_load_dwordx4 %s, %s, %s, %s offen offset:%d" % (vr(DUM, 4), T[3], SRD_WO, S_T0, i * 1024))
        note("warm", 4)
    elif which == "wd":
        g("s_mul_i32 %s, %s, 229376" % (S_T0, S_T0))
        g("s_mul_i32 %s, %s, 7168" % (S_T1, S_T1))
        g("s_add_u32 %s, %s, %s" % (S_T0, S_T0, S_T1))
        g("s_mul_i32 %s, %s, 1792" % (S_T1, S_WAVE))
        g("s_add_u32 %s, %s, %s" % (S_T0, S_T0, S_T1))
        exec56()
        for i in range(2):
            g("buffer_load_dwordx4 %s, %s, %s, %s offen offset:%d" % (vr(DUM, 4), T[3], SRD_WD, S_T0, i * 896))
        exec_all()
        note("warm", 2)
    elif which == "gu":
        g("s_mul_i32 %s, %s, 448" % (S_T0, S_T0))
        g("s_mul_i32 %s, %s, %d" % (S_T1, S_T1, 16 * 3584))
        g("s_add_u32 %s, %s, %s" % (S_T0, S_T0, S_T1))
        g("s_mul_i32 %s, %s, %d" % (S_T1, S_WAVE, 4 * 3584))
        g("s_add_u32 %s, %s, %s" % (S_T0, S_T0, S_T1))
        g("v_cmp_le_u32 vcc, 28, %s" % V_LANE)
        g("v_mov_b32 %s, %d" % (T[2], 3584 - 448))
        g("v_cndmask_b32 %s, 0, %s, vcc" % (T[2], T[2]))
        g("v_add_u32 %s, %s, %s" % (T[2], T[2], T[3]))
        exec56()
        for i in range(2):
            g("s_add_u32 %s, %s, %d" % (S_OFF, S_T0, i * 2 * 3584))
            g("buffer_load_dwordx4 %s, %s, %s, %s offen" % (vr(DUM, 4), T[2], SRD_WG, S_OFF))
            g("buffer_load_dwordx4 %s, %s, %s, %s offen" % (vr(DUM, 4), T[2], SRD_WU, S_OFF))
        exec_all()
        note("warm", 4)


stream_piece(SRD_V, V_VOFF, 0, 0)
note("p0", 8)
stream_piece(SRD_V, V_VOFF, 1, 1)
note("p1", 8)
g("v_lshlrev_b32 %s, 4, %s" % (T[3], V_LANE))
g("buffer_load_dwordx4 %s, %s, %s, 0 offen" % (vr(XR, 4), T[3], SRD_X))
note("x", 1)
stamp(1)

g("v_lshlrev_b32 %s, 4, %s" % (T[5], V_LANE))
g("s_mul_i32 %s, %s, %d" % (S_T0, S_WAVE, NLDS * 1024))
g("s_add_u32 %s, %s, %d" % (S_T0, S_T0, L_V))
g("v_add_u32 %s, %s, %s" % (T[5], S_T0, T[5]))
V_LDSV = T[5]
U_WQ, U_Q, U_ARR = 0, 3, 1
WARM = os.environ.get('WARM', '0') == '1'
for u in range(16):
    slot = u % 2
    R = LAND + 32 * slot
    wait_for("p%d" % u)
    if VST and u < 12:
        stamp(17 + u)
    for s in range(8):
        w_, b = s // 2, s % 2
        kind, loc = vop_loc(8 * u + s)
        sel = S_SELHI if b else S_SELLO
        tmpb = D + 4 * (s % 4)
        for p in range(4):
            dst = v(loc + p) if kind == "v" else v(tmpb + p)
            g("v_perm_b32 %s, %s, %s, %s" % (dst, v(R + 4 * (2 * p + 1) + w_), v(R + 4 * (2 * p) + w_), sel))
        if kind == "a":
            for p in range(4):
                g("v_accvgpr_write_b32 a%d, %s" % (loc + p, v(tmpb + p)))
        elif kind == "l":
            g("ds_write_b128 %s, %s offset:%d" % (V_LDSV, vr(tmpb, 4), loc))
            if s % 4 == 3:
                g("s_waitcnt lgkmcnt(0)")
    if u + 2 < 16:
        stream_piece(SRD_V, V_VOFF, u + 2, slot)
    else:
        stream_piece(SRD_K, V_KOFF, u + 2 - 16, slot)
    note("p%d" % (u + 2), 8)
    if WARM and u in (6, 8, 10):
        g("v_lshlrev_b32 %s, 4, %s" % (T[3], V_LANE))
        warm({6: "wo", 8: "gu", 10: "wd"}[u])
    if u == U_WQ:
        import os
        XV = os.environ.get("XV", "")
        if XV == "2":
            g("v_lshlrev_b32 %s, 7, %s" % (T[0], V_LANE))
            g("s_and_b32 %s, %s, 63" % (S_T0, S_WR))
            g("s_lshl_b32 %s, %s, 16" % (S_T0, S_T0))
            g("v_add_u32 %s, %s, %s" % (T[0], S_T0, T[0]))
            for i in range(8):
                g("s_mov_b32 %s, 0x%x" % (S_OFF, i * 8192))
                g("buffer_load_dwordx2 %s, %s, %s, %s offen" % (vr(ACC + 2 * i, 2), T[0], SRD_WQ, S_OFF))
        elif XV == "4":
            g("s_mov_b32 %s, 0x%x" % (S_T0, 65536 + 128))
            g("v_mul_lo_u32 %s, %s, %s" % (T[0], S_T0, V_LANE))
            for i in range(8):
                g("s_mov_b32 %s, 0x%x" % (S_OFF, i * 8192))
                g("buffer_load_dwordx2 %s, %s, %s, %s offen" % (vr(ACC + 2 * i, 2), T[0], SRD_WQ, S_OFF))
        elif XV == "0":
            g("v_lshlrev_b32 %s, 3, %s" % (T[0], V_LANE))
            for i in range(8):
                g("s_mov_b32 %s, 0x%x" % (S_OFF, i * 8192))
                g("buffer_load_dwordx2 %s, %s, %s, %s offen" % (vr(ACC + 2 * i, 2), T[0], SRD_WQ, S_OFF))
        else:
            qproj_loads(ACC)
        note("wq", 8)
    if u == U_Q:
        g.comment("x, wq have landed (older than the piece just waited for): LN, q projection, publish q1 slice")
        assert ops.index("p%d" % u) > max(i for i, t in enumerate(ops) if t == "wq")
        for i in range(4):
            g("v_lshlrev_b32 %s, 16, %s" % (XF[2 * i], v(XR + i)))
            g("v_and_b32 %s, %s, %s" % (XF[2 * i + 1], S_HIM, v(XR + i)))
        g("s_cmp_lg_u32 %s, 0" % S_WAVE)
        g("s_cbranch_scc1 L_nox")
        g("v_lshlrev_b32 %s, 5, %s" % (T[2], V_LANE))
        g("ds_write_b128 %s, %s offset:%d" % (T[2], vr(ACC + 20, 4), L_X))
        g("ds_write_b128 %s, %s offset:%d" % (T[2], vr(ACC + 24, 4), L_X + 16))
        g("s_waitcnt lgkmcnt(0)")
        g.label("L_nox")
        layernorm(XF, XN, T[2], T[3], T[4])
        qproj_compute_publish(ACC, XN, PK, "0")
        note("q1", 1)
    if u == U_ARR:
        g.comment("clears and the q1 store are complete (older than the piece just waited for): arrive")
        g("s_barrier")
        g("s_cmp_lg_u32 %s, 0" % S_WAVE)
        g("s_cbranch_scc1 L_noarr")
        g("v_mov_b32 %s, 0" % T[0])
        g("v_mov_b32 %s, 1" % T[1])
        g("s_mov_b64 exec, 1")
        g("buffer_atomic_add %s, %s, %s, 0 offen sc1" % (T[1], T[0], SRD_DBG))
        exec_all()
        g.label("L_noarr")
    if u == 13:
        g("v_mov_b32 %s, 0" % T[0])
        g("buffer_load_dword %s, %s, %s, 0 offen sc1" % (v(CNT), T[0], SRD_DBG))
        note("cnt", 1)
    if u == 14:
        stamp(2)
        lp, done = newlabel("cnt"), newlabel("cdone")
        wait_for("cnt")
        g("v_mov_b32 %s, 0" % T[0])
        g.label(lp)
        g("v_readfirstlane_b32 %s, %s" % (S_T0, v(CNT)))
        g("s_cmp_ge_u32 %s, 256" % S_T0)
        g("s_cbranch_scc1 %s" % done)
        g("buffer_load_dword %s, %s, %s, 0 offen sc1" % (v(CNT), T[0], SRD_DBG))
        g("s_waitcnt vmcnt(0)")
        timeout_loop(lp)
        g.label(done)
        gather_q_addr()
        g("buffer_load_dwordx4 %s, %s, %s, 0 offen sc1" % (vr(QG, 4), T[0], SRD_WS))
        g("buffer_load_dwordx4 %s, %s, %s, 0 offen offset:128 sc1" % (vr(QG + 4, 4), T[0], SRD_WS))
        note("qg", 2)
        stamp(3)
wait_for("qg")
umax(T[1], [v(QG + i) for i in range(8)])
g("v_cmp_eq_u32 vcc, -1, %s" % T[1])
for p in range(4):
    g("v_cvt_pk_bf16_f32 %s, %s, %s" % (v(QOP + p), v(QG + 2 * p), v(QG + 2 * p + 1)))
g("s_cbranch_vccz L_q1ok")
gather_q("0")
g.label("L_q1ok")
g("s_waitcnt lgkmcnt(0)")

stamp(4)
WW = LAND
DW = LAND + 16
GML = LAND + 24
GW = LAND + 32
QW = ACC + 16
GO = ACC


def wo_dw_loads():
    g("s_lshr_b32 %s, %s, 4" % (S_T0, S_WR))
    g("s_lshl_b32 %s, %s, 18" % (S_T0, S_T0))
    g("s_and_b32 %s, %s, 15" % (S_T1, S_WR))
    g("s_lshl_b32 %s, %s, 6" % (S_T1, S_T1))
    g("s_add_u32 %s, %s, %s" % (S_T0, S_T0, S_T1))
    g("s_lshl_b32 %s, %s, 4" % (S_T1, S_WAVE))
    g("s_add_u32 %s, %s, %s" % (S_T0, S_T0, S_T1))
    g("v_lshlrev_b32 %s, 12, %s" % (T[1], V_LANE))
    for i in range(4):
        g("buffer_load_dwordx4 %s, %s, %s, %s offen offset:%d" % (vr(WW + 4 * i, 4), T[1], SRD_WO, S_T0, i * 1024))
    g("s_lshr_b32 %s, %s, 5" % (S_T0, S_WR))
    g("s_mul_i32 %s, %s, %d" % (S_T0, S_T0, 224 * 1024))
    g("s_and_b32 %s, %s, 31" % (S_T1, S_WR))
    g("s_lshl_b32 %s, %s, 5" % (S_T1, S_T1))
    g("s_add_u32 %s, %s, %s" % (S_T0, S_T0, S_T1))
    g("s_lshl_b32 %s, %s, 3" % (S_T1, S_WAVE))
    g("s_add_u32 %s, %s, %s" % (S_T0, S_T0, S_T1))
    exec56()
    for i in range(4):
        g("buffer_load_dwordx2 %s, %s, %s, %s offen offset:%d" % (vr(DW + 2 * i, 2), T[1], SRD_WD, S_T0, i * 1024))
    exec_all()


g.label("L_main")
for s in range(8):
    for r in range(4):
        g("v_mov_b32 %s, 0" % v(ACC + 4 * s + r))
g("v_mov_b32 %s, 0" % V_L)
for ch in range(4):
    for pn in range(4):
        i = 4 * ch + pn
        slot = i % 2
        R = LAND + 32 * slot
        g("s_waitcnt vmcnt(8)")

        def qk_mfma(n):
            g("v_mfma_f32_16x16x32_bf16 %s, %s, %s, 0" % (vr(D + 4 * (n % 4), 4), vr(R + 4 * n, 4), vr(QOP, 4)))

        def qk_red(n):
            db = D + 4 * (n % 4)
            others = [t for t in range(4) if t != pn]
            first = True
            for k, t in enumerate(others):
                rot = (16 - 4 * (t - pn)) % 16
                src1 = v(db + pn) if first else T[0]
                last = k == 2
                dst = v(Z + n) if last else T[0]
                dpp("add_f32", dst, v(db + t), src1, "row_ror:%d" % rot, bank=(1 << pn) if last else 0xF)
                first = False
        for n in range(4):
            qk_mfma(n)
        for n in range(4):
            qk_red(n)
            qk_mfma(n + 4)
        if i + 2 < 16:
            stream_piece(SRD_K, V_KOFF, i + 2, slot)
        elif i == 14:
            wo_dw_loads()
        for n in range(4, 8):
            qk_red(n)
    if ch == 3:
        stamp(5)
    g.comment("softmax for chunk %d" % ch)
    g("v_max3_f32 %s, %s, %s, %s" % (T[0], v(Z), v(Z + 1), v(Z + 2)))
    g("v_max3_f32 %s, %s, %s, %s" % (T[0], T[0], v(Z + 3), v(Z + 4)))
    g("v_max3_f32 %s, %s, %s, %s" % (T[0], T[0], v(Z + 5), v(Z + 6)))
    g("v_max_f32 %s, %s, %s" % (T[0], T[0], v(Z + 7)))
    dpp("max_f32", T[0], T[0], T[0], "row_ror:4")
    dpp("max_f32", T[0], T[0], T[0], "row_ror:8")
    for sw in ("16", "32"):
        g("v_mov_b32 %s, %s" % (T[1], T[0]))
        g("v_permlane%s_swap_b32 %s, %s" % (sw, T[0], T[1]))
        g("v_max_f32 %s, %s, %s" % (T[0], T[0], T[1]))
    if ch == 0:
        g("v_mov_b32 %s, %s" % (V_M, T[0]))
    else:
        g("v_max_f32 %s, %s, %s" % (T[0], T[0], V_M))
        g("v_sub_f32 %s, %s, %s" % (T[1], V_M, T[0]))
        g("v_mul_f32 %s, %s, %s" % (T[1], S_C, T[1]))
        g("v_exp_f32 %s, %s" % (T[1], T[1]))
        g("v_mov_b32 %s, %s" % (V_M, T[0]))
        g("v_mul_f32 %s, %s, %s" % (V_L, V_L, T[1]))
        for r, sr in enumerate((S_R0, S_R1, S_R2, S_R3)):
            g("v_readlane_b32 %s, %s, %d" % (sr, T[1], r))
        for s in range(8):
            for r, sr in enumerate((S_R0, S_R1, S_R2, S_R3)):
                g("v_mul_f32 %s, %s, %s" % (v(ACC + 4 * s + r), sr, v(ACC + 4 * s + r)))
    g("v_mul_f32 %s, %s, %s" % (T[1], S_C, V_M))
    for a in range(8):
        g("v_fma_f32 %s, %s, %s, -%s" % (v(Z + a), v(Z + a), S_C, T[1]))
    for a in range(8):
        g("v_exp_f32 %s, %s" % (v(Z + a), v(Z + a)))
    for a in range(8):
        g("v_add_f32 %s, %s, %s" % (V_L, V_L, v(Z + a)))
    for p in range(4):
        g("v_cvt_pk_bf16_f32 %s, %s, %s" % (v(PK + p), v(Z + 2 * p), v(Z + 2 * p + 1)))
    g.comment("PV for chunk %d" % ch)
    ops = [(pn, s) for pn in range(4) for s in range(8)]
    ldsq = [k for k, (pn, s) in enumerate(ops) if vop_loc(32 * ch + k)[0] == "l"]
    issued = 0

    def issue_lds(k):
        slotr = D + 4 * (ldsq.index(k) % 4)
        g("ds_read_b128 %s, %s offset:%d" % (vr(slotr, 4), V_LDSV, vop_loc(32 * ch + k)[1]))
    for k in ldsq[:4]:
        issue_lds(k)
        issued += 1
    for k, (pn, s) in enumerate(ops):
        if s == 0 and pn > 0:
            for p in range(4):
                g("v_mov_b32_dpp %s, %s row_shl:%d row_mask:0xf bank_mask:0xf" % (v(PKS + p), v(PK + p), 4 * pn))
        A = vr(PK if pn == 0 else PKS, 4)
        kind, loc = vop_loc(32 * ch + k)
        if kind == "a":
            B = "a[%d:%d]" % (loc, loc + 3)
        elif kind == "v":
            B = vr(loc, 4)
        else:
            idx = ldsq.index(k)
            B = vr(D + 4 * (idx % 4), 4)
            g("s_waitcnt lgkmcnt(%d)" % (issued - idx - 1))
        g("v_mfma_f32_16x16x32_bf16 %s, %s, %s, %s" % (vr(ACC + 4 * s, 4), A, B, vr(ACC + 4 * s, 4)))
        if kind == "l" and issued < len(ldsq):
            issue_lds(ldsq[issued])
            issued += 1

stamp(6)
dpp("add_f32", V_L, V_L, V_L, "row_ror:4")
dpp("add_f32", V_L, V_L, V_L, "row_ror:8")
for sw in ("16", "32"):
    g("v_mov_b32 %s, %s" % (T[1], V_L))
    g("v_permlane%s_swap_b32 %s, %s" % (sw, V_L, T[1]))
    g("v_add_f32 %s, %s, %s" % (V_L, V_L, T[1]))
g("s_lshl_b32 %s, %s, 11" % (S_T0, S_WAVE))
g("v_lshlrev_b32 %s, 4, %s" % (T[0], V_LANE))
g("v_add_u32 %s, %s, %s" % (T[0], S_T0, T[0]))
g("s_lshl_b32 %s, %s, 5" % (S_T0, S_WAVE))
g("v_lshlrev_b32 %s, 3, %s" % (T[1], V_LANE))
g("v_add_u32 %s, %s, %s" % (T[1], S_T0, T[1]))
g("s_mov_b64 exec, 0xffff")
for s in range(8):
    g("ds_write_b128 %s, %s offset:%d" % (T[0], vr(ACC + 4 * s, 4), L_A + 256 * s))
g("s_mov_b64 exec, 0xf")
g("ds_write_b64 %s, %s offset:%d" % (T[1], vr(10, 2), L_ML))
exec_all()
g("s_waitcnt lgkmcnt(0)")
g("s_barrier")
g("v_and_b32 %s, 3, %s" % (T[0], V_LANE))
g("v_lshlrev_b32 %s, 9, %s" % (T[0], T[0]))
g("v_lshrrev_b32 %s, 2, %s" % (T[1], V_LANE))
g("v_lshlrev_b32 %s, 4, %s" % (T[1], T[1]))
g("v_add_u32 %s, %s, %s" % (T[0], T[0], T[1]))
g("s_lshl_b32 %s, %s, 2" % (S_T0, S_WAVE))
g("v_add_u32 %s, %s, %s" % (T[0], S_T0, T[0]))
g("s_lshl_b32 %s, %s, 3" % (S_T0, S_WAVE))
g("v_mov_b32 %s, %s" % (T[1], S_T0))
for vv in range(4):
    g("ds_read_b32 %s, %s offset:%d" % (v(D + 2 * vv), T[0], L_A + 2048 * vv))
    g("ds_read_b32 %s, %s offset:%d" % (v(D + 2 * vv + 1), T[0], L_A + 2048 * vv + 256))
    g("ds_read_b64 %s, %s offset:%d" % (vr(Z + 2 * vv, 2), T[1], L_ML + 32 * vv))
g("s_waitcnt lgkmcnt(0)")
g("v_max3_f32 %s, %s, %s, %s" % (T[2], v(Z), v(Z + 2), v(Z + 4)))
g("v_max_f32 %s, %s, %s" % (T[2], T[2], v(Z + 6)))
for vv in range(4):
    g("v_sub_f32 %s, %s, %s" % (v(Z + 2 * vv), v(Z + 2 * vv), T[2]))
    g("v_mul_f32 %s, %s, %s" % (v(Z + 2 * vv), S_C, v(Z + 2 * vv)))
    g("v_exp_f32 %s, %s" % (v(Z + 2 * vv), v(Z + 2 * vv)))
g("v_mul_f32 %s, %s, %s" % (v(PK), v(Z), v(D)))
g("v_mul_f32 %s, %s, %s" % (v(PK + 1), v(Z), v(D + 1)))
g("v_mul_f32 %s, %s, %s" % (T[3], v(Z), v(Z + 1)))
for vv in range(1, 4):
    g("v_fmac_f32 %s, %s, %s" % (v(PK), v(Z + 2 * vv), v(D + 2 * vv)))
    g("v_fmac_f32 %s, %s, %s" % (v(PK + 1), v(Z + 2 * vv), v(D + 2 * vv + 1)))
    g("v_fmac_f32 %s, %s, %s" % (T[3], v(Z + 2 * vv), v(Z + 2 * vv + 1)))
g("v_lshlrev_b32 %s, 3, %s" % (T[0], V_TID))
g("s_lshl_b32 %s, s2, 11" % S_T0)
g("v_add_u32 %s, %s, %s" % (T[0], S_T0, T[0]))
g("buffer_store_dwordx2 %s, %s, %s, %s offen sc1" % (vr(PK, 2), T[0], SRD_WS, S_WSOFF))
_ml()
g("v_mov_b32 %s, %s" % (T[1], S_T0))
g("s_mov_b64 exec, 1")
g("buffer_store_dwordx2 %s, %s, %s, %s offen sc1" % (vr(6, 2), T[1], SRD_WS, S_WSOFF))
exec_all()
g("s_cmp_ge_u32 s2, 224")
g("s_cbranch_scc1 L_nogw")
g("s_cmp_ge_u32 %s, 2" % S_WAVE)
g("s_cbranch_scc1 L_nogw")
g("s_mov_b32 %s, %d" % (S_T0, 8 * 3584))
g("v_mul_lo_u32 %s, %s, %s" % (T[2], S_T0, V_LANE))
g("s_lshl_b32 %s, %s, 4" % (S_T0, S_HR))
g("s_lshl_b32 %s, %s, 3" % (S_T1, S_WAVE))
g("s_add_u32 %s, %s, %s" % (S_T0, S_T0, S_T1))
g("v_add_u32 %s, %s, %s" % (T[2], S_T0, T[2]))
for i in range(8):
    g("s_mov_b32 %s, %d" % (S_OFF, i * 3584))
    g("buffer_load_dwordx2 %s, %s, %s, %s offen" % (vr(GW + 2 * i, 2), T[2], SRD_WG, S_OFF))
    g("buffer_load_dwordx2 %s, %s, %s, %s offen" % (vr(GW + 16 + 2 * i, 2), T[2], SRD_WU, S_OFF))
g.label("L_nogw")

stamp(7)
g("s_lshr_b32 %s, %s, 5" % (S_T0, S_WR))
g("s_lshl_b32 %s, %s, 16" % (S_T0, S_T0))
g("s_lshl_b32 %s, %s, 14" % (S_T1, S_WAVE))
g("s_add_u32 %s, %s, %s" % (S_T0, S_T0, S_T1))
g("s_bfe_u32 %s, %s, 0x10004" % (S_T1, S_WR))
g("s_lshl_b32 %s, %s, 10" % (S_T1, S_T1))
g("s_add_u32 %s, %s, %s" % (S_T0, S_T0, S_T1))
g("v_lshlrev_b32 %s, 4, %s" % (T[0], V_LANE))
g("v_add_u32 %s, %s, %s" % (T[0], S_T0, T[0]))
g("s_lshr_b32 %s, %s, 5" % (S_T0, S_WR))
g("s_lshl_b32 %s, %s, 14" % (S_T0, S_T0))
g("s_bfe_u32 %s, %s, 0x10004" % (S_T1, S_WR))
g("s_lshl_b32 %s, %s, 8" % (S_T1, S_T1))
g("s_add_u32 %s, %s, %s" % (S_T0, S_T0, S_T1))
g("s_add_u32 %s, %s, 0x%x" % (S_T0, S_T0, O_ML))
g("v_and_b32 %s, 31, %s" % (T[1], V_LANE))
g("v_lshlrev_b32 %s, 9, %s" % (T[1], T[1]))
g("v_lshrrev_b32 %s, 5, %s" % (T[2], V_LANE))
g("v_lshlrev_b32 %s, 7, %s" % (T[2], T[2]))
g("v_add3_u32 %s, %s, %s, %s" % (T[1], T[1], T[2], S_T0))


def e1_issue(i):
    def f():
        if i < 8:
            g("s_add_u32 %s, %s, 0x%x" % (S_OFF, S_WSOFF, i * 2048))
            g("buffer_load_dwordx4 %s, %s, %s, %s offen sc1" % (vr(GO + 4 * i, 4), T[0], SRD_WS, S_OFF))
        else:
            g("buffer_load_dwordx2 %s, %s, %s, %s offen sc1" % (vr(GML, 2), T[1], SRD_WS, S_WSOFF))
    return f


poll_instr([e1_issue(i) for i in range(9)],
           [[v(GO + 4 * i + e) for e in range(4)] for i in range(8)] + [[v(GML), v(GML + 1)]], T[2])
stamp(8)
g("v_mov_b32 %s, %s" % (T[2], v(GML)))
for ctl in ("quad_perm:[1,0,3,2]", "quad_perm:[2,3,0,1]", "row_ror:4", "row_ror:8"):
    dpp("max_f32", T[2], T[2], T[2], ctl)
g("v_mov_b32 %s, %s" % (T[3], T[2]))
g("v_permlane16_swap_b32 %s, %s" % (T[2], T[3]))
g("v_max_f32 %s, %s, %s" % (T[2], T[2], T[3]))
g("v_sub_f32 %s, %s, %s" % (T[2], v(GML), T[2]))
g("v_mul_f32 %s, %s, %s" % (T[2], S_C, T[2]))
g("v_exp_f32 %s, %s" % (T[2], T[2]))
g("v_mul_f32 %s, %s, %s" % (T[3], T[2], v(GML + 1)))
for ctl in ("quad_perm:[1,0,3,2]", "quad_perm:[2,3,0,1]", "row_ror:4", "row_ror:8"):
    dpp("add_f32", T[3], T[3], T[3], ctl)
g("v_mov_b32 %s, %s" % (T[4], T[3]))
g("v_permlane16_swap_b32 %s, %s" % (T[3], T[4]))
g("v_add_f32 %s, %s, %s" % (T[3], T[3], T[4]))
g("v_rcp_f32 %s, %s" % (T[4], T[3]))
g("v_fma_f32 %s, -%s, %s, 1.0" % (T[3], T[3], T[4]))
g("v_fma_f32 %s, %s, %s, %s" % (T[4], T[3], T[4], T[4]))
g("v_mul_f32 %s, %s, %s" % (T[2], T[2], T[4]))
g("v_and_b32 %s, 32, %s" % (T[3], V_LANE))
g("s_lshl_b32 %s, %s, 3" % (S_T0, S_WAVE))
g("v_add_u32 %s, %s, %s" % (T[3], S_T0, T[3]))
g("v_lshlrev_b32 %s, 2, %s" % (T[3], T[3]))
for i in range(8):
    g("v_add_u32 %s, %d, %s" % (T[4], 4 * i, T[3]))
    g("ds_bpermute_b32 %s, %s, %s" % (v(Z + i), T[4], T[2]))
g("s_waitcnt lgkmcnt(0)")
for e in range(4):
    g("v_mul_f32 %s, %s, %s" % (v(PK + e), v(Z), v(GO + e)))
for i in range(1, 8):
    for e in range(4):
        g("v_fmac_f32 %s, %s, %s" % (v(PK + e), v(Z + i), v(GO + 4 * i + e)))
g("s_lshl_b32 %s, %s, 10" % (S_T0, S_WAVE))
g("v_lshlrev_b32 %s, 4, %s" % (T[0], V_LANE))
g("v_add_u32 %s, %s, %s" % (T[1], S_T0, T[0]))
g("ds_write_b128 %s, %s offset:%d" % (T[1], vr(PK, 4), L_B))
g("s_waitcnt lgkmcnt(0)")
g("s_barrier")
for vv in range(4):
    g("ds_read_b128 %s, %s offset:%d" % (vr(D + 4 * vv, 4), T[0], L_B + 1024 * vv))
g("s_waitcnt lgkmcnt(0)")
for e in range(4):
    g("v_add_f32 %s, %s, %s" % (v(D + e), v(D + e), v(D + 4 + e)))
    g("v_add_f32 %s, %s, %s" % (v(D + 8 + e), v(D + 8 + e), v(D + 12 + e)))
    g("v_add_f32 %s, %s, %s" % (v(D + e), v(D + e), v(D + 8 + e)))
rne2(v(D), v(D + 1), T[2])
rne2(v(D + 2), v(D + 3), T[2])
acc8 = [v(Z + i) for i in range(8)]
for a in acc8:
    g("v_mov_b32 %s, 0" % a)
for i in range(4):
    fma_pairs(acc8, [v(WW + 4 * i + k) for k in range(4)], v(D + i), T[2])
reduce_row3(acc8)
g("s_add_u32 %s, %s, 0x%x" % (S_T0, S_UR, O_Y))
g("v_mov_b32 %s, %s" % (T[2], S_T0))
lane63()
for k in range(4):
    g("v_mov_b32 %s, %s" % (v(Z + k), v(Z + 4 + k)))
g("v_add_u32 %s, 16, %s" % (T[2], T[2]))
g("s_mov_b32 exec_hi, 0xc0000000")
g("buffer_store_dwordx4 %s, %s, %s, %s offen sc1" % (vr(Z, 4), T[2], SRD_WS, S_WSOFF))
exec_all()
stamp(9)


def residual_update(nparts, obase, rstride, lsh):
    GP = GO
    g("s_lshl_b32 %s, %s, 9" % (S_T0, S_WAVE))
    g("v_lshlrev_b32 %s, 3, %s" % (T[0], V_LANE))
    g("v_add_u32 %s, %s, %s" % (T[0], S_T0, T[0]))
    g("ds_read_b64 %s, %s offset:%d" % (vr(D, 2), T[0], L_X))
    g("v_lshrrev_b32 %s, %d, %s" % (T[1], lsh, V_LANE))
    g("v_lshlrev_b32 %s, 7, %s" % (T[1], T[1]))
    g("v_and_b32 %s, %d, %s" % (T[2], (1 << lsh) - 1, V_LANE))
    g("v_lshlrev_b32 %s, 3, %s" % (T[2], T[2]))
    g("s_lshl_b32 %s, %s, %d" % (S_T0, S_WAVE, 13 - lsh))
    g("s_add_u32 %s, %s, 0x%x" % (S_T0, S_T0, obase))
    g("v_add3_u32 %s, %s, %s, %s" % (T[1], T[1], T[2], S_T0))

    def issue():
        for i in range(nparts):
            g("s_add_u32 %s, %s, 0x%x" % (S_OFF, S_WSOFF, i * rstride))
            g("buffer_load_dwordx2 %s, %s, %s, %s offen sc1" % (vr(GP + 2 * i, 2), T[1], SRD_WS, S_OFF))
    poll(issue, [v(GP + i) for i in range(2 * nparts)], T[2])
    for i in range(1, nparts):
        g("v_add_f32 %s, %s, %s" % (v(GP), v(GP), v(GP + 2 * i)))
        g("v_add_f32 %s, %s, %s" % (v(GP + 1), v(GP + 1), v(GP + 2 * i + 1)))
    rne2(v(GP), v(GP + 1), T[2])
    g("s_waitcnt lgkmcnt(0)")
    g("v_add_f32 %s, %s, %s" % (v(D), v(D), v(GP)))
    g("v_add_f32 %s, %s, %s" % (v(D + 1), v(D + 1), v(GP + 1)))
    rne2(v(D), v(D + 1), T[2])


def read_x_all(XFb):
    g("v_lshlrev_b32 %s, 5, %s" % (T[0], V_LANE))
    g("ds_read_b128 %s, %s offset:%d" % (vr(XFb, 4), T[0], L_X))
    g("ds_read_b128 %s, %s offset:%d" % (vr(XFb + 4, 4), T[0], L_X + 16))
    g("s_waitcnt lgkmcnt(0)")


residual_update(16, O_Y, 8192, 2)
stamp(10)
g("ds_write_b64 %s, %s offset:%d" % (T[0], vr(D, 2), L_X))
g("s_waitcnt lgkmcnt(0)")
g("s_barrier")
XFb = D
g("s_cmp_ge_u32 s2, 224")
g("s_cbranch_scc1 L_nogu")
g("s_cmp_ge_u32 %s, 2" % S_WAVE)
g("s_cbranch_scc1 L_nogu")
read_x_all(XFb)
layernorm([v(XFb + i) for i in range(8)], XN, T[0], T[1], T[2])
accg = [v(PK + i) for i in range(8)]
for a in accg:
    g("v_mov_b32 %s, 0" % a)
for i in range(8):
    fma_pairs(accg[0:4], [v(GW + 2 * i), v(GW + 2 * i + 1)], XN[i], T[0])
    fma_pairs(accg[4:8], [v(GW + 16 + 2 * i), v(GW + 16 + 2 * i + 1)], XN[i], T[0])
reduce_row3(accg)
for k in range(0, 8, 2):
    rne2(accg[k], accg[k + 1], T[0])
for k in range(4):
    g("v_max_f32 %s, 0, %s" % (accg[k], accg[k]))
    g("v_mul_f32 %s, %s, %s" % (accg[k], accg[k], accg[4 + k]))
rne2(accg[0], accg[1], T[0])
rne2(accg[2], accg[3], T[0])
g("s_add_u32 %s, %s, 0x%x" % (S_T0, S_UH, O_H))
g("v_mov_b32 %s, %s" % (T[0], S_T0))
lane63()
g("buffer_store_dwordx4 %s, %s, %s, %s offen sc1" % (vr(PK, 4), T[0], SRD_WS, S_WSOFF))
exec_all()
g.label("L_nogu")
g("s_cmp_lg_u32 %s, 0" % S_IT)
g("s_cbranch_scc1 L_noqw")
qproj_loads(QW)
g.label("L_noqw")

stamp(11)
g("s_lshr_b32 %s, %s, 5" % (S_T0, S_WR))
g("s_mul_i32 %s, %s, %d" % (S_T0, S_T0, 56 * 128))
g("s_add_u32 %s, %s, 0x%x" % (S_T0, S_T0, O_H))
g("v_lshlrev_b32 %s, 7, %s" % (T[0], V_LANE))
g("v_add_u32 %s, %s, %s" % (T[0], S_T0, T[0]))
accd = [v(PK + i) for i in range(4)]
for a in accd:
    g("v_mov_b32 %s, 0" % a)
exec56()


def e3_issue():
    g("buffer_load_dwordx4 %s, %s, %s, %s offen sc1" % (vr(D, 4), T[0], SRD_WS, S_WSOFF))


poll(e3_issue, [v(D + i) for i in range(4)], T[1], restore=exec56)
stamp(12)
for i in range(4):
    fma_pairs(accd, [v(DW + 2 * i), v(DW + 2 * i + 1)], v(D + i), T[1])
exec_all()
reduce_row3(accd)
g("s_add_u32 %s, %s, 0x%x" % (S_T0, S_UR, O_DN))
g("v_mov_b32 %s, %s" % (T[0], S_T0))
lane63()
g("buffer_store_dwordx4 %s, %s, %s, %s offen sc1" % (vr(PK, 4), T[0], SRD_WS, S_WSOFF))
exec_all()
stamp(13)
g("s_cmp_lg_u32 %s, 0" % S_IT)
g("s_cbranch_scc1 L_final")

residual_update(8, O_DN, 16384, 1)
stamp(14)
g("ds_write_b64 %s, %s offset:%d" % (T[0], vr(D, 2), L_X))
stream_piece(SRD_K, V_KOFF, 0, 0)
stream_piece(SRD_K, V_KOFF, 1, 1)
g("s_waitcnt lgkmcnt(0)")
g("s_barrier")
read_x_all(XFb)
layernorm([v(XFb + i) for i in range(8)], XN, T[0], T[1], T[2])
qproj_compute_publish(QW, XN, PK, S_WSNEXT)
stamp(15)
gather_q(S_WSNEXT)
stamp(16)
stamp_shift()
g("s_mov_b32 %s, 1" % S_IT)
g("s_mov_b32 %s, 0x%x" % (S_WSOFF, ITS))
g("s_branch L_main")

g.label("L_final")
stamp_dump()
g("s_cmp_lg_u32 s2, 0")
g("s_cbranch_scc1 L_exit")
residual_update(8, O_DN, 16384, 1)
g("v_cvt_pk_bf16_f32 %s, %s, %s" % (T[2], v(D), v(D + 1)))
g("v_lshrrev_b32 %s, 1, %s" % (T[0], T[0]))
g("buffer_store_dword %s, %s, %s, 0 offen" % (T[2], T[0], SRD_OUT))
g("s_waitcnt vmcnt(0)")
g.label("L_exit")
g("s_endpgm")

body = g.finalize()

ref = open("interleave_layers__gqa_block_cached__glu_gated_reglu__decode.s.ref").read()
head = []
for l in ref.splitlines():
    if l.startswith("; @launch"):
        head.append("; @launch grid=(256,1,1) block=(256,1,1) lds=%d" % LDS_BYTES)
        break
    head.append(l)
out = "\n".join(head) + """
.amdgcn_target "amdgcn-amd-amdhsa--gfx950"
.text
.globl %s
.p2align 8
.type %s,@function
%s:
""" % (NAME, NAME, NAME) + body + """
.section .rodata,"a"
.p2align 6
.amdhsa_kernel %s
  .amdhsa_next_free_vgpr 512
  .amdhsa_next_free_sgpr 102
  .amdhsa_accum_offset 256
  .amdhsa_group_segment_fixed_size 0
  .amdhsa_kernarg_size 96
  .amdhsa_user_sgpr_count 2
  .amdhsa_user_sgpr_kernarg_segment_ptr 1
  .amdhsa_system_sgpr_workgroup_id_x 1
  .amdhsa_float_denorm_mode_32 3
.end_amdhsa_kernel
""" % NAME
path = sys.argv[1] if len(sys.argv) > 1 else "interleave_layers__gqa_block_cached__glu_gated_reglu__decode.s"
open(path, "w").write(out)
print("wrote", path, len(out.splitlines()), "lines")
```

```python
import os
import struct
import sys
from asmlib import Asm

NAME = "interleave_layers__gqa_block_cached__glu_gated_reglu__decode_kernel"
NT = " nt"
WQPOL = os.environ.get("WQPOL", "")
DEBUG = len(sys.argv) > 2 and sys.argv[2].startswith("dbg")
VST = len(sys.argv) > 2 and sys.argv[2] == "dbgv"

O_PART, O_ML, O_Y, O_H, O_DN, O_Q = 0x0, 0x80000, 0xA0000, 0xC0000, 0xD0000, 0xF0000
ITS = 0x200000
WS_BYTES = 0x800000
O_DBG = 0x400000

NLDS = 36
L_SCR = 0
L_V = 16384
L_A = L_SCR
L_ML = L_A + 8192
L_B = L_ML + 128
L_X = L_B + 4096
LDS_BYTES = 163840
assert L_X + 2048 <= L_V and L_V + 4 * NLDS * 1024 <= LDS_BYTES

SRD_K, SRD_V, SRD_WS, SRD_WQ, SRD_WO, SRD_WG, SRD_WU, SRD_WD, SRD_X, SRD_OUT, SRD_DBG = [
    "s[%d:%d]" % (i, i + 3) for i in range(8, 52, 4)]
S_WAVE, S_OFF, S_IT, S_WSOFF, S_TMO, S_SELLO, S_SELHI, S_HIM, S_C = [
    "s%d" % i for i in range(52, 61)]
S_R0, S_R1, S_R2, S_R3 = "s61", "s62", "s63", "s64"
S_T0, S_T1, S_T2, S_T3 = "s65", "s66", "s67", "s68"
S_WSNEXT = "s69"
S_ROT = "s99"
ROT = os.environ.get("ROT", "1")
ROT = 0 if ROT == "0" else ROT
S_WR, S_HR, S_PM, S_UR, S_UH = "s3", "s4", "s5", "s6", "s7"

V_TID, V_LANE, V_KOFF, V_VOFF = "v0", "v1", "v2", "v3"
T = ["v%d" % i for i in range(4, 10)]
V_M, V_L = "v10", "v11"
QOP = 12
Z = 16
PK = 24
PKS = 28
D = 32
ACC = 48
LAND = 80
VC = 144


def v(i):
    return "v%d" % i


def vr(i, n):
    return "v[%d:%d]" % (i, i + n - 1)


def f32bits(x):
    return "0x%08x" % struct.unpack("<I", struct.pack("<f", x))[0]


g = Asm()
_lbl = [0]


def newlabel(p):
    _lbl[0] += 1
    return "L_%s_%d" % (p, _lbl[0])


def dpp(op, dst, s0, s1, ctl, row=0xF, bank=0xF):
    g("v_%s_dpp %s, %s, %s %s row_mask:0x%x bank_mask:0x%x" % (op, dst, s0, s1, ctl, row, bank))


def reduce_row3(regs, op="add_f32"):
    for ctl in ("quad_perm:[1,0,3,2]", "quad_perm:[2,3,0,1]", "row_ror:4", "row_ror:8"):
        for r in regs:
            dpp(op, r, r, r, ctl)
    for r in regs:
        dpp(op, r, r, r, "row_bcast:15", row=0xA)
    for r in regs:
        dpp(op, r, r, r, "row_bcast:31", row=0xC)


def rne1(dst, src):
    g("v_cvt_pk_bf16_f32 %s, %s, %s" % (dst, src, src))
    g("v_lshlrev_b32 %s, 16, %s" % (dst, dst))


def rne2(a, b, tmp):
    g("v_cvt_pk_bf16_f32 %s, %s, %s" % (tmp, a, b))
    g("v_lshlrev_b32 %s, 16, %s" % (a, tmp))
    g("v_and_b32 %s, %s, %s" % (b, S_HIM, tmp))


def umax(tmp, rs):
    rs = list(rs)
    if len(rs) == 1:
        g("v_mov_b32 %s, %s" % (tmp, rs[0]))
        return
    if len(rs) >= 3:
        g("v_max3_u32 %s, %s, %s, %s" % (tmp, rs[0], rs[1], rs[2]))
        rs = rs[3:]
    else:
        g("v_max_u32 %s, %s, %s" % (tmp, rs[0], rs[1]))
        rs = rs[2:]
    while rs:
        if len(rs) >= 2:
            g("v_max3_u32 %s, %s, %s, %s" % (tmp, tmp, rs[0], rs[1]))
            rs = rs[2:]
        else:
            g("v_max_u32 %s, %s, %s" % (tmp, tmp, rs[0]))
            rs = rs[1:]


def timeout_loop(lp):
    g("s_sub_u32 %s, %s, 1" % (S_TMO, S_TMO))
    g("s_cmp_eq_u32 %s, 0" % S_TMO)
    g("s_cbranch_scc0 %s" % lp)
    g("s_mov_b32 %s, 1" % S_TMO)


def poll(issue, regs, tmp, restore=None):
    lp, done = newlabel("poll"), newlabel("pdone")
    g.label(lp)
    issue()
    g("s_waitcnt vmcnt(0)")
    umax(tmp, regs)
    g("v_cmp_eq_u32 vcc, -1, %s" % tmp)
    g("s_cbranch_vccz %s" % done)
    g("s_mov_b64 exec, vcc")
    timeout_loop(lp)
    g.label(done)
    (restore or exec_all)()


def poll_instr(issues, regsets, tmp):
    lp, done = newlabel("poll"), newlabel("pdone")
    g("s_mov_b32 %s, 0x%x" % (S_PM, (1 << len(issues)) - 1))
    g.label(lp)
    for i, iss in enumerate(issues):
        g("s_bitcmp1_b32 %s, %d" % (S_PM, i))
        g("s_cselect_b64 exec, -1, 0")
        iss()
    exec_all()
    g("s_waitcnt vmcnt(0)")
    g("s_mov_b32 %s, 0" % S_PM)
    for i, rs in enumerate(regsets):
        umax(tmp, rs)
        g("v_cmp_eq_u32 vcc, -1, %s" % tmp)
        g("s_cmp_lg_u64 vcc, 0")
        g("s_cselect_b32 %s, %d, 0" % (S_T3, 1 << i))
        g("s_or_b32 %s, %s, %s" % (S_PM, S_PM, S_T3))
    g("s_cmp_eq_u32 %s, 0" % S_PM)
    g("s_cbranch_scc1 %s" % done)
    timeout_loop(lp)
    g.label(done)


def layernorm(X, XN, t0, t1, t2):
    g("v_add_f32 %s, %s, %s" % (t0, X[0], X[1]))
    for i in range(2, 8):
        g("v_add_f32 %s, %s, %s" % (t0, t0, X[i]))
    reduce_row3([t0])
    g("v_readlane_b32 %s, %s, 63" % (S_R0, t0))
    g("v_mov_b32 %s, %s" % (t1, S_R0))
    g("v_mul_f32 %s, %s, %s" % (t1, f32bits(1.0 / 512), t1))
    for i in range(8):
        g("v_sub_f32 %s, %s, %s" % (XN[i], X[i], t1))
    g("v_mul_f32 %s, %s, %s" % (t0, XN[0], XN[0]))
    for i in range(1, 8):
        g("v_fmac_f32 %s, %s, %s" % (t0, XN[i], XN[i]))
    reduce_row3([t0])
    g("v_readlane_b32 %s, %s, 63" % (S_R0, t0))
    g("v_mov_b32 %s, %s" % (t0, S_R0))
    g("v_mul_f32 %s, %s, %s" % (t0, f32bits(1.0 / 512), t0))
    rne1(t1, t1)
    rne1(t0, t0)
    g("v_add_f32 %s, %s, %s" % (t0, f32bits(1e-5), t0))
    rne1(t0, t0)
    g("v_sqrt_f32 %s, %s" % (t0, t0))
    rne1(t0, t0)
    g("v_rcp_f32 %s, %s" % (t2, t0))
    for i in range(0, 8, 2):
        g("v_sub_f32 %s, %s, %s" % (XN[i], X[i], t1))
        g("v_sub_f32 %s, %s, %s" % (XN[i + 1], X[i + 1], t1))
        rne2(XN[i], XN[i + 1], X[i])
        for k in (i, i + 1):
            g("v_mul_f32 %s, %s, %s" % (X[k], XN[k], t2))
            g("v_fma_f32 %s, -%s, %s, %s" % (XN[k], X[k], t0, XN[k]))
            g("v_fma_f32 %s, %s, %s, %s" % (XN[k], XN[k], t2, X[k]))
        rne2(XN[i], XN[i + 1], X[i])


def fma_pairs(acc, wregs, x, t):
    for k, w in enumerate(wregs):
        g("v_lshlrev_b32 %s, 16, %s" % (t, w))
        g("v_fmac_f32 %s, %s, %s" % (acc[2 * k], x, t))
        g("v_and_b32 %s, %s, %s" % (t, S_HIM, w))
        g("v_fmac_f32 %s, %s, %s" % (acc[2 * k + 1], x, t))


def stream_piece(srd, voff, piece, slot):
    base = LAND + 32 * slot
    for half in range(2):
        if ROT:
            if half == 0:
                g("s_add_u32 %s, %s, 0x%x" % (S_OFF, S_ROT, piece * 8192))
                g("s_and_b32 %s, %s, 0x1ffff" % (S_OFF, S_OFF))
            else:
                g("s_add_u32 %s, %s, 0x1000" % (S_OFF, S_OFF))
        else:
            g("s_mov_b32 %s, 0x%x" % (S_OFF, piece * 8192 + half * 4096))
        for n in range(4):
            r = base + 16 * half + 4 * n
            g("buffer_load_dwordx4 %s, %s, %s, %s offen offset:%d%s" % (vr(r, 4), voff, srd, S_OFF, n * 1024, NT))


def lane63():
    g("s_mov_b32 exec_lo, 0")
    g("s_mov_b32 exec_hi, 0x80000000")


def exec_all():
    g("s_mov_b64 exec, -1")


def qproj_loads(W):
    g("v_lshlrev_b32 %s, 13, %s" % (T[0], V_LANE))
    g("s_lshl_b32 %s, %s, 5" % (S_T0, S_WR))
    g("s_lshl_b32 %s, %s, 4" % (S_T1, S_WAVE))
    g("s_add_u32 %s, %s, %s" % (S_T0, S_T0, S_T1))
    g("s_sub_u32 %s, %s, 32" % (S_T0, S_T0))
    g("v_add_u32 %s, %s, %s" % (T[0], S_T0, T[0]))
    for i in range(8):
        g("s_mov_b32 %s, 0x%x" % (S_OFF, i * 64 * 8192))
        g("buffer_load_dwordx4 %s, %s, %s, %s offen%s" % (vr(W + 4 * i, 4), T[0], SRD_WQ, S_OFF, WQPOL))


def q_unit():
    g("s_lshl_b32 %s, %s, 8" % (S_T0, S_WR))
    g("s_lshl_b32 %s, %s, 7" % (S_T1, S_WAVE))
    g("s_add_u32 %s, %s, %s" % (S_T0, S_T0, S_T1))
    g("s_add_u32 %s, %s, 0x%x" % (S_T0, S_T0, O_Q - 256))


def store8(A, t, soff):
    g("v_mov_b32 %s, %s" % (t, S_T0))
    lane63()
    for k in range(4):
        g("v_mov_b32 %s, %s" % (v(A + k), v(A + 4 + k)))
    g("v_add_u32 %s, 16, %s" % (t, t))
    g("s_mov_b32 exec_hi, 0xc0000000")
    g("buffer_store_dwordx4 %s, %s, %s, %s offen sc1" % (vr(A, 4), t, SRD_WS, soff))
    exec_all()


def qproj_compute_publish(W, XN, A, soff):
    acc = [v(A + i) for i in range(8)]
    for a in acc:
        g("v_mov_b32 %s, 0" % a)
    for i in range(8):
        fma_pairs(acc, [v(W + 4 * i + k) for k in range(4)], XN[i], T[1])
    reduce_row3(acc)
    for k in range(0, 8, 2):
        rne2(acc[k], acc[k + 1], T[1])
    q_unit()
    store8(A, T[1], soff)


def gather_q_addr():
    g("v_and_b32 %s, 3, %s" % (T[0], V_LANE))
    g("v_lshlrev_b32 %s, 11, %s" % (T[0], T[0]))
    g("v_lshrrev_b32 %s, 4, %s" % (T[1], V_LANE))
    g("v_lshlrev_b32 %s, 9, %s" % (T[1], T[1]))
    g("v_add_u32 %s, %s, %s" % (T[0], T[0], T[1]))
    g("v_bfe_u32 %s, %s, 2, 2" % (T[1], V_LANE))
    g("v_lshlrev_b32 %s, 7, %s" % (T[1], T[1]))
    g("v_add_u32 %s, %s, %s" % (T[0], T[0], T[1]))
    g("s_lshr_b32 %s, s2, 5" % S_T0)
    g("s_lshl_b32 %s, %s, 13" % (S_T0, S_T0))
    g("s_add_u32 %s, %s, 0x%x" % (S_T0, S_T0, O_Q))
    g("v_add_u32 %s, %s, %s" % (T[0], S_T0, T[0]))


def gather_q(soff):
    gather_q_addr()

    def issue():
        g("buffer_load_dwordx4 %s, %s, %s, %s offen sc1" % (vr(D, 4), T[0], SRD_WS, soff))
        g("buffer_load_dwordx4 %s, %s, %s, %s offen offset:16 sc1" % (vr(D + 4, 4), T[0], SRD_WS, soff))
    poll(issue, [v(D + i) for i in range(8)], T[1])
    for p in range(4):
        g("v_cvt_pk_bf16_f32 %s, %s, %s" % (v(QOP + p), v(D + 2 * p), v(D + 2 * p + 1)))


def vop_loc(o):
    if o < 64:
        return ("a", 4 * o)
    if o < 64 + NLDS:
        return ("l", (o - 64) * 1024)
    return ("v", VC + 4 * (o - 64 - NLDS))


def stamp(k):
    if not DEBUG:
        return
    g("s_memrealtime s[100:101]")
    g("s_waitcnt lgkmcnt(0)")
    g("s_mov_b32 s%d, s100" % (70 + k))


def stamp_shift():
    if not DEBUG or VST:
        return
    for k in range(12):
        g("s_mov_b32 s%d, s%d" % (87 + k, 75 + k))


def stamp_dump():
    if not DEBUG:
        return
    g("s_lshl_b32 s100, s2, 2")
    g("s_add_u32 s100, s100, %s" % S_WAVE)
    g("s_lshl_b32 s100, s100, 8")
    g("s_add_u32 s100, s100, 0x%x" % O_DBG)
    g("s_mov_b64 exec, 1")
    g("v_mov_b32 v255, s100")
    for k in range(29):
        g("v_mov_b32 v254, s%d" % (70 + k))
        g("buffer_store_dword v254, v255, %s, 0 offen offset:%d" % (SRD_WS, 4 * k))
        g("s_waitcnt vmcnt(0)")
    g("s_mov_b64 exec, -1")


g("s_load_dwordx16 s[64:79], s[0:1], 0")
g("s_load_dwordx8 s[80:87], s[0:1], 64")
g("v_and_b32 %s, 63, %s" % (V_LANE, V_TID))
g("v_lshrrev_b32 %s, 6, %s" % (T[0], V_TID))
g("v_readfirstlane_b32 %s, %s" % (S_WAVE, T[0]))
g("s_cmp_ge_u32 s2, 256")
g("s_cbranch_scc1 L_exit")
g("s_waitcnt lgkmcnt(0)")


def mk_srd(srd, plo, nbytes):
    b = int(srd[2:].split(":")[0])
    g("s_mov_b32 s%d, s%d" % (b, plo))
    g("s_and_b32 s%d, s%d, 0xffff" % (b + 1, plo + 1))
    g("s_mov_b32 s%d, 0x%x" % (b + 2, nbytes))
    g("s_mov_b32 s%d, 0x00020000" % (b + 3))


mk_srd(SRD_X, 64, 1024)
mk_srd(SRD_K, 66, 0x8000000)
mk_srd(SRD_V, 68, 0x8000000)
mk_srd(SRD_WQ, 70, 512 * 4096 * 2)
mk_srd(SRD_WO, 72, 4096 * 512 * 2)
mk_srd(SRD_WG, 76, 512 * 1792 * 2)
mk_srd(SRD_WU, 78, 512 * 1792 * 2)
mk_srd(SRD_WD, 80, 1792 * 512 * 2)
mk_srd(SRD_OUT, 82, 1024)
mk_srd(SRD_DBG, 84, 256)
mk_srd(SRD_WS, 86, WS_BYTES)
g("s_mov_b32 %s, 0" % S_IT)
stamp(0)
g("s_mov_b32 %s, 0" % S_WSOFF)
g("s_and_b32 %s, s2, 7" % S_T0)
g("s_lshr_b32 %s, s2, 3" % S_T1)
g("s_lshl_b32 %s, %s, 5" % (S_WR, S_T0))
g("s_add_u32 %s, %s, %s" % (S_WR, S_WR, S_T1))
g("s_mul_i32 %s, %s, 28" % (S_HR, S_T0))
g("s_add_u32 %s, %s, %s" % (S_HR, S_HR, S_T1))
g("s_lshl_b32 %s, %s, 2" % (S_UR, S_WR))
g("s_add_u32 %s, %s, %s" % (S_UR, S_UR, S_WAVE))
g("s_lshl_b32 %s, %s, 7" % (S_UR, S_UR))
g("s_lshl_b32 %s, %s, 1" % (S_UH, S_HR))
g("s_add_u32 %s, %s, %s" % (S_UH, S_UH, S_WAVE))
g("s_lshl_b32 %s, %s, 7" % (S_UH, S_UH))
g("s_mov_b32 %s, 0x%x" % (S_WSNEXT, ITS))
g("s_mov_b32 %s, 400000" % S_TMO)
g("s_mov_b32 %s, 0x05040100" % S_SELLO)
g("s_mov_b32 %s, 0x07060302" % S_SELHI)
g("s_mov_b32 %s, 0xffff0000" % S_HIM)
g("s_mov_b32 %s, %s" % (S_C, f32bits(128 ** -0.5 * 1.4426950408889634)))
if ROT == "1":
    g("s_lshl_b32 %s, s2, 2" % S_ROT)
    g("s_add_u32 %s, %s, %s" % (S_ROT, S_ROT, S_WAVE))
    g("s_and_b32 %s, %s, 15" % (S_ROT, S_ROT))
    g("s_lshl_b32 %s, %s, 13" % (S_ROT, S_ROT))
elif ROT == "2":
    g("s_lshr_b32 %s, s2, 3" % S_ROT)
    g("s_lshl_b32 %s, %s, 2" % (S_ROT, S_ROT))
    g("s_add_u32 %s, %s, %s" % (S_ROT, S_ROT, S_WAVE))
    g("s_and_b32 %s, %s, 15" % (S_ROT, S_ROT))
    g("s_lshl_b32 %s, %s, 13" % (S_ROT, S_ROT))
g("s_lshl_b32 %s, s2, 19" % S_T0)
g("s_lshl_b32 %s, %s, 17" % (S_T1, S_WAVE))
g("s_add_u32 %s, %s, %s" % (S_T0, S_T0, S_T1))
g("v_bfe_u32 %s, %s, 2, 2" % (T[0], V_LANE))
g("v_lshlrev_b32 %s, 8, %s" % (T[0], T[0]))
g("v_lshrrev_b32 %s, 4, %s" % (T[1], V_LANE))
g("v_lshlrev_b32 %s, 6, %s" % (T[1], T[1]))
g("v_and_b32 %s, 3, %s" % (T[2], V_LANE))
g("v_lshlrev_b32 %s, 4, %s" % (T[2], T[2]))
g("v_add3_u32 %s, %s, %s, %s" % (V_KOFF, T[0], T[1], T[2]))
g("v_add_u32 %s, %s, %s" % (V_KOFF, S_T0, V_KOFF))
g("v_lshlrev_b32 %s, 4, %s" % (V_VOFF, V_LANE))
g("v_add_u32 %s, %s, %s" % (V_VOFF, S_T0, V_VOFF))

g("v_mov_b32 %s, -1" % T[4])
g("v_mov_b32 %s, -1" % T[5])
g("v_lshlrev_b32 %s, 3, %s" % (T[0], V_TID))
g("s_lshl_b32 %s, s2, 11" % S_T0)
g("v_add_u32 %s, %s, %s" % (T[0], S_T0, T[0]))
g("buffer_store_dwordx2 %s, %s, %s, 0 offen sc1" % (vr(8, 2), T[0], SRD_WS))
g("buffer_store_dwordx2 %s, %s, %s, %s offen sc1" % (vr(8, 2), T[0], SRD_WS, S_WSNEXT))
g("v_lshlrev_b32 %s, 3, %s" % (T[1], V_LANE))


def clear_small(nl, sbase_code):
    sbase_code()
    g("v_add_u32 %s, %s, %s" % (T[0], S_T0, T[1]))
    g("s_mov_b64 exec, 0x%x" % ((1 << nl) - 1))
    g("buffer_store_dwordx2 %s, %s, %s, 0 offen sc1" % (vr(8, 2), T[0], SRD_WS))
    g("buffer_store_dwordx2 %s, %s, %s, %s offen sc1" % (vr(8, 2), T[0], SRD_WS, S_WSNEXT))
    exec_all()


def _ml():
    g("s_lshl_b32 %s, s2, 2" % S_T0)
    g("s_add_u32 %s, %s, %s" % (S_T0, S_T0, S_WAVE))
    g("s_lshl_b32 %s, %s, 7" % (S_T0, S_T0))
    g("s_add_u32 %s, %s, 0x%x" % (S_T0, S_T0, O_ML))


clear_small(1, _ml)
clear_small(4, lambda: g("s_add_u32 %s, %s, 0x%x" % (S_T0, S_UR, O_Y)))
clear_small(2, lambda: g("s_add_u32 %s, %s, 0x%x" % (S_T0, S_UR, O_DN)))
if VST:
    stamp(17)
g("s_cmp_lt_u32 %s, 2" % S_WAVE)
g("s_cbranch_scc1 L_clearh")
clear_small(4, q_unit)
qproj_loads(ACC)
g("s_branch L_noclear")
g.label("L_clearh")
g("s_cmp_ge_u32 s2, 224")
g("s_cbranch_scc1 L_noclear")
clear_small(2, lambda: g("s_add_u32 %s, %s, 0x%x" % (S_T0, S_UH, O_H)))
g.label("L_noclear")
if VST:
    stamp(18)

XR = QOP
XF = [v(PK + i) for i in range(8)]
XN = [v(Z + i) for i in range(8)]
DUM = ACC + 28
CNT = ACC + 16
QG = ACC
ops = []


def note(tag, n):
    ops.extend([tag] * n)


def wait_for(tag):
    last = max(i for i, t in enumerate(ops) if t == tag)
    g("s_waitcnt vmcnt(%d)" % (len(ops) - 1 - last))


def exec56():
    g("s_mov_b32 exec_lo, -1")
    g("s_mov_b32 exec_hi, 0x00ffffff")


def warm(which):
    g("s_and_b32 %s, s2, 7" % S_T0)
    g("s_lshr_b32 %s, s2, 3" % S_T1)
    if which == "wq":
        g("s_lshl_b32 %s, %s, 10" % (S_T0, S_T0))
        g("s_lshl_b32 %s, %s, 17" % (S_T1, S_T1))
        g("s_add_u32 %s, %s, %s" % (S_T0, S_T0, S_T1))
        g("s_lshl_b32 %s, %s, 15" % (S_T1, S_WAVE))
        g("s_add_u32 %s, %s, %s" % (S_T0, S_T0, S_T1))
        for i in range(4):
            g("s_add_u32 %s, %s, 0x%x" % (S_OFF, S_T0, i * 8192))
            g("buffer_load_dwordx4 %s, %s, %s, %s offen" % (vr(DUM, 4), T[3], SRD_WQ, S_OFF))
        note("warm", 4)
    elif which == "wo":
        g("s_lshl_b32 %s, %s, 19" % (S_T0, S_T0))
        g("s_lshl_b32 %s, %s, 14" % (S_T1, S_T1))
        g("s_add_u32 %s, %s, %s" % (S_T0, S_T0, S_T1))
        g("s_lshl_b32 %s, %s, 12" % (S_T1, S_WAVE))
        g("s_add_u32 %s, %s, %s" % (S_T0, S_T0, S_T1))
        for i in range(4):
            g("buffer_load_dwordx4 %s, %s, %s, %s offen offset:%d" % (vr(DUM, 4), T[3], SRD_WO, S_T0, i * 1024))
        note("warm", 4)
    elif which == "wd":
        g("s_mul_i32 %s, %s, 229376" % (S_T0, S_T0))
        g("s_mul_i32 %s, %s, 7168" % (S_T1, S_T1))
        g("s_add_u32 %s, %s, %s" % (S_T0, S_T0, S_T1))
        g("s_mul_i32 %s, %s, 1792" % (S_T1, S_WAVE))
        g("s_add_u32 %s, %s, %s" % (S_T0, S_T0, S_T1))
        exec56()
        for i in range(2):
            g("buffer_load_dwordx4 %s, %s, %s, %s offen offset:%d" % (vr(DUM, 4), T[3], SRD_WD, S_T0, i * 896))
        exec_all()
        note("warm", 2)
    elif which == "gu":
        g("s_mul_i32 %s, %s, 448" % (S_T0, S_T0))
        g("s_mul_i32 %s, %s, %d" % (S_T1, S_T1, 16 * 3584))
        g("s_add_u32 %s, %s, %s" % (S_T0, S_T0, S_T1))
        g("s_mul_i32 %s, %s, %d" % (S_T1, S_WAVE, 4 * 3584))
        g("s_add_u32 %s, %s, %s" % (S_T0, S_T0, S_T1))
        g("v_cmp_le_u32 vcc, 28, %s" % V_LANE)
        g("v_mov_b32 %s, %d" % (T[2], 3584 - 448))
        g("v_cndmask_b32 %s, 0, %s, vcc" % (T[2], T[2]))
        g("v_add_u32 %s, %s, %s" % (T[2], T[2], T[3]))
        exec56()
        for i in range(2):
            g("s_add_u32 %s, %s, %d" % (S_OFF, S_T0, i * 2 * 3584))
            g("buffer_load_dwordx4 %s, %s, %s, %s offen" % (vr(DUM, 4), T[2], SRD_WG, S_OFF))
            g("buffer_load_dwordx4 %s, %s, %s, %s offen" % (vr(DUM, 4), T[2], SRD_WU, S_OFF))
        exec_all()
        note("warm", 4)


g("v_lshlrev_b32 %s, 1, %s" % (T[3], V_LANE))
for i in range(8):
    g("buffer_load_ushort %s, %s, %s, 0 offen offset:%d" % (XF[i], T[3], SRD_X, 128 * i))
stream_piece(SRD_V, V_VOFF, 0, 0)
note("p0", 8)
if VST:
    stamp(19)
stream_piece(SRD_V, V_VOFF, 1, 1)
note("p1", 8)
stamp(1)

g("v_lshlrev_b32 %s, 4, %s" % (T[5], V_LANE))
g("s_mul_i32 %s, %s, %d" % (S_T0, S_WAVE, NLDS * 1024))
g("s_add_u32 %s, %s, %d" % (S_T0, S_T0, L_V))
g("v_add_u32 %s, %s, %s" % (T[5], S_T0, T[5]))
V_LDSV = T[5]
U_Q, U_ARR = 0, 1
WARM = os.environ.get('WARM', '0') == '1'
for u in range(16):
    slot = u % 2
    R = LAND + 32 * slot
    wait_for("p%d" % u)
    if VST and u < 9:
        stamp(20 + u)
    for s in range(8):
        w_, b = s // 2, s % 2
        kind, loc = vop_loc(8 * u + s)
        sel = S_SELHI if b else S_SELLO
        tmpb = D + 4 * (s % 4)
        for p in range(4):
            dst = v(loc + p) if kind == "v" else v(tmpb + p)
            g("v_perm_b32 %s, %s, %s, %s" % (dst, v(R + 4 * (2 * p + 1) + w_), v(R + 4 * (2 * p) + w_), sel))
        if kind == "a":
            for p in range(4):
                g("v_accvgpr_write_b32 a%d, %s" % (loc + p, v(tmpb + p)))
        elif kind == "l":
            g("ds_write_b128 %s, %s offset:%d" % (V_LDSV, vr(tmpb, 4), loc))
            if s % 4 == 3:
                g("s_waitcnt lgkmcnt(0)")
    if u + 2 < 16:
        stream_piece(SRD_V, V_VOFF, u + 2, slot)
    else:
        stream_piece(SRD_K, V_KOFF, u + 2 - 16, slot)
    note("p%d" % (u + 2), 8)
    if WARM and u in (6, 8, 10):
        g("v_lshlrev_b32 %s, 4, %s" % (T[3], V_LANE))
        warm({6: "wo", 8: "gu", 10: "wd"}[u])
    if u == U_Q:
        g.comment("x, wq have landed (older than the piece just waited for): LN, q projection, publish q1 slice")
        for i in range(8):
            g("v_lshlrev_b32 %s, 16, %s" % (XF[i], XF[i]))
        g("s_cmp_lg_u32 %s, 0" % S_WAVE)
        g("s_cbranch_scc1 L_nox")
        g("v_lshlrev_b32 %s, 2, %s" % (T[2], V_LANE))
        for i in range(8):
            g("ds_write_b32 %s, %s offset:%d" % (T[2], XF[i], L_X + 256 * i))
        g("s_waitcnt lgkmcnt(0)")
        g.label("L_nox")
        g("s_cmp_lt_u32 %s, 2" % S_WAVE)
        g("s_cbranch_scc1 L_noq1")
        layernorm(XF, XN, T[2], T[3], T[4])
        qproj_compute_publish(ACC, XN, PK, "0")
        g.label("L_noq1")
    if u == U_ARR:
        g.comment("clears and the q1 store are complete (older than the piece just waited for): arrive")
        g("s_barrier")
        g("s_cmp_lg_u32 %s, 0" % S_WAVE)
        g("s_cbranch_scc1 L_noarr")
        g("v_mov_b32 %s, 0" % T[0])
        g("v_mov_b32 %s, 1" % T[1])
        g("s_mov_b64 exec, 1")
        g("buffer_atomic_add %s, %s, %s, 0 offen sc1" % (T[1], T[0], SRD_DBG))
        exec_all()
        g.label("L_noarr")
    if u == 13:
        g("v_mov_b32 %s, 0" % T[0])
        g("buffer_load_dword %s, %s, %s, 0 offen sc1" % (v(CNT), T[0], SRD_DBG))
        note("cnt", 1)
    if u == 14:
        stamp(2)
        lp, done = newlabel("cnt"), newlabel("cdone")
        wait_for("cnt")
        g("v_mov_b32 %s, 0" % T[0])
        g.label(lp)
        g("v_readfirstlane_b32 %s, %s" % (S_T0, v(CNT)))
        g("s_cmp_ge_u32 %s, 256" % S_T0)
        g("s_cbranch_scc1 %s" % done)
        g("buffer_load_dword %s, %s, %s, 0 offen sc1" % (v(CNT), T[0], SRD_DBG))
        g("s_waitcnt vmcnt(0)")
        timeout_loop(lp)
        g.label(done)
        gather_q_addr()
        g("buffer_load_dwordx4 %s, %s, %s, 0 offen sc1" % (vr(QG, 4), T[0], SRD_WS))
        g("buffer_load_dwordx4 %s, %s, %s, 0 offen offset:16 sc1" % (vr(QG + 4, 4), T[0], SRD_WS))
        note("qg", 2)
        stamp(3)
wait_for("qg")
umax(T[1], [v(QG + i) for i in range(8)])
g("v_cmp_eq_u32 vcc, -1, %s" % T[1])
for p in range(4):
    g("v_cvt_pk_bf16_f32 %s, %s, %s" % (v(QOP + p), v(QG + 2 * p), v(QG + 2 * p + 1)))
g("s_cbranch_vccz L_q1ok")
gather_q("0")
g.label("L_q1ok")
g("s_waitcnt lgkmcnt(0)")

stamp(4)
WW = LAND
DW = LAND + 16
GML = LAND + 24
GW = LAND + 32
QW = LAND + 32
GO = ACC


def wo_dw_loads():
    g("s_lshr_b32 %s, %s, 4" % (S_T0, S_WR))
    g("s_lshl_b32 %s, %s, 18" % (S_T0, S_T0))
    g("s_and_b32 %s, %s, 15" % (S_T1, S_WR))
    g("s_lshl_b32 %s, %s, 6" % (S_T1, S_T1))
    g("s_add_u32 %s, %s, %s" % (S_T0, S_T0, S_T1))
    g("s_lshl_b32 %s, %s, 4" % (S_T1, S_WAVE))
    g("s_add_u32 %s, %s, %s" % (S_T0, S_T0, S_T1))
    g("v_lshlrev_b32 %s, 12, %s" % (T[1], V_LANE))
    for i in range(4):
        g("buffer_load_dwordx4 %s, %s, %s, %s offen offset:%d" % (vr(WW + 4 * i, 4), T[1], SRD_WO, S_T0, i * 1024))
    g("s_lshr_b32 %s, %s, 5" % (S_T0, S_WR))
    g("s_mul_i32 %s, %s, %d" % (S_T0, S_T0, 224 * 1024))
    g("s_and_b32 %s, %s, 31" % (S_T1, S_WR))
    g("s_lshl_b32 %s, %s, 5" % (S_T1, S_T1))
    g("s_add_u32 %s, %s, %s" % (S_T0, S_T0, S_T1))
    g("s_lshl_b32 %s, %s, 3" % (S_T1, S_WAVE))
    g("s_add_u32 %s, %s, %s" % (S_T0, S_T0, S_T1))
    exec56()
    for i in range(4):
        g("buffer_load_dwordx2 %s, %s, %s, %s offen offset:%d" % (vr(DW + 2 * i, 2), T[1], SRD_WD, S_T0, i * 1024))
    exec_all()


g.label("L_main")
for s in range(8):
    for r in range(4):
        g("v_mov_b32 %s, 0" % v(ACC + 4 * s + r))
g("v_mov_b32 %s, 0" % V_L)
for ch in range(4):
    for pn in range(4):
        i = 4 * ch + pn
        slot = i % 2
        R = LAND + 32 * slot
        g("s_waitcnt vmcnt(8)")

        def qk_mfma(n):
            g("v_mfma_f32_16x16x32_bf16 %s, %s, %s, 0" % (vr(D + 4 * (n % 4), 4), vr(R + 4 * n, 4), vr(QOP, 4)))

        def qk_red(n):
            db = D + 4 * (n % 4)
            others = [t for t in range(4) if t != pn]
            first = True
            for k, t in enumerate(others):
                rot = (16 - 4 * (t - pn)) % 16
                src1 = v(db + pn) if first else T[0]
                last = k == 2
                dst = v(Z + n) if last else T[0]
                dpp("add_f32", dst, v(db + t), src1, "row_ror:%d" % rot, bank=(1 << pn) if last else 0xF)
                first = False
        for n in range(4):
            qk_mfma(n)
        for n in range(4):
            qk_red(n)
            qk_mfma(n + 4)
        if i + 2 < 16:
            stream_piece(SRD_K, V_KOFF, i + 2, slot)
        elif i == 14:
            wo_dw_loads()
        for n in range(4, 8):
            qk_red(n)
    if ch == 3:
        stamp(5)
    g.comment("softmax for chunk %d" % ch)
    g("v_max3_f32 %s, %s, %s, %s" % (T[0], v(Z), v(Z + 1), v(Z + 2)))
    g("v_max3_f32 %s, %s, %s, %s" % (T[0], T[0], v(Z + 3), v(Z + 4)))
    g("v_max3_f32 %s, %s, %s, %s" % (T[0], T[0], v(Z + 5), v(Z + 6)))
    g("v_max_f32 %s, %s, %s" % (T[0], T[0], v(Z + 7)))
    dpp("max_f32", T[0], T[0], T[0], "row_ror:4")
    dpp("max_f32", T[0], T[0], T[0], "row_ror:8")
    for sw in ("16", "32"):
        g("v_mov_b32 %s, %s" % (T[1], T[0]))
        g("v_permlane%s_swap_b32 %s, %s" % (sw, T[0], T[1]))
        g("v_max_f32 %s, %s, %s" % (T[0], T[0], T[1]))
    if ch == 0:
        g("v_mov_b32 %s, %s" % (V_M, T[0]))
    else:
        g("v_max_f32 %s, %s, %s" % (T[0], T[0], V_M))
        g("v_sub_f32 %s, %s, %s" % (T[1], V_M, T[0]))
        g("v_mul_f32 %s, %s, %s" % (T[1], S_C, T[1]))
        g("v_exp_f32 %s, %s" % (T[1], T[1]))
        g("v_mov_b32 %s, %s" % (V_M, T[0]))
        g("v_mul_f32 %s, %s, %s" % (V_L, V_L, T[1]))
        for r, sr in enumerate((S_R0, S_R1, S_R2, S_R3)):
            g("v_readlane_b32 %s, %s, %d" % (sr, T[1], r))
        for s in range(8):
            for r, sr in enumerate((S_R0, S_R1, S_R2, S_R3)):
                g("v_mul_f32 %s, %s, %s" % (v(ACC + 4 * s + r), sr, v(ACC + 4 * s + r)))
    g("v_mul_f32 %s, %s, %s" % (T[1], S_C, V_M))
    for a in range(8):
        g("v_fma_f32 %s, %s, %s, -%s" % (v(Z + a), v(Z + a), S_C, T[1]))
    for a in range(8):
        g("v_exp_f32 %s, %s" % (v(Z + a), v(Z + a)))
    for a in range(8):
        g("v_add_f32 %s, %s, %s" % (V_L, V_L, v(Z + a)))
    for p in range(4):
        g("v_cvt_pk_bf16_f32 %s, %s, %s" % (v(PK + p), v(Z + 2 * p), v(Z + 2 * p + 1)))
    g.comment("PV for chunk %d" % ch)
    ops = [(pn, s) for pn in range(4) for s in range(8)]
    ldsq = [k for k, (pn, s) in enumerate(ops) if vop_loc(32 * ch + k)[0] == "l"]
    issued = 0

    def issue_lds(k):
        slotr = D + 4 * (ldsq.index(k) % 4)
        g("ds_read_b128 %s, %s offset:%d" % (vr(slotr, 4), V_LDSV, vop_loc(32 * ch + k)[1]))
    for k in ldsq[:4]:
        issue_lds(k)
        issued += 1
    for k, (pn, s) in enumerate(ops):
        if s == 0 and pn > 0:
            for p in range(4):
                g("v_mov_b32_dpp %s, %s row_shl:%d row_mask:0xf bank_mask:0xf" % (v(PKS + p), v(PK + p), 4 * pn))
        A = vr(PK if pn == 0 else PKS, 4)
        kind, loc = vop_loc(32 * ch + k)
        if kind == "a":
            B = "a[%d:%d]" % (loc, loc + 3)
        elif kind == "v":
            B = vr(loc, 4)
        else:
            idx = ldsq.index(k)
            B = vr(D + 4 * (idx % 4), 4)
            g("s_waitcnt lgkmcnt(%d)" % (issued - idx - 1))
        g("v_mfma_f32_16x16x32_bf16 %s, %s, %s, %s" % (vr(ACC + 4 * s, 4), A, B, vr(ACC + 4 * s, 4)))
        if kind == "l" and issued < len(ldsq):
            issue_lds(ldsq[issued])
            issued += 1

stamp(6)
dpp("add_f32", V_L, V_L, V_L, "row_ror:4")
dpp("add_f32", V_L, V_L, V_L, "row_ror:8")
for sw in ("16", "32"):
    g("v_mov_b32 %s, %s" % (T[1], V_L))
    g("v_permlane%s_swap_b32 %s, %s" % (sw, V_L, T[1]))
    g("v_add_f32 %s, %s, %s" % (V_L, V_L, T[1]))
g("s_lshl_b32 %s, %s, 11" % (S_T0, S_WAVE))
g("v_lshlrev_b32 %s, 4, %s" % (T[0], V_LANE))
g("v_add_u32 %s, %s, %s" % (T[0], S_T0, T[0]))
g("s_lshl_b32 %s, %s, 5" % (S_T0, S_WAVE))
g("v_lshlrev_b32 %s, 3, %s" % (T[1], V_LANE))
g("v_add_u32 %s, %s, %s" % (T[1], S_T0, T[1]))
g("s_mov_b64 exec, 0xffff")
for s in range(8):
    g("ds_write_b128 %s, %s offset:%d" % (T[0], vr(ACC + 4 * s, 4), L_A + 256 * s))
g("s_mov_b64 exec, 0xf")
g("ds_write_b64 %s, %s offset:%d" % (T[1], vr(10, 2), L_ML))
exec_all()
g("s_waitcnt lgkmcnt(0)")
g("s_barrier")
g("v_and_b32 %s, 3, %s" % (T[0], V_LANE))
g("v_lshlrev_b32 %s, 9, %s" % (T[0], T[0]))
g("v_lshrrev_b32 %s, 2, %s" % (T[1], V_LANE))
g("v_lshlrev_b32 %s, 4, %s" % (T[1], T[1]))
g("v_add_u32 %s, %s, %s" % (T[0], T[0], T[1]))
g("s_lshl_b32 %s, %s, 2" % (S_T0, S_WAVE))
g("v_add_u32 %s, %s, %s" % (T[0], S_T0, T[0]))
g("s_lshl_b32 %s, %s, 3" % (S_T0, S_WAVE))
g("v_mov_b32 %s, %s" % (T[1], S_T0))
for vv in range(4):
    g("ds_read_b32 %s, %s offset:%d" % (v(D + 2 * vv), T[0], L_A + 2048 * vv))
    g("ds_read_b32 %s, %s offset:%d" % (v(D + 2 * vv + 1), T[0], L_A + 2048 * vv + 256))
    g("ds_read_b64 %s, %s offset:%d" % (vr(Z + 2 * vv, 2), T[1], L_ML + 32 * vv))
g("s_waitcnt lgkmcnt(0)")
g("v_max3_f32 %s, %s, %s, %s" % (T[2], v(Z), v(Z + 2), v(Z + 4)))
g("v_max_f32 %s, %s, %s" % (T[2], T[2], v(Z + 6)))
for vv in range(4):
    g("v_sub_f32 %s, %s, %s" % (v(Z + 2 * vv), v(Z + 2 * vv), T[2]))
    g("v_mul_f32 %s, %s, %s" % (v(Z + 2 * vv), S_C, v(Z + 2 * vv)))
    g("v_exp_f32 %s, %s" % (v(Z + 2 * vv), v(Z + 2 * vv)))
g("v_mul_f32 %s, %s, %s" % (v(PK), v(Z), v(D)))
g("v_mul_f32 %s, %s, %s" % (v(PK + 1), v(Z), v(D + 1)))
g("v_mul_f32 %s, %s, %s" % (T[3], v(Z), v(Z + 1)))
for vv in range(1, 4):
    g("v_fmac_f32 %s, %s, %s" % (v(PK), v(Z + 2 * vv), v(D + 2 * vv)))
    g("v_fmac_f32 %s, %s, %s" % (v(PK + 1), v(Z + 2 * vv), v(D + 2 * vv + 1)))
    g("v_fmac_f32 %s, %s, %s" % (T[3], v(Z + 2 * vv), v(Z + 2 * vv + 1)))
g("v_lshlrev_b32 %s, 3, %s" % (T[0], V_TID))
g("s_lshl_b32 %s, s2, 11" % S_T0)
g("v_add_u32 %s, %s, %s" % (T[0], S_T0, T[0]))
g("buffer_store_dwordx2 %s, %s, %s, %s offen sc1" % (vr(PK, 2), T[0], SRD_WS, S_WSOFF))
_ml()
g("v_mov_b32 %s, %s" % (T[1], S_T0))
g("s_mov_b64 exec, 1")
g("buffer_store_dwordx2 %s, %s, %s, %s offen sc1" % (vr(6, 2), T[1], SRD_WS, S_WSOFF))
exec_all()
g("s_cmp_lt_u32 %s, 2" % S_WAVE)
g("s_cbranch_scc1 L_gw")
g("s_cmp_lg_u32 %s, 0" % S_IT)
g("s_cbranch_scc1 L_nogw")
qproj_loads(QW)
g("s_branch L_nogw")
g.label("L_gw")
g("s_cmp_ge_u32 s2, 224")
g("s_cbranch_scc1 L_nogw")
g("s_mov_b32 %s, %d" % (S_T0, 3584))
g("v_mul_lo_u32 %s, %s, %s" % (T[2], S_T0, V_LANE))
g("s_lshl_b32 %s, %s, 4" % (S_T0, S_HR))
g("s_lshl_b32 %s, %s, 3" % (S_T1, S_WAVE))
g("s_add_u32 %s, %s, %s" % (S_T0, S_T0, S_T1))
g("v_add_u32 %s, %s, %s" % (T[2], S_T0, T[2]))
for i in range(8):
    g("s_mov_b32 %s, %d" % (S_OFF, i * 64 * 3584))
    g("buffer_load_dwordx2 %s, %s, %s, %s offen" % (vr(GW + 2 * i, 2), T[2], SRD_WG, S_OFF))
    g("buffer_load_dwordx2 %s, %s, %s, %s offen" % (vr(GW + 16 + 2 * i, 2), T[2], SRD_WU, S_OFF))
g.label("L_nogw")

stamp(7)
g("s_lshr_b32 %s, %s, 5" % (S_T0, S_WR))
g("s_lshl_b32 %s, %s, 16" % (S_T0, S_T0))
g("s_lshl_b32 %s, %s, 14" % (S_T1, S_WAVE))
g("s_add_u32 %s, %s, %s" % (S_T0, S_T0, S_T1))
g("s_bfe_u32 %s, %s, 0x10004" % (S_T1, S_WR))
g("s_lshl_b32 %s, %s, 10" % (S_T1, S_T1))
g("s_add_u32 %s, %s, %s" % (S_T0, S_T0, S_T1))
g("v_lshlrev_b32 %s, 4, %s" % (T[0], V_LANE))
g("v_add_u32 %s, %s, %s" % (T[0], S_T0, T[0]))
g("s_lshr_b32 %s, %s, 5" % (S_T0, S_WR))
g("s_lshl_b32 %s, %s, 14" % (S_T0, S_T0))
g("s_bfe_u32 %s, %s, 0x10004" % (S_T1, S_WR))
g("s_lshl_b32 %s, %s, 8" % (S_T1, S_T1))
g("s_add_u32 %s, %s, %s" % (S_T0, S_T0, S_T1))
g("s_add_u32 %s, %s, 0x%x" % (S_T0, S_T0, O_ML))
g("v_and_b32 %s, 31, %s" % (T[1], V_LANE))
g("v_lshlrev_b32 %s, 9, %s" % (T[1], T[1]))
g("v_lshrrev_b32 %s, 5, %s" % (T[2], V_LANE))
g("v_lshlrev_b32 %s, 7, %s" % (T[2], T[2]))
g("v_add3_u32 %s, %s, %s, %s" % (T[1], T[1], T[2], S_T0))


def e1_issue(i):
    def f():
        if i < 8:
            g("s_add_u32 %s, %s, 0x%x" % (S_OFF, S_WSOFF, i * 2048))
            g("buffer_load_dwordx4 %s, %s, %s, %s offen sc1" % (vr(GO + 4 * i, 4), T[0], SRD_WS, S_OFF))
        else:
            g("buffer_load_dwordx2 %s, %s, %s, %s offen sc1" % (vr(GML, 2), T[1], SRD_WS, S_WSOFF))
    return f


poll_instr([e1_issue(i) for i in range(9)],
           [[v(GO + 4 * i + e) for e in range(4)] for i in range(8)] + [[v(GML), v(GML + 1)]], T[2])
stamp(8)
g("v_mov_b32 %s, %s" % (T[2], v(GML)))
for ctl in ("quad_perm:[1,0,3,2]", "quad_perm:[2,3,0,1]", "row_ror:4", "row_ror:8"):
    dpp("max_f32", T[2], T[2], T[2], ctl)
g("v_mov_b32 %s, %s" % (T[3], T[2]))
g("v_permlane16_swap_b32 %s, %s" % (T[2], T[3]))
g("v_max_f32 %s, %s, %s" % (T[2], T[2], T[3]))
g("v_sub_f32 %s, %s, %s" % (T[2], v(GML), T[2]))
g("v_mul_f32 %s, %s, %s" % (T[2], S_C, T[2]))
g("v_exp_f32 %s, %s" % (T[2], T[2]))
g("v_mul_f32 %s, %s, %s" % (T[3], T[2], v(GML + 1)))
for ctl in ("quad_perm:[1,0,3,2]", "quad_perm:[2,3,0,1]", "row_ror:4", "row_ror:8"):
    dpp("add_f32", T[3], T[3], T[3], ctl)
g("v_mov_b32 %s, %s" % (T[4], T[3]))
g("v_permlane16_swap_b32 %s, %s" % (T[3], T[4]))
g("v_add_f32 %s, %s, %s" % (T[3], T[3], T[4]))
g("v_rcp_f32 %s, %s" % (T[4], T[3]))
g("v_fma_f32 %s, -%s, %s, 1.0" % (T[3], T[3], T[4]))
g("v_fma_f32 %s, %s, %s, %s" % (T[4], T[3], T[4], T[4]))
g("v_mul_f32 %s, %s, %s" % (T[2], T[2], T[4]))
g("v_and_b32 %s, 32, %s" % (T[3], V_LANE))
g("s_lshl_b32 %s, %s, 3" % (S_T0, S_WAVE))
g("v_add_u32 %s, %s, %s" % (T[3], S_T0, T[3]))
g("v_lshlrev_b32 %s, 2, %s" % (T[3], T[3]))
for i in range(8):
    g("v_add_u32 %s, %d, %s" % (T[4], 4 * i, T[3]))
    g("ds_bpermute_b32 %s, %s, %s" % (v(Z + i), T[4], T[2]))
g("s_waitcnt lgkmcnt(0)")
for e in range(4):
    g("v_mul_f32 %s, %s, %s" % (v(PK + e), v(Z), v(GO + e)))
for i in range(1, 8):
    for e in range(4):
        g("v_fmac_f32 %s, %s, %s" % (v(PK + e), v(Z + i), v(GO + 4 * i + e)))
g("s_lshl_b32 %s, %s, 10" % (S_T0, S_WAVE))
g("v_lshlrev_b32 %s, 4, %s" % (T[0], V_LANE))
g("v_add_u32 %s, %s, %s" % (T[1], S_T0, T[0]))
g("ds_write_b128 %s, %s offset:%d" % (T[1], vr(PK, 4), L_B))
g("s_waitcnt lgkmcnt(0)")
g("s_barrier")
for vv in range(4):
    g("ds_read_b128 %s, %s offset:%d" % (vr(D + 4 * vv, 4), T[0], L_B + 1024 * vv))
g("s_waitcnt lgkmcnt(0)")
for e in range(4):
    g("v_add_f32 %s, %s, %s" % (v(D + e), v(D + e), v(D + 4 + e)))
    g("v_add_f32 %s, %s, %s" % (v(D + 8 + e), v(D + 8 + e), v(D + 12 + e)))
    g("v_add_f32 %s, %s, %s" % (v(D + e), v(D + e), v(D + 8 + e)))
rne2(v(D), v(D + 1), T[2])
rne2(v(D + 2), v(D + 3), T[2])
acc8 = [v(Z + i) for i in range(8)]
for a in acc8:
    g("v_mov_b32 %s, 0" % a)
for i in range(4):
    fma_pairs(acc8, [v(WW + 4 * i + k) for k in range(4)], v(D + i), T[2])
reduce_row3(acc8)
g("s_add_u32 %s, %s, 0x%x" % (S_T0, S_UR, O_Y))
store8(Z, T[2], S_WSOFF)
stamp(9)


def residual_update(nparts, obase, rstride, lsh):
    GP = GO
    g("s_lshl_b32 %s, %s, 9" % (S_T0, S_WAVE))
    g("v_lshlrev_b32 %s, 3, %s" % (T[0], V_LANE))
    g("v_add_u32 %s, %s, %s" % (T[0], S_T0, T[0]))
    g("ds_read_b64 %s, %s offset:%d" % (vr(D, 2), T[0], L_X))
    g("v_lshrrev_b32 %s, %d, %s" % (T[1], lsh, V_LANE))
    g("v_lshlrev_b32 %s, 7, %s" % (T[1], T[1]))
    g("v_and_b32 %s, %d, %s" % (T[2], (1 << lsh) - 1, V_LANE))
    g("v_lshlrev_b32 %s, 3, %s" % (T[2], T[2]))
    g("s_lshl_b32 %s, %s, %d" % (S_T0, S_WAVE, 13 - lsh))
    g("s_add_u32 %s, %s, 0x%x" % (S_T0, S_T0, obase))
    g("v_add3_u32 %s, %s, %s, %s" % (T[1], T[1], T[2], S_T0))

    def issue():
        for i in range(nparts):
            g("s_add_u32 %s, %s, 0x%x" % (S_OFF, S_WSOFF, i * rstride))
            g("buffer_load_dwordx2 %s, %s, %s, %s offen sc1" % (vr(GP + 2 * i, 2), T[1], SRD_WS, S_OFF))
    poll(issue, [v(GP + i) for i in range(2 * nparts)], T[2])
    for i in range(1, nparts):
        g("v_add_f32 %s, %s, %s" % (v(GP), v(GP), v(GP + 2 * i)))
        g("v_add_f32 %s, %s, %s" % (v(GP + 1), v(GP + 1), v(GP + 2 * i + 1)))
    rne2(v(GP), v(GP + 1), T[2])
    g("s_waitcnt lgkmcnt(0)")
    g("v_add_f32 %s, %s, %s" % (v(D), v(D), v(GP)))
    g("v_add_f32 %s, %s, %s" % (v(D + 1), v(D + 1), v(GP + 1)))
    rne2(v(D), v(D + 1), T[2])


def read_x_all(XFb):
    g("v_lshlrev_b32 %s, 2, %s" % (T[0], V_LANE))
    g("v_add_u32 %s, 0x%x, %s" % (T[0], L_X, T[0]))
    for k in range(4):
        g("ds_read2st64_b32 %s, %s offset0:%d offset1:%d" % (vr(XFb + 2 * k, 2), T[0], 2 * k, 2 * k + 1))
    g("s_waitcnt lgkmcnt(0)")


residual_update(16, O_Y, 8192, 2)
stamp(10)
g("ds_write_b64 %s, %s offset:%d" % (T[0], vr(D, 2), L_X))
g("s_waitcnt lgkmcnt(0)")
g("s_barrier")
XFb = D
g("s_cmp_ge_u32 s2, 224")
g("s_cbranch_scc1 L_nogu")
g("s_cmp_ge_u32 %s, 2" % S_WAVE)
g("s_cbranch_scc1 L_nogu")
read_x_all(XFb)
layernorm([v(XFb + i) for i in range(8)], XN, T[0], T[1], T[2])
accg = [v(PK + i) for i in range(8)]
for a in accg:
    g("v_mov_b32 %s, 0" % a)
for i in range(8):
    fma_pairs(accg[0:4], [v(GW + 2 * i), v(GW + 2 * i + 1)], XN[i], T[0])
    fma_pairs(accg[4:8], [v(GW + 16 + 2 * i), v(GW + 16 + 2 * i + 1)], XN[i], T[0])
reduce_row3(accg)
for k in range(0, 8, 2):
    rne2(accg[k], accg[k + 1], T[0])
for k in range(4):
    g("v_max_f32 %s, 0, %s" % (accg[k], accg[k]))
    g("v_mul_f32 %s, %s, %s" % (accg[k], accg[k], accg[4 + k]))
rne2(accg[0], accg[1], T[0])
rne2(accg[2], accg[3], T[0])
g("s_add_u32 %s, %s, 0x%x" % (S_T0, S_UH, O_H))
g("v_mov_b32 %s, %s" % (T[0], S_T0))
lane63()
g("buffer_store_dwordx4 %s, %s, %s, %s offen sc1" % (vr(PK, 4), T[0], SRD_WS, S_WSOFF))
exec_all()
g.label("L_nogu")

stamp(11)
g("s_lshr_b32 %s, %s, 5" % (S_T0, S_WR))
g("s_mul_i32 %s, %s, %d" % (S_T0, S_T0, 56 * 128))
g("s_add_u32 %s, %s, 0x%x" % (S_T0, S_T0, O_H))
g("v_lshlrev_b32 %s, 7, %s" % (T[0], V_LANE))
g("v_add_u32 %s, %s, %s" % (T[0], S_T0, T[0]))
accd = [v(PK + i) for i in range(4)]
for a in accd:
    g("v_mov_b32 %s, 0" % a)
exec56()


def e3_issue():
    g("buffer_load_dwordx4 %s, %s, %s, %s offen sc1" % (vr(D, 4), T[0], SRD_WS, S_WSOFF))


poll(e3_issue, [v(D + i) for i in range(4)], T[1], restore=exec56)
stamp(12)
for i in range(4):
    fma_pairs(accd, [v(DW + 2 * i), v(DW + 2 * i + 1)], v(D + i), T[1])
exec_all()
reduce_row3(accd)
g("s_add_u32 %s, %s, 0x%x" % (S_T0, S_UR, O_DN))
g("v_mov_b32 %s, %s" % (T[0], S_T0))
lane63()
g("buffer_store_dwordx4 %s, %s, %s, %s offen sc1" % (vr(PK, 4), T[0], SRD_WS, S_WSOFF))
exec_all()
stamp(13)
g("s_cmp_lg_u32 %s, 0" % S_IT)
g("s_cbranch_scc1 L_final")

residual_update(8, O_DN, 16384, 1)
stamp(14)
g("ds_write_b64 %s, %s offset:%d" % (T[0], vr(D, 2), L_X))
stream_piece(SRD_K, V_KOFF, 0, 0)
g("s_waitcnt lgkmcnt(0)")
g("s_barrier")
g("s_cmp_lt_u32 %s, 2" % S_WAVE)
g("s_cbranch_scc1 L_noq2")
read_x_all(XFb)
layernorm([v(XFb + i) for i in range(8)], XN, T[0], T[1], T[2])
qproj_compute_publish(QW, XN, PK, S_WSNEXT)
g.label("L_noq2")
stream_piece(SRD_K, V_KOFF, 1, 1)
stamp(15)
gather_q(S_WSNEXT)
stamp(16)
stamp_shift()
g("s_mov_b32 %s, 1" % S_IT)
g("s_mov_b32 %s, 0x%x" % (S_WSOFF, ITS))
g("s_branch L_main")

g.label("L_final")
stamp_dump()
g("s_cmp_lg_u32 s2, 0")
g("s_cbranch_scc1 L_exit")
residual_update(8, O_DN, 16384, 1)
g("v_cvt_pk_bf16_f32 %s, %s, %s" % (T[2], v(D), v(D + 1)))
g("v_lshrrev_b32 %s, 1, %s" % (T[0], T[0]))
g("buffer_store_dword %s, %s, %s, 0 offen" % (T[2], T[0], SRD_OUT))
g("s_waitcnt vmcnt(0)")
g.label("L_exit")
g("s_endpgm")

body = g.finalize()

ref = open("interleave_layers__gqa_block_cached__glu_gated_reglu__decode.s.ref").read()
head = []
for l in ref.splitlines():
    if l.startswith("; @launch"):
        head.append("; @launch grid=(256,1,1) block=(256,1,1) lds=%d" % LDS_BYTES)
        break
    head.append(l)
out = "\n".join(head) + """
.amdgcn_target "amdgcn-amd-amdhsa--gfx950"
.text
.globl %s
.p2align 8
.type %s,@function
%s:
""" % (NAME, NAME, NAME) + body + """
.section .rodata,"a"
.p2align 6
.amdhsa_kernel %s
  .amdhsa_next_free_vgpr 512
  .amdhsa_next_free_sgpr 102
  .amdhsa_accum_offset 256
  .amdhsa_group_segment_fixed_size 0
  .amdhsa_kernarg_size 96
  .amdhsa_user_sgpr_count 2
  .amdhsa_user_sgpr_kernarg_segment_ptr 1
  .amdhsa_system_sgpr_workgroup_id_x 1
  .amdhsa_float_denorm_mode_32 3
.end_amdhsa_kernel
""" % NAME
path = sys.argv[1] if len(sys.argv) > 1 else "interleave_layers__gqa_block_cached__glu_gated_reglu__decode.s"
open(path, "w").write(out)
print("wrote", path, len(out.splitlines()), "lines")
```

```python
import os
import struct
import sys
from asmlib import Asm

NAME = "interleave_layers__gqa_block_cached__glu_gated_reglu__decode_kernel"
NT = " nt"
WQPOL = os.environ.get("WQPOL", "")
WPOL = os.environ.get("WPOL", "")
DEBUG = len(sys.argv) > 2 and sys.argv[2].startswith("dbg")
VST = len(sys.argv) > 2 and sys.argv[2] == "dbgv"

O_PART, O_ML, O_Y, O_H, O_DN, O_Q = 0x0, 0x80000, 0x88000, 0x90000, 0x98000, 0xA0000
ITS = 0x100000
WS_BYTES = 0x400000
O_DBG = 0x200000

NLDS = 36
L_SCR = 0
L_V = 16384
L_A = L_SCR
L_ML = L_A + 8192
L_E = L_ML
L_B = L_ML + 128
L_X = L_B + 4096
LDS_BYTES = 163840
assert L_X + 2048 <= L_V and L_V + 4 * NLDS * 1024 <= LDS_BYTES

SRD_K, SRD_V, SRD_WS, SRD_WQ, SRD_WO, SRD_WG, SRD_WU, SRD_WD, SRD_X, SRD_OUT, SRD_DBG = [
    "s[%d:%d]" % (i, i + 3) for i in range(8, 52, 4)]
S_WAVE, S_OFF, S_IT, S_WSOFF, S_TMO, S_SELLO, S_SELHI, S_HIM, S_C = [
    "s%d" % i for i in range(52, 61)]
S_R0, S_R1, S_R2, S_R3 = "s61", "s62", "s63", "s64"
S_T0, S_T1, S_T2, S_T3 = "s65", "s66", "s67", "s68"
S_WSNEXT = "s69"
S_ROT = "s99"
ROT = os.environ.get("ROT", "1")
ROT = 0 if ROT == "0" else ROT
S_WR, S_HR, S_PM, S_UR, S_UH = "s3", "s4", "s5", "s6", "s7"

V_TID, V_LANE, V_KOFF, V_VOFF = "v0", "v1", "v2", "v3"
T = ["v%d" % i for i in range(4, 10)]
V_M, V_L = "v10", "v11"
QOP = 12
Z = 16
PK = 24
PKS = 28
D = 32
ACC = 48
LAND = 80
VC = 144


def v(i):
    return "v%d" % i


def vr(i, n):
    return "v[%d:%d]" % (i, i + n - 1)


def f32bits(x):
    return "0x%08x" % struct.unpack("<I", struct.pack("<f", x))[0]


g = Asm()
_lbl = [0]


def newlabel(p):
    _lbl[0] += 1
    return "L_%s_%d" % (p, _lbl[0])


def dpp(op, dst, s0, s1, ctl, row=0xF, bank=0xF):
    g("v_%s_dpp %s, %s, %s %s row_mask:0x%x bank_mask:0x%x" % (op, dst, s0, s1, ctl, row, bank))


def reduce_row3(regs, op="add_f32"):
    for ctl in ("quad_perm:[1,0,3,2]", "quad_perm:[2,3,0,1]", "row_ror:4", "row_ror:8"):
        for r in regs:
            dpp(op, r, r, r, ctl)
    for r in regs:
        dpp(op, r, r, r, "row_bcast:15", row=0xA)
    for r in regs:
        dpp(op, r, r, r, "row_bcast:31", row=0xC)


def rne1(dst, src):
    g("v_cvt_pk_bf16_f32 %s, %s, %s" % (dst, src, src))
    g("v_lshlrev_b32 %s, 16, %s" % (dst, dst))


def rne2(a, b, tmp):
    g("v_cvt_pk_bf16_f32 %s, %s, %s" % (tmp, a, b))
    g("v_lshlrev_b32 %s, 16, %s" % (a, tmp))
    g("v_and_b32 %s, %s, %s" % (b, S_HIM, tmp))


def umax(tmp, rs):
    rs = list(rs)
    if len(rs) == 1:
        g("v_mov_b32 %s, %s" % (tmp, rs[0]))
        return
    if len(rs) >= 3:
        g("v_max3_u32 %s, %s, %s, %s" % (tmp, rs[0], rs[1], rs[2]))
        rs = rs[3:]
    else:
        g("v_max_u32 %s, %s, %s" % (tmp, rs[0], rs[1]))
        rs = rs[2:]
    while rs:
        if len(rs) >= 2:
            g("v_max3_u32 %s, %s, %s, %s" % (tmp, tmp, rs[0], rs[1]))
            rs = rs[2:]
        else:
            g("v_max_u32 %s, %s, %s" % (tmp, tmp, rs[0]))
            rs = rs[1:]


def timeout_loop(lp):
    g("s_sub_u32 %s, %s, 1" % (S_TMO, S_TMO))
    g("s_cmp_eq_u32 %s, 0" % S_TMO)
    g("s_cbranch_scc0 %s" % lp)
    g("s_mov_b32 %s, 1" % S_TMO)


def poll(issue, regs, tmp, restore=None):
    lp, done = newlabel("poll"), newlabel("pdone")
    g.label(lp)
    issue()
    g("s_waitcnt vmcnt(0)")
    umax(tmp, regs)
    g("v_cmp_eq_u32 vcc, -1, %s" % tmp)
    g("s_cbranch_vccz %s" % done)
    g("s_mov_b64 exec, vcc")
    timeout_loop(lp)
    g.label(done)
    (restore or exec_all)()


def poll_instr(issues, regsets, tmp):
    lp, done = newlabel("poll"), newlabel("pdone")
    g("s_mov_b32 %s, 0x%x" % (S_PM, (1 << len(issues)) - 1))
    g.label(lp)
    for i, iss in enumerate(issues):
        g("s_bitcmp1_b32 %s, %d" % (S_PM, i))
        g("s_cselect_b64 exec, -1, 0")
        iss()
    exec_all()
    g("s_waitcnt vmcnt(0)")
    g("s_mov_b32 %s, 0" % S_PM)
    for i, rs in enumerate(regsets):
        umax(tmp, rs)
        g("v_cmp_eq_u32 vcc, -1, %s" % tmp)
        g("s_cmp_lg_u64 vcc, 0")
        g("s_cselect_b32 %s, %d, 0" % (S_T3, 1 << i))
        g("s_or_b32 %s, %s, %s" % (S_PM, S_PM, S_T3))
    g("s_cmp_eq_u32 %s, 0" % S_PM)
    g("s_cbranch_scc1 %s" % done)
    timeout_loop(lp)
    g.label(done)


def layernorm(X, XN, t0, t1, t2):
    g("v_add_f32 %s, %s, %s" % (t0, X[0], X[1]))
    for i in range(2, 8):
        g("v_add_f32 %s, %s, %s" % (t0, t0, X[i]))
    reduce_row3([t0])
    g("v_readlane_b32 %s, %s, 63" % (S_R0, t0))
    g("v_mov_b32 %s, %s" % (t1, S_R0))
    g("v_mul_f32 %s, %s, %s" % (t1, f32bits(1.0 / 512), t1))
    for i in range(8):
        g("v_sub_f32 %s, %s, %s" % (XN[i], X[i], t1))
    g("v_mul_f32 %s, %s, %s" % (t0, XN[0], XN[0]))
    for i in range(1, 8):
        g("v_fmac_f32 %s, %s, %s" % (t0, XN[i], XN[i]))
    reduce_row3([t0])
    g("v_readlane_b32 %s, %s, 63" % (S_R0, t0))
    g("v_mov_b32 %s, %s" % (t0, S_R0))
    g("v_mul_f32 %s, %s, %s" % (t0, f32bits(1.0 / 512), t0))
    rne1(t1, t1)
    rne1(t0, t0)
    g("v_add_f32 %s, %s, %s" % (t0, f32bits(1e-5), t0))
    rne1(t0, t0)
    g("v_sqrt_f32 %s, %s" % (t0, t0))
    rne1(t0, t0)
    g("v_rcp_f32 %s, %s" % (t2, t0))
    for i in range(0, 8, 2):
        g("v_sub_f32 %s, %s, %s" % (XN[i], X[i], t1))
        g("v_sub_f32 %s, %s, %s" % (XN[i + 1], X[i + 1], t1))
        rne2(XN[i], XN[i + 1], X[i])
        for k in (i, i + 1):
            g("v_mul_f32 %s, %s, %s" % (X[k], XN[k], t2))
            g("v_fma_f32 %s, -%s, %s, %s" % (XN[k], X[k], t0, XN[k]))
            g("v_fma_f32 %s, %s, %s, %s" % (XN[k], XN[k], t2, X[k]))
        rne2(XN[i], XN[i + 1], X[i])


def fma_pairs(acc, wregs, x, t):
    for k, w in enumerate(wregs):
        g("v_lshlrev_b32 %s, 16, %s" % (t, w))
        g("v_fmac_f32 %s, %s, %s" % (acc[2 * k], x, t))
        g("v_and_b32 %s, %s, %s" % (t, S_HIM, w))
        g("v_fmac_f32 %s, %s, %s" % (acc[2 * k + 1], x, t))


def stream_piece(srd, voff, piece, slot):
    base = LAND + 32 * slot
    for half in range(2):
        if ROT:
            if half == 0:
                g("s_add_u32 %s, %s, 0x%x" % (S_OFF, S_ROT, piece * 8192))
                g("s_and_b32 %s, %s, 0x1ffff" % (S_OFF, S_OFF))
            else:
                g("s_add_u32 %s, %s, 0x1000" % (S_OFF, S_OFF))
        else:
            g("s_mov_b32 %s, 0x%x" % (S_OFF, piece * 8192 + half * 4096))
        for n in range(4):
            r = base + 16 * half + 4 * n
            g("buffer_load_dwordx4 %s, %s, %s, %s offen offset:%d%s" % (vr(r, 4), voff, srd, S_OFF, n * 1024, NT))


def lane63():
    g("s_mov_b32 exec_lo, 0")
    g("s_mov_b32 exec_hi, 0x80000000")


def exec_all():
    g("s_mov_b64 exec, -1")


def qproj_loads(W):
    g("v_lshlrev_b32 %s, 13, %s" % (T[0], V_LANE))
    g("s_lshl_b32 %s, %s, 5" % (S_T0, S_WR))
    g("s_lshl_b32 %s, %s, 4" % (S_T1, S_WAVE))
    g("s_add_u32 %s, %s, %s" % (S_T0, S_T0, S_T1))
    g("s_sub_u32 %s, %s, 32" % (S_T0, S_T0))
    g("v_add_u32 %s, %s, %s" % (T[0], S_T0, T[0]))
    for i in range(8):
        g("s_mov_b32 %s, 0x%x" % (S_OFF, i * 64 * 8192))
        g("buffer_load_dwordx4 %s, %s, %s, %s offen%s" % (vr(W + 4 * i, 4), T[0], SRD_WQ, S_OFF, WQPOL))


def hand_in(A, nq, off, wave0, t):
    g("s_mul_i32 %s, %s, %d" % (S_T0, S_WAVE, 16 * nq))
    g("v_mov_b32 %s, %s" % (t, S_T0))
    lane63()
    for k in range(nq):
        g("ds_write_b128 %s, %s offset:%d" % (t, vr(A + 4 * k, 4), L_E + off - 16 * nq * wave0 + 16 * k))
    exec_all()
    g("s_waitcnt lgkmcnt(0)")


def hand_out(nl, off, srole, obase, soff, A, t):
    skip = newlabel("nopub")
    g("s_cmp_lg_u32 %s, 0" % S_WAVE)
    g("s_cbranch_scc1 %s" % skip)
    g("v_lshlrev_b32 %s, 4, %s" % (t, V_LANE))
    g("s_mov_b64 exec, 0x%x" % ((1 << nl) - 1))
    g("ds_read_b128 %s, %s offset:%d" % (vr(A, 4), t, L_E + off))
    g("s_lshl_b32 %s, %s, 7" % (S_T0, srole))
    g("s_add_u32 %s, %s, 0x%x" % (S_T0, S_T0, obase))
    g("v_add_u32 %s, %s, %s" % (t, S_T0, t))
    g("s_waitcnt lgkmcnt(0)")
    g("buffer_store_dwordx4 %s, %s, %s, %s offen sc1" % (vr(A, 4), t, SRD_WS, soff))
    exec_all()
    g.label(skip)


def qproj_compute(W, XN, A):
    acc = [v(A + i) for i in range(8)]
    for a in acc:
        g("v_mov_b32 %s, 0" % a)
    for i in range(8):
        fma_pairs(acc, [v(W + 4 * i + k) for k in range(4)], XN[i], T[1])
    reduce_row3(acc)
    for k in range(0, 8, 2):
        rne2(acc[k], acc[k + 1], T[1])
    hand_in(A, 2, 64, 2, T[1])


def gather_q_addr():
    g("v_and_b32 %s, 3, %s" % (T[0], V_LANE))
    g("v_lshlrev_b32 %s, 10, %s" % (T[0], T[0]))
    g("v_lshrrev_b32 %s, 4, %s" % (T[1], V_LANE))
    g("v_lshlrev_b32 %s, 8, %s" % (T[1], T[1]))
    g("v_add_u32 %s, %s, %s" % (T[0], T[0], T[1]))
    g("v_bfe_u32 %s, %s, 3, 1" % (T[1], V_LANE))
    g("v_lshlrev_b32 %s, 7, %s" % (T[1], T[1]))
    g("v_add_u32 %s, %s, %s" % (T[0], T[0], T[1]))
    g("v_bfe_u32 %s, %s, 2, 1" % (T[1], V_LANE))
    g("v_lshlrev_b32 %s, 5, %s" % (T[1], T[1]))
    g("v_add_u32 %s, %s, %s" % (T[0], T[0], T[1]))
    g("s_lshr_b32 %s, s2, 5" % S_T0)
    g("s_lshl_b32 %s, %s, 12" % (S_T0, S_T0))
    g("s_add_u32 %s, %s, 0x%x" % (S_T0, S_T0, O_Q))
    g("v_add_u32 %s, %s, %s" % (T[0], S_T0, T[0]))


def gather_q(soff):
    gather_q_addr()

    def issue():
        g("buffer_load_dwordx4 %s, %s, %s, %s offen sc1" % (vr(D, 4), T[0], SRD_WS, soff))
        g("buffer_load_dwordx4 %s, %s, %s, %s offen offset:16 sc1" % (vr(D + 4, 4), T[0], SRD_WS, soff))
    poll(issue, [v(D + i) for i in range(8)], T[1])
    for p in range(4):
        g("v_cvt_pk_bf16_f32 %s, %s, %s" % (v(QOP + p), v(D + 2 * p), v(D + 2 * p + 1)))


def vop_loc(o):
    if o < 64:
        return ("a", 4 * o)
    if o < 64 + NLDS:
        return ("l", (o - 64) * 1024)
    return ("v", VC + 4 * (o - 64 - NLDS))


def stamp(k):
    if not DEBUG:
        return
    g("s_memrealtime s[100:101]")
    g("s_waitcnt lgkmcnt(0)")
    g("s_mov_b32 s%d, s100" % (70 + k))


def stamp_shift():
    if not DEBUG or VST:
        return
    for k in range(12):
        g("s_mov_b32 s%d, s%d" % (87 + k, 75 + k))


def stamp_dump():
    if not DEBUG:
        return
    g("s_lshl_b32 s100, s2, 2")
    g("s_add_u32 s100, s100, %s" % S_WAVE)
    g("s_lshl_b32 s100, s100, 8")
    g("s_add_u32 s100, s100, 0x%x" % O_DBG)
    g("s_mov_b64 exec, 1")
    g("v_mov_b32 v255, s100")
    for k in range(29):
        g("v_mov_b32 v254, s%d" % (70 + k))
        g("buffer_store_dword v254, v255, %s, 0 offen offset:%d" % (SRD_WS, 4 * k))
        g("s_waitcnt vmcnt(0)")
    g("s_mov_b64 exec, -1")


g("s_load_dwordx16 s[64:79], s[0:1], 0")
g("s_load_dwordx8 s[80:87], s[0:1], 64")
g("v_and_b32 %s, 63, %s" % (V_LANE, V_TID))
g("v_lshrrev_b32 %s, 6, %s" % (T[0], V_TID))
g("v_readfirstlane_b32 %s, %s" % (S_WAVE, T[0]))
g("s_cmp_ge_u32 s2, 256")
g("s_cbranch_scc1 L_exit")
g("s_waitcnt lgkmcnt(0)")


def mk_srd(srd, plo, nbytes):
    b = int(srd[2:].split(":")[0])
    g("s_mov_b32 s%d, s%d" % (b, plo))
    g("s_and_b32 s%d, s%d, 0xffff" % (b + 1, plo + 1))
    g("s_mov_b32 s%d, 0x%x" % (b + 2, nbytes))
    g("s_mov_b32 s%d, 0x00020000" % (b + 3))


mk_srd(SRD_X, 64, 1024)
mk_srd(SRD_K, 66, 0x8000000)
mk_srd(SRD_V, 68, 0x8000000)
mk_srd(SRD_WQ, 70, 512 * 4096 * 2)
mk_srd(SRD_WO, 72, 4096 * 512 * 2)
mk_srd(SRD_WG, 76, 512 * 1792 * 2)
mk_srd(SRD_WU, 78, 512 * 1792 * 2)
mk_srd(SRD_WD, 80, 1792 * 512 * 2)
mk_srd(SRD_OUT, 82, 1024)
mk_srd(SRD_DBG, 84, 256)
mk_srd(SRD_WS, 86, WS_BYTES)
g("s_mov_b32 %s, 0" % S_IT)
stamp(0)
g("s_mov_b32 %s, 0" % S_WSOFF)
g("s_and_b32 %s, s2, 7" % S_T0)
g("s_lshr_b32 %s, s2, 3" % S_T1)
g("s_lshl_b32 %s, %s, 5" % (S_WR, S_T0))
g("s_add_u32 %s, %s, %s" % (S_WR, S_WR, S_T1))
g("s_mul_i32 %s, %s, 28" % (S_HR, S_T0))
g("s_add_u32 %s, %s, %s" % (S_HR, S_HR, S_T1))
g("s_mov_b32 %s, 0x%x" % (S_WSNEXT, ITS))
g("s_mov_b32 %s, 400000" % S_TMO)
g("s_mov_b32 %s, 0x05040100" % S_SELLO)
g("s_mov_b32 %s, 0x07060302" % S_SELHI)
g("s_mov_b32 %s, 0xffff0000" % S_HIM)
g("s_mov_b32 %s, %s" % (S_C, f32bits(128 ** -0.5 * 1.4426950408889634)))
if ROT == "1":
    g("s_lshl_b32 %s, s2, 2" % S_ROT)
    g("s_add_u32 %s, %s, %s" % (S_ROT, S_ROT, S_WAVE))
    g("s_and_b32 %s, %s, 15" % (S_ROT, S_ROT))
    g("s_lshl_b32 %s, %s, 13" % (S_ROT, S_ROT))
elif ROT == "2":
    g("s_lshr_b32 %s, s2, 3" % S_ROT)
    g("s_lshl_b32 %s, %s, 2" % (S_ROT, S_ROT))
    g("s_add_u32 %s, %s, %s" % (S_ROT, S_ROT, S_WAVE))
    g("s_and_b32 %s, %s, 15" % (S_ROT, S_ROT))
    g("s_lshl_b32 %s, %s, 13" % (S_ROT, S_ROT))
g("s_lshl_b32 %s, s2, 19" % S_T0)
g("s_lshl_b32 %s, %s, 17" % (S_T1, S_WAVE))
g("s_add_u32 %s, %s, %s" % (S_T0, S_T0, S_T1))
g("v_bfe_u32 %s, %s, 2, 2" % (T[0], V_LANE))
g("v_lshlrev_b32 %s, 8, %s" % (T[0], T[0]))
g("v_lshrrev_b32 %s, 4, %s" % (T[1], V_LANE))
g("v_lshlrev_b32 %s, 6, %s" % (T[1], T[1]))
g("v_and_b32 %s, 3, %s" % (T[2], V_LANE))
g("v_lshlrev_b32 %s, 4, %s" % (T[2], T[2]))
g("v_add3_u32 %s, %s, %s, %s" % (V_KOFF, T[0], T[1], T[2]))
g("v_add_u32 %s, %s, %s" % (V_KOFF, S_T0, V_KOFF))
g("v_lshlrev_b32 %s, 4, %s" % (V_VOFF, V_LANE))
g("v_add_u32 %s, %s, %s" % (V_VOFF, S_T0, V_VOFF))

g("v_mov_b32 %s, -1" % T[4])
g("v_mov_b32 %s, -1" % T[5])
g("v_lshlrev_b32 %s, 3, %s" % (T[0], V_TID))
g("s_lshl_b32 %s, s2, 11" % S_T0)
g("v_add_u32 %s, %s, %s" % (T[0], S_T0, T[0]))
g("buffer_store_dwordx2 %s, %s, %s, 0 offen sc1" % (vr(8, 2), T[0], SRD_WS))
g("buffer_store_dwordx2 %s, %s, %s, %s offen sc1" % (vr(8, 2), T[0], SRD_WS, S_WSNEXT))
g("v_lshlrev_b32 %s, 3, %s" % (T[1], V_LANE))


def clear_small(nl, sbase_code):
    sbase_code()
    g("v_add_u32 %s, %s, %s" % (T[0], S_T0, T[1]))
    g("s_mov_b64 exec, 0x%x" % ((1 << nl) - 1))
    g("buffer_store_dwordx2 %s, %s, %s, 0 offen sc1" % (vr(8, 2), T[0], SRD_WS))
    g("buffer_store_dwordx2 %s, %s, %s, %s offen sc1" % (vr(8, 2), T[0], SRD_WS, S_WSNEXT))
    exec_all()


def role_base(srole, obase):
    def f():
        g("s_lshl_b32 %s, %s, 7" % (S_T0, srole))
        g("s_add_u32 %s, %s, 0x%x" % (S_T0, S_T0, obase))
    return f


if VST:
    stamp(17)
g("s_cmp_lt_u32 %s, 2" % S_WAVE)
g("s_cbranch_scc1 L_clear0")
qproj_loads(ACC)
g("s_branch L_noclear")
g.label("L_clear0")
g("s_cmp_lg_u32 %s, 0" % S_WAVE)
g("s_cbranch_scc1 L_noclear")
clear_small(4, role_base("s2", O_ML))
clear_small(16, role_base(S_WR, O_Y))
clear_small(8, role_base(S_WR, O_DN))
clear_small(8, role_base(S_WR, O_Q))
g("s_cmp_ge_u32 s2, 224")
g("s_cbranch_scc1 L_noclear")
clear_small(4, role_base(S_HR, O_H))
g.label("L_noclear")
if VST:
    stamp(18)

XR = QOP
XF = [v(PK + i) for i in range(8)]
XN = [v(Z + i) for i in range(8)]
DUM = ACC + 28
CNT = ACC + 16
QG = ACC
ops = []


def note(tag, n):
    ops.extend([tag] * n)


def wait_for(tag):
    last = max(i for i, t in enumerate(ops) if t == tag)
    g("s_waitcnt vmcnt(%d)" % (len(ops) - 1 - last))


def exec56():
    g("s_mov_b32 exec_lo, -1")
    g("s_mov_b32 exec_hi, 0x00ffffff")


def warm(which):
    g("s_and_b32 %s, s2, 7" % S_T0)
    g("s_lshr_b32 %s, s2, 3" % S_T1)
    if which == "wq":
        g("s_lshl_b32 %s, %s, 10" % (S_T0, S_T0))
        g("s_lshl_b32 %s, %s, 17" % (S_T1, S_T1))
        g("s_add_u32 %s, %s, %s" % (S_T0, S_T0, S_T1))
        g("s_lshl_b32 %s, %s, 15" % (S_T1, S_WAVE))
        g("s_add_u32 %s, %s, %s" % (S_T0, S_T0, S_T1))
        for i in range(4):
            g("s_add_u32 %s, %s, 0x%x" % (S_OFF, S_T0, i * 8192))
            g("buffer_load_dwordx4 %s, %s, %s, %s offen" % (vr(DUM, 4), T[3], SRD_WQ, S_OFF))
        note("warm", 4)
    elif which == "wo":
        g("s_lshl_b32 %s, %s, 19" % (S_T0, S_T0))
        g("s_lshl_b32 %s, %s, 14" % (S_T1, S_T1))
        g("s_add_u32 %s, %s, %s" % (S_T0, S_T0, S_T1))
        g("s_lshl_b32 %s, %s, 12" % (S_T1, S_WAVE))
        g("s_add_u32 %s, %s, %s" % (S_T0, S_T0, S_T1))
        for i in range(4):
            g("buffer_load_dwordx4 %s, %s, %s, %s offen offset:%d" % (vr(DUM, 4), T[3], SRD_WO, S_T0, i * 1024))
        note("warm", 4)
    elif which == "wd":
        g("s_mul_i32 %s, %s, 229376" % (S_T0, S_T0))
        g("s_mul_i32 %s, %s, 7168" % (S_T1, S_T1))
        g("s_add_u32 %s, %s, %s" % (S_T0, S_T0, S_T1))
        g("s_mul_i32 %s, %s, 1792" % (S_T1, S_WAVE))
        g("s_add_u32 %s, %s, %s" % (S_T0, S_T0, S_T1))
        exec56()
        for i in range(2):
            g("buffer_load_dwordx4 %s, %s, %s, %s offen offset:%d" % (vr(DUM, 4), T[3], SRD_WD, S_T0, i * 896))
        exec_all()
        note("warm", 2)
    elif which == "gu":
        g("s_mul_i32 %s, %s, 448" % (S_T0, S_T0))
        g("s_mul_i32 %s, %s, %d" % (S_T1, S_T1, 16 * 3584))
        g("s_add_u32 %s, %s, %s" % (S_T0, S_T0, S_T1))
        g("s_mul_i32 %s, %s, %d" % (S_T1, S_WAVE, 4 * 3584))
        g("s_add_u32 %s, %s, %s" % (S_T0, S_T0, S_T1))
        g("v_cmp_le_u32 vcc, 28, %s" % V_LANE)
        g("v_mov_b32 %s, %d" % (T[2], 3584 - 448))
        g("v_cndmask_b32 %s, 0, %s, vcc" % (T[2], T[2]))
        g("v_add_u32 %s, %s, %s" % (T[2], T[2], T[3]))
        exec56()
        for i in range(2):
            g("s_add_u32 %s, %s, %d" % (S_OFF, S_T0, i * 2 * 3584))
            g("buffer_load_dwordx4 %s, %s, %s, %s offen" % (vr(DUM, 4), T[2], SRD_WG, S_OFF))
            g("buffer_load_dwordx4 %s, %s, %s, %s offen" % (vr(DUM, 4), T[2], SRD_WU, S_OFF))
        exec_all()
        note("warm", 4)


g("v_lshlrev_b32 %s, 1, %s" % (T[3], V_LANE))
for i in range(8):
    g("buffer_load_ushort %s, %s, %s, 0 offen offset:%d" % (XF[i], T[3], SRD_X, 128 * i))
stream_piece(SRD_V, V_VOFF, 0, 0)
note("p0", 8)
if VST:
    stamp(19)
stream_piece(SRD_V, V_VOFF, 1, 1)
note("p1", 8)
stamp(1)

g("v_lshlrev_b32 %s, 4, %s" % (T[5], V_LANE))
g("s_mul_i32 %s, %s, %d" % (S_T0, S_WAVE, NLDS * 1024))
g("s_add_u32 %s, %s, %d" % (S_T0, S_T0, L_V))
g("v_add_u32 %s, %s, %s" % (T[5], S_T0, T[5]))
V_LDSV = T[5]
U_Q, U_ARR = 0, 1
WARM = os.environ.get('WARM', '0') == '1'
for u in range(16):
    slot = u % 2
    R = LAND + 32 * slot
    wait_for("p%d" % u)
    if VST and u < 9:
        stamp(20 + u)
    for s in range(8):
        w_, b = s // 2, s % 2
        kind, loc = vop_loc(8 * u + s)
        sel = S_SELHI if b else S_SELLO
        tmpb = D + 4 * (s % 4)
        for p in range(4):
            dst = v(loc + p) if kind == "v" else v(tmpb + p)
            g("v_perm_b32 %s, %s, %s, %s" % (dst, v(R + 4 * (2 * p + 1) + w_), v(R + 4 * (2 * p) + w_), sel))
        if kind == "a":
            for p in range(4):
                g("v_accvgpr_write_b32 a%d, %s" % (loc + p, v(tmpb + p)))
        elif kind == "l":
            g("ds_write_b128 %s, %s offset:%d" % (V_LDSV, vr(tmpb, 4), loc))
            if s % 4 == 3:
                g("s_waitcnt lgkmcnt(0)")
    if u + 2 < 16:
        stream_piece(SRD_V, V_VOFF, u + 2, slot)
    else:
        stream_piece(SRD_K, V_KOFF, u + 2 - 16, slot)
    note("p%d" % (u + 2), 8)
    if WARM and u in (6, 8, 10):
        g("v_lshlrev_b32 %s, 4, %s" % (T[3], V_LANE))
        warm({6: "wo", 8: "gu", 10: "wd"}[u])
    if u == U_Q:
        g.comment("x, wq have landed (older than the piece just waited for): LN, q projection, publish q1 slice")
        for i in range(8):
            g("v_lshlrev_b32 %s, 16, %s" % (XF[i], XF[i]))
        g("s_cmp_lg_u32 %s, 0" % S_WAVE)
        g("s_cbranch_scc1 L_nox")
        g("v_lshlrev_b32 %s, 2, %s" % (T[2], V_LANE))
        for i in range(8):
            g("ds_write_b32 %s, %s offset:%d" % (T[2], XF[i], L_X + 256 * i))
        g("s_waitcnt lgkmcnt(0)")
        g.label("L_nox")
        g("s_cmp_lt_u32 %s, 2" % S_WAVE)
        g("s_cbranch_scc1 L_noq1")
        layernorm(XF, XN, T[2], T[3], T[4])
        qproj_compute(ACC, XN, PK)
        g.label("L_noq1")
    if u == U_ARR:
        g.comment("clears and the q1 store are complete (older than the piece just waited for): arrive")
        g("s_barrier")
        g("s_cmp_lg_u32 %s, 0" % S_WAVE)
        g("s_cbranch_scc1 L_noarr")
        g("v_mov_b32 %s, 0" % T[0])
        g("v_mov_b32 %s, 1" % T[1])
        g("s_mov_b64 exec, 1")
        g("buffer_atomic_add %s, %s, %s, 0 offen sc1" % (T[1], T[0], SRD_DBG))
        exec_all()
        g.label("L_noarr")
        hand_out(4, 64, S_WR, O_Q, "0", PK, T[0])
    if u == 13:
        g("v_mov_b32 %s, 0" % T[0])
        g("buffer_load_dword %s, %s, %s, 0 offen sc1" % (v(CNT), T[0], SRD_DBG))
        note("cnt", 1)
    if u == 14:
        stamp(2)
        lp, done = newlabel("cnt"), newlabel("cdone")
        wait_for("cnt")
        g("v_mov_b32 %s, 0" % T[0])
        g.label(lp)
        g("v_readfirstlane_b32 %s, %s" % (S_T0, v(CNT)))
        g("s_cmp_ge_u32 %s, 256" % S_T0)
        g("s_cbranch_scc1 %s" % done)
        g("buffer_load_dword %s, %s, %s, 0 offen sc1" % (v(CNT), T[0], SRD_DBG))
        g("s_waitcnt vmcnt(0)")
        timeout_loop(lp)
        g.label(done)
        gather_q_addr()
        g("buffer_load_dwordx4 %s, %s, %s, 0 offen sc1" % (vr(QG, 4), T[0], SRD_WS))
        g("buffer_load_dwordx4 %s, %s, %s, 0 offen offset:16 sc1" % (vr(QG + 4, 4), T[0], SRD_WS))
        note("qg", 2)
        stamp(3)
wait_for("qg")
umax(T[1], [v(QG + i) for i in range(8)])
g("v_cmp_eq_u32 vcc, -1, %s" % T[1])
for p in range(4):
    g("v_cvt_pk_bf16_f32 %s, %s, %s" % (v(QOP + p), v(QG + 2 * p), v(QG + 2 * p + 1)))
g("s_cbranch_vccz L_q1ok")
gather_q("0")
g.label("L_q1ok")
g("s_waitcnt lgkmcnt(0)")

stamp(4)
WW = LAND
DW = LAND + 16
DW2 = D + 8
GML = LAND + 24
GW = LAND + 32
QW = LAND + 32
GO = ACC


def wo_dw_loads():
    g("s_lshr_b32 %s, %s, 4" % (S_T0, S_WR))
    g("s_lshl_b32 %s, %s, 18" % (S_T0, S_T0))
    g("s_and_b32 %s, %s, 15" % (S_T1, S_WR))
    g("s_lshl_b32 %s, %s, 6" % (S_T1, S_T1))
    g("s_add_u32 %s, %s, %s" % (S_T0, S_T0, S_T1))
    g("s_lshl_b32 %s, %s, 4" % (S_T1, S_WAVE))
    g("s_add_u32 %s, %s, %s" % (S_T0, S_T0, S_T1))
    g("v_lshlrev_b32 %s, 12, %s" % (T[1], V_LANE))
    for i in range(4):
        g("buffer_load_dwordx4 %s, %s, %s, %s offen offset:%d%s" % (vr(WW + 4 * i, 4), T[1], SRD_WO, S_T0, i * 1024, WPOL))
    g("s_lshr_b32 %s, %s, 5" % (S_T0, S_WR))
    g("s_mul_i32 %s, %s, %d" % (S_T0, S_T0, 224 * 1024))
    g("s_and_b32 %s, %s, 31" % (S_T1, S_WR))
    g("s_lshl_b32 %s, %s, 5" % (S_T1, S_T1))
    g("s_add_u32 %s, %s, %s" % (S_T0, S_T0, S_T1))
    g("s_lshl_b32 %s, %s, 3" % (S_T1, S_WAVE))
    g("s_add_u32 %s, %s, %s" % (S_T0, S_T0, S_T1))
    exec56()
    for i in range(4):
        g("buffer_load_dwordx2 %s, %s, %s, %s offen offset:%d%s" % (vr(DW + 2 * i, 2), T[1], SRD_WD, S_T0, i * 1024, WPOL))
    exec_all()


g.label("L_main")
for s in range(8):
    for r in range(4):
        g("v_mov_b32 %s, 0" % v(ACC + 4 * s + r))
g("v_mov_b32 %s, 0" % V_L)
for ch in range(4):
    for pn in range(4):
        i = 4 * ch + pn
        slot = i % 2
        R = LAND + 32 * slot
        g("s_waitcnt vmcnt(8)")

        def qk_mfma(n):
            g("v_mfma_f32_16x16x32_bf16 %s, %s, %s, 0" % (vr(D + 4 * (n % 4), 4), vr(R + 4 * n, 4), vr(QOP, 4)))

        def qk_red(n):
            db = D + 4 * (n % 4)
            others = [t for t in range(4) if t != pn]
            first = True
            for k, t in enumerate(others):
                rot = (16 - 4 * (t - pn)) % 16
                src1 = v(db + pn) if first else T[0]
                last = k == 2
                dst = v(Z + n) if last else T[0]
                dpp("add_f32", dst, v(db + t), src1, "row_ror:%d" % rot, bank=(1 << pn) if last else 0xF)
                first = False
        for n in range(4):
            qk_mfma(n)
        for n in range(4):
            qk_red(n)
            qk_mfma(n + 4)
        if i + 2 < 16:
            stream_piece(SRD_K, V_KOFF, i + 2, slot)
        elif i == 14:
            wo_dw_loads()
        for n in range(4, 8):
            qk_red(n)
    if ch == 3:
        stamp(5)
    g.comment("softmax for chunk %d" % ch)
    g("v_max3_f32 %s, %s, %s, %s" % (T[0], v(Z), v(Z + 1), v(Z + 2)))
    g("v_max3_f32 %s, %s, %s, %s" % (T[0], T[0], v(Z + 3), v(Z + 4)))
    g("v_max3_f32 %s, %s, %s, %s" % (T[0], T[0], v(Z + 5), v(Z + 6)))
    g("v_max_f32 %s, %s, %s" % (T[0], T[0], v(Z + 7)))
    dpp("max_f32", T[0], T[0], T[0], "row_ror:4")
    dpp("max_f32", T[0], T[0], T[0], "row_ror:8")
    for sw in ("16", "32"):
        g("v_mov_b32 %s, %s" % (T[1], T[0]))
        g("v_permlane%s_swap_b32 %s, %s" % (sw, T[0], T[1]))
        g("v_max_f32 %s, %s, %s" % (T[0], T[0], T[1]))
    if ch == 0:
        g("v_mov_b32 %s, %s" % (V_M, T[0]))
    else:
        g("v_max_f32 %s, %s, %s" % (T[0], T[0], V_M))
        g("v_sub_f32 %s, %s, %s" % (T[1], V_M, T[0]))
        g("v_mul_f32 %s, %s, %s" % (T[1], S_C, T[1]))
        g("v_exp_f32 %s, %s" % (T[1], T[1]))
        g("v_mov_b32 %s, %s" % (V_M, T[0]))
        g("v_mul_f32 %s, %s, %s" % (V_L, V_L, T[1]))
        for r, sr in enumerate((S_R0, S_R1, S_R2, S_R3)):
            g("v_readlane_b32 %s, %s, %d" % (sr, T[1], r))
        for s in range(8):
            for r, sr in enumerate((S_R0, S_R1, S_R2, S_R3)):
                g("v_mul_f32 %s, %s, %s" % (v(ACC + 4 * s + r), sr, v(ACC + 4 * s + r)))
    g("v_mul_f32 %s, %s, %s" % (T[1], S_C, V_M))
    for a in range(8):
        g("v_fma_f32 %s, %s, %s, -%s" % (v(Z + a), v(Z + a), S_C, T[1]))
    for a in range(8):
        g("v_exp_f32 %s, %s" % (v(Z + a), v(Z + a)))
    for a in range(8):
        g("v_add_f32 %s, %s, %s" % (V_L, V_L, v(Z + a)))
    for p in range(4):
        g("v_cvt_pk_bf16_f32 %s, %s, %s" % (v(PK + p), v(Z + 2 * p), v(Z + 2 * p + 1)))
    g.comment("PV for chunk %d" % ch)
    ops = [(pn, s) for pn in range(4) for s in range(8)]
    ldsq = [k for k, (pn, s) in enumerate(ops) if vop_loc(32 * ch + k)[0] == "l"]
    issued = 0

    def issue_lds(k):
        slotr = D + 4 * (ldsq.index(k) % 4)
        g("ds_read_b128 %s, %s offset:%d" % (vr(slotr, 4), V_LDSV, vop_loc(32 * ch + k)[1]))
    for k in ldsq[:4]:
        issue_lds(k)
        issued += 1
    for k, (pn, s) in enumerate(ops):
        if s == 0 and pn > 0:
            for p in range(4):
                g("v_mov_b32_dpp %s, %s row_shl:%d row_mask:0xf bank_mask:0xf" % (v(PKS + p), v(PK + p), 4 * pn))
        A = vr(PK if pn == 0 else PKS, 4)
        kind, loc = vop_loc(32 * ch + k)
        if kind == "a":
            B = "a[%d:%d]" % (loc, loc + 3)
        elif kind == "v":
            B = vr(loc, 4)
        else:
            idx = ldsq.index(k)
            B = vr(D + 4 * (idx % 4), 4)
            g("s_waitcnt lgkmcnt(%d)" % (issued - idx - 1))
        g("v_mfma_f32_16x16x32_bf16 %s, %s, %s, %s" % (vr(ACC + 4 * s, 4), A, B, vr(ACC + 4 * s, 4)))
        if kind == "l" and issued < len(ldsq):
            issue_lds(ldsq[issued])
            issued += 1

stamp(6)
dpp("add_f32", V_L, V_L, V_L, "row_ror:4")
dpp("add_f32", V_L, V_L, V_L, "row_ror:8")
for sw in ("16", "32"):
    g("v_mov_b32 %s, %s" % (T[1], V_L))
    g("v_permlane%s_swap_b32 %s, %s" % (sw, V_L, T[1]))
    g("v_add_f32 %s, %s, %s" % (V_L, V_L, T[1]))
g("s_lshl_b32 %s, %s, 11" % (S_T0, S_WAVE))
g("v_lshlrev_b32 %s, 4, %s" % (T[0], V_LANE))
g("v_add_u32 %s, %s, %s" % (T[0], S_T0, T[0]))
g("s_lshl_b32 %s, %s, 5" % (S_T0, S_WAVE))
g("v_lshlrev_b32 %s, 3, %s" % (T[1], V_LANE))
g("v_add_u32 %s, %s, %s" % (T[1], S_T0, T[1]))
g("s_mov_b64 exec, 0xffff")
for s in range(8):
    g("ds_write_b128 %s, %s offset:%d" % (T[0], vr(ACC + 4 * s, 4), L_A + 256 * s))
g("s_mov_b64 exec, 0xf")
g("ds_write_b64 %s, %s offset:%d" % (T[1], vr(10, 2), L_ML))
exec_all()
g("s_waitcnt lgkmcnt(0)")
g("s_barrier")
g("v_and_b32 %s, 3, %s" % (T[0], V_LANE))
g("v_lshlrev_b32 %s, 9, %s" % (T[0], T[0]))
g("v_lshrrev_b32 %s, 2, %s" % (T[1], V_LANE))
g("v_lshlrev_b32 %s, 4, %s" % (T[1], T[1]))
g("v_add_u32 %s, %s, %s" % (T[0], T[0], T[1]))
g("s_lshl_b32 %s, %s, 2" % (S_T0, S_WAVE))
g("v_add_u32 %s, %s, %s" % (T[0], S_T0, T[0]))
g("s_lshl_b32 %s, %s, 3" % (S_T0, S_WAVE))
g("v_mov_b32 %s, %s" % (T[1], S_T0))
for vv in range(4):
    g("ds_read_b32 %s, %s offset:%d" % (v(D + 2 * vv), T[0], L_A + 2048 * vv))
    g("ds_read_b32 %s, %s offset:%d" % (v(D + 2 * vv + 1), T[0], L_A + 2048 * vv + 256))
    g("ds_read_b64 %s, %s offset:%d" % (vr(Z + 2 * vv, 2), T[1], L_ML + 32 * vv))
g("s_waitcnt lgkmcnt(0)")
g("v_max3_f32 %s, %s, %s, %s" % (T[2], v(Z), v(Z + 2), v(Z + 4)))
g("v_max_f32 %s, %s, %s" % (T[2], T[2], v(Z + 6)))
for vv in range(4):
    g("v_sub_f32 %s, %s, %s" % (v(Z + 2 * vv), v(Z + 2 * vv), T[2]))
    g("v_mul_f32 %s, %s, %s" % (v(Z + 2 * vv), S_C, v(Z + 2 * vv)))
    g("v_exp_f32 %s, %s" % (v(Z + 2 * vv), v(Z + 2 * vv)))
g("v_mul_f32 %s, %s, %s" % (v(PK), v(Z), v(D)))
g("v_mul_f32 %s, %s, %s" % (v(PK + 1), v(Z), v(D + 1)))
g("v_mul_f32 %s, %s, %s" % (T[3], v(Z), v(Z + 1)))
for vv in range(1, 4):
    g("v_fmac_f32 %s, %s, %s" % (v(PK), v(Z + 2 * vv), v(D + 2 * vv)))
    g("v_fmac_f32 %s, %s, %s" % (v(PK + 1), v(Z + 2 * vv), v(D + 2 * vv + 1)))
    g("v_fmac_f32 %s, %s, %s" % (T[3], v(Z + 2 * vv), v(Z + 2 * vv + 1)))
g("v_lshlrev_b32 %s, 3, %s" % (T[0], V_TID))
g("s_lshl_b32 %s, s2, 11" % S_T0)
g("v_add_u32 %s, %s, %s" % (T[0], S_T0, T[0]))
g("buffer_store_dwordx2 %s, %s, %s, %s offen sc1" % (vr(PK, 2), T[0], SRD_WS, S_WSOFF))
g("s_cmp_lg_u32 %s, 0" % S_WAVE)
g("s_cbranch_scc1 L_noml")
g("v_lshlrev_b32 %s, 3, %s" % (T[1], V_LANE))
g("s_mov_b64 exec, 0xf")
for vv in range(4):
    g("ds_read_b64 %s, %s offset:%d" % (vr(Z + 2 * vv, 2), T[1], L_ML + 32 * vv))
g("s_lshl_b32 %s, s2, 7" % S_T0)
g("s_add_u32 %s, %s, 0x%x" % (S_T0, S_T0, O_ML))
g("v_add_u32 %s, %s, %s" % (T[1], S_T0, T[1]))
g("s_waitcnt lgkmcnt(0)")
g("v_max3_f32 %s, %s, %s, %s" % (T[2], v(Z), v(Z + 2), v(Z + 4)))
g("v_max_f32 %s, %s, %s" % (T[2], T[2], v(Z + 6)))
for vv in range(4):
    g("v_sub_f32 %s, %s, %s" % (v(Z + 2 * vv), v(Z + 2 * vv), T[2]))
    g("v_mul_f32 %s, %s, %s" % (v(Z + 2 * vv), S_C, v(Z + 2 * vv)))
    g("v_exp_f32 %s, %s" % (v(Z + 2 * vv), v(Z + 2 * vv)))
g("v_mul_f32 %s, %s, %s" % (T[3], v(Z), v(Z + 1)))
for vv in range(1, 4):
    g("v_fmac_f32 %s, %s, %s" % (T[3], v(Z + 2 * vv), v(Z + 2 * vv + 1)))
g("buffer_store_dwordx2 %s, %s, %s, %s offen sc1" % (vr(6, 2), T[1], SRD_WS, S_WSOFF))
exec_all()
g.label("L_noml")
g("s_cmp_lt_u32 %s, 2" % S_WAVE)
g("s_cbranch_scc1 L_gw")
g("s_cmp_lg_u32 %s, 0" % S_IT)
g("s_cbranch_scc1 L_nogw")
qproj_loads(QW)
g("s_branch L_nogw")
g.label("L_gw")
g("s_cmp_ge_u32 s2, 224")
g("s_cbranch_scc1 L_nogw")
g("s_mov_b32 %s, %d" % (S_T0, 3584))
g("v_mul_lo_u32 %s, %s, %s" % (T[2], S_T0, V_LANE))
g("s_lshl_b32 %s, %s, 4" % (S_T0, S_HR))
g("s_lshl_b32 %s, %s, 3" % (S_T1, S_WAVE))
g("s_add_u32 %s, %s, %s" % (S_T0, S_T0, S_T1))
g("v_add_u32 %s, %s, %s" % (T[2], S_T0, T[2]))
for i in range(8):
    g("s_mov_b32 %s, %d" % (S_OFF, i * 64 * 3584))
    g("buffer_load_dwordx2 %s, %s, %s, %s offen%s" % (vr(GW + 2 * i, 2), T[2], SRD_WG, S_OFF, WPOL))
    g("buffer_load_dwordx2 %s, %s, %s, %s offen%s" % (vr(GW + 16 + 2 * i, 2), T[2], SRD_WU, S_OFF, WPOL))
g.label("L_nogw")

stamp(7)
g("s_lshr_b32 %s, %s, 5" % (S_T0, S_WR))
g("s_lshl_b32 %s, %s, 16" % (S_T0, S_T0))
g("s_lshl_b32 %s, %s, 14" % (S_T1, S_WAVE))
g("s_add_u32 %s, %s, %s" % (S_T0, S_T0, S_T1))
g("s_bfe_u32 %s, %s, 0x10004" % (S_T1, S_WR))
g("s_lshl_b32 %s, %s, 10" % (S_T1, S_T1))
g("s_add_u32 %s, %s, %s" % (S_T0, S_T0, S_T1))
g("v_lshlrev_b32 %s, 4, %s" % (T[0], V_LANE))
g("v_add_u32 %s, %s, %s" % (T[0], S_T0, T[0]))
g("s_lshr_b32 %s, %s, 5" % (S_T0, S_WR))
g("s_lshl_b32 %s, %s, 12" % (S_T0, S_T0))
g("s_bfe_u32 %s, %s, 0x10004" % (S_T1, S_WR))
g("s_lshl_b32 %s, %s, 4" % (S_T1, S_T1))
g("s_add_u32 %s, %s, %s" % (S_T0, S_T0, S_T1))
g("s_add_u32 %s, %s, 0x%x" % (S_T0, S_T0, O_ML))
g("v_and_b32 %s, 31, %s" % (T[1], V_LANE))
g("v_lshlrev_b32 %s, 7, %s" % (T[1], T[1]))
g("v_lshrrev_b32 %s, 5, %s" % (T[2], V_LANE))
g("v_lshlrev_b32 %s, 3, %s" % (T[2], T[2]))
g("v_add3_u32 %s, %s, %s, %s" % (T[1], T[1], T[2], S_T0))


def e1_issue(i):
    def f():
        if i < 8:
            g("s_add_u32 %s, %s, 0x%x" % (S_OFF, S_WSOFF, i * 2048))
            g("buffer_load_dwordx4 %s, %s, %s, %s offen sc1" % (vr(GO + 4 * i, 4), T[0], SRD_WS, S_OFF))
        else:
            g("buffer_load_dwordx2 %s, %s, %s, %s offen sc1" % (vr(GML, 2), T[1], SRD_WS, S_WSOFF))
    return f


poll_instr([e1_issue(i) for i in range(9)],
           [[v(GO + 4 * i + e) for e in range(4)] for i in range(8)] + [[v(GML), v(GML + 1)]], T[2])
stamp(8)
g("v_mov_b32 %s, %s" % (T[2], v(GML)))
for ctl in ("quad_perm:[1,0,3,2]", "quad_perm:[2,3,0,1]", "row_ror:4", "row_ror:8"):
    dpp("max_f32", T[2], T[2], T[2], ctl)
g("v_mov_b32 %s, %s" % (T[3], T[2]))
g("v_permlane16_swap_b32 %s, %s" % (T[2], T[3]))
g("v_max_f32 %s, %s, %s" % (T[2], T[2], T[3]))
g("v_sub_f32 %s, %s, %s" % (T[2], v(GML), T[2]))
g("v_mul_f32 %s, %s, %s" % (T[2], S_C, T[2]))
g("v_exp_f32 %s, %s" % (T[2], T[2]))
g("v_mul_f32 %s, %s, %s" % (T[3], T[2], v(GML + 1)))
for ctl in ("quad_perm:[1,0,3,2]", "quad_perm:[2,3,0,1]", "row_ror:4", "row_ror:8"):
    dpp("add_f32", T[3], T[3], T[3], ctl)
g("v_mov_b32 %s, %s" % (T[4], T[3]))
g("v_permlane16_swap_b32 %s, %s" % (T[3], T[4]))
g("v_add_f32 %s, %s, %s" % (T[3], T[3], T[4]))
g("v_rcp_f32 %s, %s" % (T[4], T[3]))
g("v_fma_f32 %s, -%s, %s, 1.0" % (T[3], T[3], T[4]))
g("v_fma_f32 %s, %s, %s, %s" % (T[4], T[3], T[4], T[4]))
g("v_mul_f32 %s, %s, %s" % (T[2], T[2], T[4]))
g("v_and_b32 %s, 32, %s" % (T[3], V_LANE))
g("s_lshl_b32 %s, %s, 3" % (S_T0, S_WAVE))
g("v_add_u32 %s, %s, %s" % (T[3], S_T0, T[3]))
g("v_lshlrev_b32 %s, 2, %s" % (T[3], T[3]))
for i in range(8):
    g("v_add_u32 %s, %d, %s" % (T[4], 4 * i, T[3]))
    g("ds_bpermute_b32 %s, %s, %s" % (v(Z + i), T[4], T[2]))
g("s_waitcnt lgkmcnt(0)")
for e in range(4):
    g("v_mul_f32 %s, %s, %s" % (v(PK + e), v(Z), v(GO + e)))
for i in range(1, 8):
    for e in range(4):
        g("v_fmac_f32 %s, %s, %s" % (v(PK + e), v(Z + i), v(GO + 4 * i + e)))
g("s_lshl_b32 %s, %s, 10" % (S_T0, S_WAVE))
g("v_lshlrev_b32 %s, 4, %s" % (T[0], V_LANE))
g("v_add_u32 %s, %s, %s" % (T[1], S_T0, T[0]))
g("ds_write_b128 %s, %s offset:%d" % (T[1], vr(PK, 4), L_B))
g("s_waitcnt lgkmcnt(0)")
g("s_barrier")
for vv in range(4):
    g("ds_read_b128 %s, %s offset:%d" % (vr(D + 4 * vv, 4), T[0], L_B + 1024 * vv))
g("s_waitcnt lgkmcnt(0)")
for e in range(4):
    g("v_add_f32 %s, %s, %s" % (v(D + e), v(D + e), v(D + 4 + e)))
    g("v_add_f32 %s, %s, %s" % (v(D + 8 + e), v(D + 8 + e), v(D + 12 + e)))
    g("v_add_f32 %s, %s, %s" % (v(D + e), v(D + e), v(D + 8 + e)))
rne2(v(D), v(D + 1), T[2])
rne2(v(D + 2), v(D + 3), T[2])
acc8 = [v(Z + i) for i in range(8)]
for a in acc8:
    g("v_mov_b32 %s, 0" % a)
for i in range(4):
    fma_pairs(acc8, [v(WW + 4 * i + k) for k in range(4)], v(D + i), T[2])
reduce_row3(acc8)
hand_in(Z, 2, 0, 0, T[2])
g("s_barrier")
hand_out(8, 0, S_WR, O_Y, S_WSOFF, Z, T[2])
for k in range(8):
    g("v_mov_b32 %s, %s" % (v(DW2 + k), v(DW + k)))
g("s_cmp_lg_u32 %s, 0" % S_IT)
g("s_cbranch_scc1 L_nok0")
stream_piece(SRD_K, V_KOFF, 0, 0)
g.label("L_nok0")
stamp(9)


def residual_update(nparts, obase, rstride, lsh, GP):
    g("s_lshl_b32 %s, %s, 9" % (S_T0, S_WAVE))
    g("v_lshlrev_b32 %s, 3, %s" % (T[0], V_LANE))
    g("v_add_u32 %s, %s, %s" % (T[0], S_T0, T[0]))
    g("ds_read_b64 %s, %s offset:%d" % (vr(D, 2), T[0], L_X))
    g("v_lshrrev_b32 %s, %d, %s" % (T[1], lsh, V_LANE))
    g("v_lshlrev_b32 %s, 7, %s" % (T[1], T[1]))
    g("v_and_b32 %s, %d, %s" % (T[2], (1 << lsh) - 1, V_LANE))
    g("v_lshlrev_b32 %s, 3, %s" % (T[2], T[2]))
    g("s_lshl_b32 %s, %s, %d" % (S_T0, S_WAVE, 13 - lsh))
    g("s_add_u32 %s, %s, 0x%x" % (S_T0, S_T0, obase))
    g("v_add3_u32 %s, %s, %s, %s" % (T[1], T[1], T[2], S_T0))

    def issue():
        for i in range(nparts):
            g("s_add_u32 %s, %s, 0x%x" % (S_OFF, S_WSOFF, i * rstride))
            g("buffer_load_dwordx2 %s, %s, %s, %s offen sc1" % (vr(GP + 2 * i, 2), T[1], SRD_WS, S_OFF))
    poll(issue, [v(GP + i) for i in range(2 * nparts)], T[2])
    for i in range(1, nparts):
        g("v_add_f32 %s, %s, %s" % (v(GP), v(GP), v(GP + 2 * i)))
        g("v_add_f32 %s, %s, %s" % (v(GP + 1), v(GP + 1), v(GP + 2 * i + 1)))
    rne2(v(GP), v(GP + 1), T[2])
    g("s_waitcnt lgkmcnt(0)")
    g("v_add_f32 %s, %s, %s" % (v(D), v(D), v(GP)))
    g("v_add_f32 %s, %s, %s" % (v(D + 1), v(D + 1), v(GP + 1)))
    rne2(v(D), v(D + 1), T[2])


def read_x_all(XFb):
    g("v_lshlrev_b32 %s, 2, %s" % (T[0], V_LANE))
    g("v_add_u32 %s, 0x%x, %s" % (T[0], L_X, T[0]))
    for k in range(4):
        g("ds_read2st64_b32 %s, %s offset0:%d offset1:%d" % (vr(XFb + 2 * k, 2), T[0], 2 * k, 2 * k + 1))
    g("s_waitcnt lgkmcnt(0)")


residual_update(16, O_Y, 2048, 4, GO)
stamp(10)
g("ds_write_b64 %s, %s offset:%d" % (T[0], vr(D, 2), L_X))
g("s_waitcnt lgkmcnt(0)")
g("s_barrier")
XFb = D
g("s_cmp_lt_u32 %s, 2" % S_WAVE)
g("s_cbranch_scc1 L_gu")
for k in range(32):
    g("v_mov_b32 %s, %s" % (v(ACC + k), v(QW + k)))
g("s_branch L_gudone")
g.label("L_gu")
g("s_cmp_ge_u32 s2, 224")
g("s_cbranch_scc1 L_gudone")
read_x_all(XFb)
layernorm([v(XFb + i) for i in range(8)], XN, T[0], T[1], T[2])
accg = [v(PK + i) for i in range(8)]
for a in accg:
    g("v_mov_b32 %s, 0" % a)
for i in range(8):
    fma_pairs(accg[0:4], [v(GW + 2 * i), v(GW + 2 * i + 1)], XN[i], T[0])
    fma_pairs(accg[4:8], [v(GW + 16 + 2 * i), v(GW + 16 + 2 * i + 1)], XN[i], T[0])
reduce_row3(accg)
for k in range(0, 8, 2):
    rne2(accg[k], accg[k + 1], T[0])
for k in range(4):
    g("v_max_f32 %s, 0, %s" % (accg[k], accg[k]))
    g("v_mul_f32 %s, %s, %s" % (accg[k], accg[k], accg[4 + k]))
rne2(accg[0], accg[1], T[0])
rne2(accg[2], accg[3], T[0])
hand_in(PK, 1, 64, 0, T[0])
g.label("L_gudone")
g("s_cmp_ge_u32 s2, 224")
g("s_cbranch_scc1 L_nogu")
g("s_barrier")
hand_out(2, 64, S_HR, O_H, S_WSOFF, PK, T[0])
g.label("L_nogu")

stamp(11)
g("s_lshr_b32 %s, %s, 5" % (S_T0, S_WR))
g("s_mul_i32 %s, %s, %d" % (S_T0, S_T0, 28 * 128))
g("s_add_u32 %s, %s, 0x%x" % (S_T0, S_T0, O_H))
g("v_lshrrev_b32 %s, 1, %s" % (T[0], V_LANE))
g("v_lshlrev_b32 %s, 7, %s" % (T[0], T[0]))
g("v_and_b32 %s, 1, %s" % (T[1], V_LANE))
g("v_lshlrev_b32 %s, 4, %s" % (T[1], T[1]))
g("v_add3_u32 %s, %s, %s, %s" % (T[0], T[0], T[1], S_T0))
accd = [v(PK + i) for i in range(4)]
for a in accd:
    g("v_mov_b32 %s, 0" % a)
exec56()


def e3_issue():
    g("buffer_load_dwordx4 %s, %s, %s, %s offen sc1" % (vr(D, 4), T[0], SRD_WS, S_WSOFF))


poll(e3_issue, [v(D + i) for i in range(4)], T[1], restore=exec56)
stamp(12)
for i in range(4):
    fma_pairs(accd, [v(DW2 + 2 * i), v(DW2 + 2 * i + 1)], v(D + i), T[1])
exec_all()
reduce_row3(accd)
hand_in(PK, 1, 0, 0, T[0])
g("s_barrier")
hand_out(4, 0, S_WR, O_DN, S_WSOFF, PK, T[0])
stamp(13)
g("s_cmp_lg_u32 %s, 0" % S_IT)
g("s_cbranch_scc1 L_final")

stream_piece(SRD_K, V_KOFF, 1, 1)
residual_update(8, O_DN, 4096, 3, Z)
stamp(14)
g("ds_write_b64 %s, %s offset:%d" % (T[0], vr(D, 2), L_X))
g("s_waitcnt lgkmcnt(0)")
g("s_barrier")
g("s_cmp_lt_u32 %s, 2" % S_WAVE)
g("s_cbranch_scc1 L_noq2")
read_x_all(XFb)
layernorm([v(XFb + i) for i in range(8)], XN, T[0], T[1], T[2])
qproj_compute(ACC, XN, PK)
g.label("L_noq2")
g("s_barrier")
hand_out(4, 64, S_WR, O_Q, S_WSNEXT, PK, T[0])
stamp(15)
gather_q(S_WSNEXT)
stamp(16)
stamp_shift()
g("s_mov_b32 %s, 1" % S_IT)
g("s_mov_b32 %s, 0x%x" % (S_WSOFF, ITS))
g("s_branch L_main")

g.label("L_final")
stamp_dump()
g("s_cmp_lg_u32 s2, 0")
g("s_cbranch_scc1 L_exit")
residual_update(8, O_DN, 4096, 3, Z)
g("v_cvt_pk_bf16_f32 %s, %s, %s" % (T[2], v(D), v(D + 1)))
g("v_lshrrev_b32 %s, 1, %s" % (T[0], T[0]))
g("buffer_store_dword %s, %s, %s, 0 offen" % (T[2], T[0], SRD_OUT))
g("s_waitcnt vmcnt(0)")
g.label("L_exit")
g("s_endpgm")

body = g.finalize()

ref = open("interleave_layers__gqa_block_cached__glu_gated_reglu__decode.s.ref").read()
head = []
for l in ref.splitlines():
    if l.startswith("; @launch"):
        head.append("; @launch grid=(256,1,1) block=(256,1,1) lds=%d" % LDS_BYTES)
        break
    head.append(l)
out = "\n".join(head) + """
.amdgcn_target "amdgcn-amd-amdhsa--gfx950"
.text
.globl %s
.p2align 8
.type %s,@function
%s:
""" % (NAME, NAME, NAME) + body + """
.section .rodata,"a"
.p2align 6
.amdhsa_kernel %s
  .amdhsa_next_free_vgpr 512
  .amdhsa_next_free_sgpr 102
  .amdhsa_accum_offset 256
  .amdhsa_group_segment_fixed_size 0
  .amdhsa_kernarg_size 96
  .amdhsa_user_sgpr_count 2
  .amdhsa_user_sgpr_kernarg_segment_ptr 1
  .amdhsa_system_sgpr_workgroup_id_x 1
  .amdhsa_float_denorm_mode_32 3
.end_amdhsa_kernel
""" % NAME
path = sys.argv[1] if len(sys.argv) > 1 else "interleave_layers__gqa_block_cached__glu_gated_reglu__decode.s"
open(path, "w").write(out)
print("wrote", path, len(out.splitlines()), "lines")
```

```python
import os
import struct
import sys
from asmlib import Asm

NAME = "interleave_layers__gqa_block_cached__glu_gated_reglu__decode_kernel"
NT = " nt"
VPOL = os.environ.get("VPOL", NT)
KPOL = os.environ.get("KPOL", NT)
WQPOL = os.environ.get("WQPOL", "")
WPOL = os.environ.get("WPOL", "")
DEBUG = len(sys.argv) > 2 and sys.argv[2].startswith("dbg")
VST = len(sys.argv) > 2 and sys.argv[2] == "dbgv"

O_PART, O_ML, O_Y, O_DN, O_Q, O_H = 0x0, 0x80000, 0x88000, 0x90000, 0x98000, 0xA8000
ITS = 0x100000
WS_BYTES = 0x400000
O_DBG = 0x200000

NLDS = 36
L_SCR = 0
L_V = 16384
L_A = L_SCR
L_ML = L_A + 8192
EX_Y = L_A
EX_DN = L_A + 512
L_B = L_ML + 128
L_X = L_B + 4096
LDS_BYTES = 163840
assert L_X + 2048 <= L_V and L_V + 4 * NLDS * 1024 <= LDS_BYTES

SRD_K, SRD_V, SRD_WS, SRD_WQ, SRD_WO, SRD_WG, SRD_WU, SRD_WD, SRD_X, SRD_OUT, SRD_DBG = [
    "s[%d:%d]" % (i, i + 3) for i in range(8, 52, 4)]
S_WAVE, S_OFF, S_IT, S_WSOFF, S_TMO, S_SELLO, S_SELHI, S_HIM, S_C = [
    "s%d" % i for i in range(52, 61)]
S_R0, S_R1, S_R2, S_R3 = "s61", "s62", "s63", "s64"
S_T0, S_T1, S_T2, S_T3 = "s65", "s66", "s67", "s68"
S_WSNEXT = "s69"
S_ROT = "s99"
ROT = os.environ.get("ROT", "1")
ROT = 0 if ROT == "0" else ROT
S_WR, S_HR, S_PM, S_PSTR, S_PBASE = "s3", "s4", "s5", "s6", "s7"
SRD_P = SRD_X
S_BLK = S_WR if os.environ.get("BLK", "1") == "1" else "s2"

V_TID, V_LANE, V_KOFF, V_VOFF = "v0", "v1", "v2", "v3"
T = ["v%d" % i for i in range(4, 10)]
V_M, V_L = "v10", "v11"
QOP = 12
Z = 16
PK = 24
PKS = 28
D = 32
ACC = 48
LAND = 80
VC = 144


def v(i):
    return "v%d" % i


def vr(i, n):
    return "v[%d:%d]" % (i, i + n - 1)


def f32bits(x):
    return "0x%08x" % struct.unpack("<I", struct.pack("<f", x))[0]


g = Asm()
_lbl = [0]


def newlabel(p):
    _lbl[0] += 1
    return "L_%s_%d" % (p, _lbl[0])


def dpp(op, dst, s0, s1, ctl, row=0xF, bank=0xF):
    g("v_%s_dpp %s, %s, %s %s row_mask:0x%x bank_mask:0x%x" % (op, dst, s0, s1, ctl, row, bank))


def reduce_row3(regs, op="add_f32"):
    for ctl in ("quad_perm:[1,0,3,2]", "quad_perm:[2,3,0,1]", "row_ror:4", "row_ror:8"):
        for r in regs:
            dpp(op, r, r, r, ctl)
    for r in regs:
        dpp(op, r, r, r, "row_bcast:15", row=0xA)
    for r in regs:
        dpp(op, r, r, r, "row_bcast:31", row=0xC)


def reduce_x(regs, dpps, t):
    for ctl in dpps:
        for r in regs:
            dpp("add_f32", r, r, r, ctl)
    for sw in ("16", "32"):
        for i in range(0, len(regs), len(t)):
            rs = regs[i:i + len(t)]
            for r, tt in zip(rs, t):
                g("v_mov_b32 %s, %s" % (tt, r))
            for r, tt in zip(rs, t):
                g("v_permlane%s_swap_b32 %s, %s" % (sw, r, tt))
            for r, tt in zip(rs, t):
                g("v_add_f32 %s, %s, %s" % (r, r, tt))


def rne1(dst, src):
    g("v_cvt_pk_bf16_f32 %s, %s, %s" % (dst, src, src))
    g("v_lshlrev_b32 %s, 16, %s" % (dst, dst))


def rne2(a, b, tmp):
    g("v_cvt_pk_bf16_f32 %s, %s, %s" % (tmp, a, b))
    g("v_lshlrev_b32 %s, 16, %s" % (a, tmp))
    g("v_and_b32 %s, %s, %s" % (b, S_HIM, tmp))


def umax(tmp, rs):
    rs = list(rs)
    if len(rs) == 1:
        g("v_mov_b32 %s, %s" % (tmp, rs[0]))
        return
    if len(rs) >= 3:
        g("v_max3_u32 %s, %s, %s, %s" % (tmp, rs[0], rs[1], rs[2]))
        rs = rs[3:]
    else:
        g("v_max_u32 %s, %s, %s" % (tmp, rs[0], rs[1]))
        rs = rs[2:]
    while rs:
        if len(rs) >= 2:
            g("v_max3_u32 %s, %s, %s, %s" % (tmp, tmp, rs[0], rs[1]))
            rs = rs[2:]
        else:
            g("v_max_u32 %s, %s, %s" % (tmp, tmp, rs[0]))
            rs = rs[1:]


def timeout_loop(lp):
    g("s_sub_u32 %s, %s, 1" % (S_TMO, S_TMO))
    g("s_cmp_eq_u32 %s, 0" % S_TMO)
    g("s_cbranch_scc0 %s" % lp)
    g("s_mov_b32 %s, 1" % S_TMO)


def poll(issue, regs, tmp, restore=None):
    lp, done = newlabel("poll"), newlabel("pdone")
    g.label(lp)
    issue()
    g("s_waitcnt vmcnt(0)")
    umax(tmp, regs)
    g("v_cmp_eq_u32 vcc, -1, %s" % tmp)
    g("s_cbranch_vccz %s" % done)
    g("s_mov_b64 exec, vcc")
    timeout_loop(lp)
    g.label(done)
    (restore or exec_all)()


def poll_instr(issues, regsets, tmp):
    lp, done = newlabel("poll"), newlabel("pdone")
    g("s_mov_b32 %s, 0x%x" % (S_PM, (1 << len(issues)) - 1))
    g.label(lp)
    for i, iss in enumerate(issues):
        g("s_bitcmp1_b32 %s, %d" % (S_PM, i))
        g("s_cselect_b64 exec, -1, 0")
        iss()
    exec_all()
    g("s_waitcnt vmcnt(0)")
    g("s_mov_b32 %s, 0" % S_PM)
    for i, rs in enumerate(regsets):
        umax(tmp, rs)
        g("v_cmp_eq_u32 vcc, -1, %s" % tmp)
        g("s_cmp_lg_u64 vcc, 0")
        g("s_cselect_b32 %s, %d, 0" % (S_T3, 1 << i))
        g("s_or_b32 %s, %s, %s" % (S_PM, S_PM, S_T3))
    g("s_cmp_eq_u32 %s, 0" % S_PM)
    g("s_cbranch_scc1 %s" % done)
    timeout_loop(lp)
    g.label(done)


def layernorm(XS, X, XN, t0, t1, t2):
    g("v_add_f32 %s, %s, %s" % (t0, XS[0], XS[1]))
    for i in range(2, 8):
        g("v_add_f32 %s, %s, %s" % (t0, t0, XS[i]))
    reduce_row3([t0])
    g("v_readlane_b32 %s, %s, 63" % (S_R0, t0))
    g("v_mov_b32 %s, %s" % (t1, S_R0))
    g("v_mul_f32 %s, %s, %s" % (t1, f32bits(1.0 / 512), t1))
    for i in range(8):
        g("v_sub_f32 %s, %s, %s" % (XN[i], XS[i], t1))
    g("v_mul_f32 %s, %s, %s" % (t0, XN[0], XN[0]))
    for i in range(1, 8):
        g("v_fmac_f32 %s, %s, %s" % (t0, XN[i], XN[i]))
    reduce_row3([t0])
    g("v_readlane_b32 %s, %s, 63" % (S_R0, t0))
    g("v_mov_b32 %s, %s" % (t0, S_R0))
    g("v_mul_f32 %s, %s, %s" % (t0, f32bits(1.0 / 512), t0))
    rne1(t1, t1)
    rne1(t0, t0)
    g("v_add_f32 %s, %s, %s" % (t0, f32bits(1e-5), t0))
    rne1(t0, t0)
    g("v_sqrt_f32 %s, %s" % (t0, t0))
    rne1(t0, t0)
    g("v_rcp_f32 %s, %s" % (t2, t0))
    for i in range(0, 8, 2):
        g("v_sub_f32 %s, %s, %s" % (XN[i], X[i], t1))
        g("v_sub_f32 %s, %s, %s" % (XN[i + 1], X[i + 1], t1))
        rne2(XN[i], XN[i + 1], X[i])
        for k in (i, i + 1):
            g("v_mul_f32 %s, %s, %s" % (X[k], XN[k], t2))
            g("v_fma_f32 %s, -%s, %s, %s" % (XN[k], X[k], t0, XN[k]))
            g("v_fma_f32 %s, %s, %s, %s" % (XN[k], XN[k], t2, X[k]))
        rne2(XN[i], XN[i + 1], X[i])


def fma_pairs(acc, wregs, x, t):
    for k, w in enumerate(wregs):
        g("v_lshlrev_b32 %s, 16, %s" % (t, w))
        g("v_fmac_f32 %s, %s, %s" % (acc[2 * k], x, t))
        g("v_and_b32 %s, %s, %s" % (t, S_HIM, w))
        g("v_fmac_f32 %s, %s, %s" % (acc[2 * k + 1], x, t))


def slot_base(slot):
    return LAND + 32 * slot if slot < 2 else VC + 48 + 32 * (slot - 2)


def stream_piece(srd, voff, piece, slot):
    base = slot_base(slot)
    for half in range(2):
        if ROT:
            if half == 0:
                g("s_add_u32 %s, %s, 0x%x" % (S_OFF, S_ROT, piece * 8192))
                g("s_and_b32 %s, %s, 0x1ffff" % (S_OFF, S_OFF))
            else:
                g("s_add_u32 %s, %s, 0x1000" % (S_OFF, S_OFF))
        else:
            g("s_mov_b32 %s, 0x%x" % (S_OFF, piece * 8192 + half * 4096))
        for n in range(4):
            r = base + 16 * half + 4 * n
            g("buffer_load_dwordx4 %s, %s, %s, %s offen offset:%d%s" % (vr(r, 4), voff, srd, S_OFF, n * 1024, VPOL if srd == SRD_V else KPOL))


def lane63():
    g("s_mov_b32 exec_lo, 0")
    g("s_mov_b32 exec_hi, 0x80000000")


def exec_all():
    g("s_mov_b64 exec, -1")


def qproj_loads(W):
    g("v_lshrrev_b32 %s, 2, %s" % (T[0], V_LANE))
    g("v_lshlrev_b32 %s, 13, %s" % (T[0], T[0]))
    g("v_and_b32 %s, 3, %s" % (T[1], V_LANE))
    g("v_lshl_add_u32 %s, %s, 4, %s" % (T[0], T[1], T[0]))
    g("s_and_b32 %s, %s, 3" % (S_T0, S_WR))
    g("s_lshl_b32 %s, %s, 20" % (S_T0, S_T0))
    g("s_lshr_b32 %s, %s, 2" % (S_T1, S_WR))
    g("s_lshl_b32 %s, %s, 7" % (S_T1, S_T1))
    g("s_add_u32 %s, %s, %s" % (S_T0, S_T0, S_T1))
    g("s_lshl_b32 %s, %s, 6" % (S_T1, S_WAVE))
    g("s_add_u32 %s, %s, %s" % (S_T0, S_T0, S_T1))
    g("s_sub_u32 %s, %s, 128" % (S_T0, S_T0))
    for j in range(8):
        g("s_add_u32 %s, %s, 0x%x" % (S_OFF, S_T0, j * 16 * 8192))
        g("buffer_load_dwordx4 %s, %s, %s, %s offen%s" % (vr(W + 4 * j, 4), T[0], SRD_WQ, S_OFF, WQPOL))


def gu_loads(W):
    g("v_lshrrev_b32 %s, 3, %s" % (T[1], V_LANE))
    g("s_movk_i32 %s, 3584" % S_T0)
    g("v_mul_lo_u32 %s, %s, %s" % (T[1], S_T0, T[1]))
    g("v_and_b32 %s, 7, %s" % (T[2], V_LANE))
    g("v_lshl_add_u32 %s, %s, 4, %s" % (T[1], T[2], T[1]))
    g("s_and_b32 %s, %s, 7" % (S_T0, S_HR))
    g("s_mul_i32 %s, %s, %d" % (S_T0, S_T0, 64 * 3584))
    g("s_lshr_b32 %s, %s, 3" % (S_T1, S_HR))
    g("s_lshl_b32 %s, %s, 7" % (S_T1, S_T1))
    g("s_add_u32 %s, %s, %s" % (S_T0, S_T0, S_T1))
    for j in range(8):
        g("s_add_u32 %s, %s, %d" % (S_OFF, S_T0, j * 8 * 3584))
        g("buffer_load_dwordx4 %s, %s, %s, %s offen%s" % (vr(W + 4 * j, 4), T[1], SRD_P, S_OFF, WPOL))


def dw_loads(W):
    g("s_lshr_b32 %s, %s, 5" % (S_T0, S_HR))
    g("s_lshl_b32 %s, %s, 18" % (S_T0, S_T0))
    g("s_and_b32 %s, %s, 31" % (S_T1, S_HR))
    g("s_lshl_b32 %s, %s, 5" % (S_T1, S_T1))
    g("s_add_u32 %s, %s, %s" % (S_T0, S_T0, S_T1))
    g("s_lshl_b32 %s, %s, 16" % (S_T1, S_WAVE))
    g("s_add_u32 %s, %s, %s" % (S_T0, S_T0, S_T1))
    g("v_and_b32 %s, 15, %s" % (T[1], V_LANE))
    g("v_lshlrev_b32 %s, 12, %s" % (T[1], T[1]))
    g("v_lshrrev_b32 %s, 4, %s" % (T[2], V_LANE))
    g("v_lshl_add_u32 %s, %s, 3, %s" % (T[1], T[2], T[1]))
    for i in range(4):
        g("buffer_load_dwordx2 %s, %s, %s, %s offen offset:%d%s" % (vr(W + 2 * i, 2), T[1], SRD_WD, S_T0, i * 1024, WPOL))


def gemv_publish(W, XN, A, lb, sbase, soff):
    acc = [v(A + i) for i in range(8)]
    for a in acc:
        g("v_mov_b32 %s, 0" % a)
    for i in range(8):
        fma_pairs(acc, [v(W + 4 * i + k) for k in range(4)], XN[i], T[1])
    reduce_x(acc, ("row_ror:4", "row_ror:8") if lb == 2 else ("row_ror:8",), [v(D + 8 + i) for i in range(4)])
    g("v_and_b32 %s, %d, %s" % (T[0], (1 << lb) - 1, V_LANE))
    g("v_lshlrev_b32 %s, 5, %s" % (T[0], T[0]))
    g("v_bfe_u32 %s, %s, %d, 1" % (T[1], V_LANE, lb))
    g("v_cmp_eq_u32 vcc, 1, %s" % T[1])
    g("v_lshl_add_u32 %s, %s, 4, %s" % (T[0], T[1], T[0]))
    g("v_add_u32 %s, %s, %s" % (T[0], sbase, T[0]))
    for e in range(4):
        g("v_cndmask_b32 %s, %s, %s, vcc" % (acc[e], acc[e], acc[4 + e]))
    g("s_mov_b64 exec, 0x%x" % ((1 << (2 << lb)) - 1))
    g("buffer_store_dwordx4 %s, %s, %s, %s offen sc1" % (vr(A, 4), T[0], SRD_WS, soff))
    exec_all()


def q_base():
    g("s_lshl_b32 %s, %s, 8" % (S_T2, S_WR))
    g("s_lshl_b32 %s, %s, 7" % (S_T3, S_WAVE))
    g("s_add_u32 %s, %s, %s" % (S_T2, S_T2, S_T3))
    g("s_add_u32 %s, %s, 0x%x" % (S_T2, S_T2, O_Q - 256))


def h_base():
    g("s_lshl_b32 %s, %s, 9" % (S_T2, S_HR))
    g("s_lshl_b32 %s, %s, 8" % (S_T3, S_WAVE))
    g("s_add_u32 %s, %s, %s" % (S_T2, S_T2, S_T3))
    g("s_add_u32 %s, %s, 0x%x" % (S_T2, S_T2, O_H))


def hand_in(A, nq, ex, wave0, t):
    g("s_mul_i32 %s, %s, %d" % (S_T0, S_WAVE, 16 * nq))
    g("v_mov_b32 %s, %s" % (t, S_T0))
    lane63()
    for k in range(nq):
        g("ds_write_b128 %s, %s offset:%d" % (t, vr(A + 4 * k, 4), ex - 16 * nq * wave0 + 16 * k))
    exec_all()
    g("s_waitcnt lgkmcnt(0)")


def hand_in_l(A, nl, ex, t):
    g("s_mul_i32 %s, %s, %d" % (S_T0, S_WAVE, 32 * nl))
    g("v_lshlrev_b32 %s, 5, %s" % (t, V_LANE))
    g("v_add_u32 %s, %s, %s" % (t, S_T0, t))
    g("s_mov_b64 exec, 0x%x" % ((1 << nl) - 1))
    for k in range(2):
        g("ds_write_b128 %s, %s offset:%d" % (t, vr(A + 4 * k, 4), ex + 16 * k))
    exec_all()
    g("s_waitcnt lgkmcnt(0)")


def hand_out(nl, ex, srole, obase, soff, A, t, nsum=1, glu=False):
    skip = newlabel("nopub")
    g("s_cmp_lg_u32 %s, 0" % S_WAVE)
    g("s_cbranch_scc1 %s" % skip)
    g("v_lshlrev_b32 %s, 4, %s" % (t, V_LANE))
    g("s_mov_b64 exec, 0x%x" % ((1 << nl) - 1))
    for k in range(nsum):
        g("ds_read_b128 %s, %s offset:%d" % (vr(A + 4 * k, 4), t, ex + 16 * nl * k))
    g("s_lshl_b32 %s, %s, 7" % (S_T0, srole))
    g("s_add_u32 %s, %s, 0x%x" % (S_T0, S_T0, obase))
    g("v_add_u32 %s, %s, %s" % (t, S_T0, t))
    g("s_waitcnt lgkmcnt(0)")
    if glu:
        for e in range(4):
            g("v_max_f32 %s, 0, %s" % (v(A + e), v(A + e)))
        for e in range(4):
            g("v_mul_f32 %s, %s, %s" % (v(A + e), v(A + e), v(A + 4 + e)))
        rne2(v(A), v(A + 1), v(A + 4))
        rne2(v(A + 2), v(A + 3), v(A + 5))
    elif nsum == 2:
        for e in range(4):
            g("v_add_f32 %s, %s, %s" % (v(A + e), v(A + e), v(A + 4 + e)))
    elif nsum == 4:
        for e in range(4):
            g("v_add_f32 %s, %s, %s" % (v(A + e), v(A + e), v(A + 4 + e)))
        for e in range(4):
            g("v_add_f32 %s, %s, %s" % (v(A + 8 + e), v(A + 8 + e), v(A + 12 + e)))
        for e in range(4):
            g("v_add_f32 %s, %s, %s" % (v(A + e), v(A + e), v(A + 8 + e)))
    g("buffer_store_dwordx4 %s, %s, %s, %s offen sc1" % (vr(A, 4), t, SRD_WS, soff))
    exec_all()
    g.label(skip)


def gather_q_addr():
    g("v_and_b32 %s, 3, %s" % (T[0], V_LANE))
    g("v_lshlrev_b32 %s, 11, %s" % (T[0], T[0]))
    g("v_lshrrev_b32 %s, 5, %s" % (T[1], V_LANE))
    g("v_lshl_add_u32 %s, %s, 10, %s" % (T[0], T[1], T[0]))
    g("v_bfe_u32 %s, %s, 4, 1" % (T[1], V_LANE))
    g("v_lshl_add_u32 %s, %s, 7, %s" % (T[0], T[1], T[0]))
    g("v_bfe_u32 %s, %s, 2, 2" % (T[1], V_LANE))
    g("v_lshl_add_u32 %s, %s, 5, %s" % (T[0], T[1], T[0]))
    g("s_lshr_b32 %s, %s, 5" % (S_T0, S_BLK))
    g("s_lshl_b32 %s, %s, 13" % (S_T0, S_T0))
    g("s_add_u32 %s, %s, 0x%x" % (S_T0, S_T0, O_Q))
    g("v_add_u32 %s, %s, %s" % (T[0], S_T0, T[0]))


def gather_q_issue(G, soff):
    for r in range(4):
        for k in range(2):
            g("buffer_load_dwordx4 %s, %s, %s, %s offen offset:%d sc1" % (vr(G + 8 * r + 4 * k, 4), T[0], SRD_WS, soff, 256 * r + 16 * k))


def gather_q_sum(G):
    for e in range(8):
        g("v_add_f32 %s, %s, %s" % (v(G + e), v(G + e), v(G + 8 + e)))
        g("v_add_f32 %s, %s, %s" % (v(G + 16 + e), v(G + 16 + e), v(G + 24 + e)))
    for e in range(8):
        g("v_add_f32 %s, %s, %s" % (v(G + e), v(G + e), v(G + 16 + e)))
    for p in range(4):
        g("v_cvt_pk_bf16_f32 %s, %s, %s" % (v(QOP + p), v(G + 2 * p), v(G + 2 * p + 1)))


def gather_q(soff):
    gather_q_addr()
    poll(lambda: gather_q_issue(Z, soff), [v(Z + i) for i in range(32)], T[1])
    gather_q_sum(Z)


def vop_loc(o):
    if o < 64:
        return ("a", 4 * o)
    if o < 64 + NLDS:
        return ("l", (o - 64) * 1024)
    return ("v", VC + 4 * (o - 64 - NLDS))


def stamp(k):
    if not DEBUG:
        return
    g("s_memrealtime s[100:101]")
    g("s_waitcnt lgkmcnt(0)")
    g("s_mov_b32 s%d, s100" % (70 + k))


def stamp_shift():
    if not DEBUG or VST:
        return
    for k in range(12):
        g("s_mov_b32 s%d, s%d" % (87 + k, 75 + k))


def stamp_dump():
    if not DEBUG:
        return
    g("s_lshl_b32 s100, s2, 2")
    g("s_add_u32 s100, s100, %s" % S_WAVE)
    g("s_lshl_b32 s100, s100, 8")
    g("s_add_u32 s100, s100, 0x%x" % O_DBG)
    g("s_mov_b64 exec, 1")
    g("v_mov_b32 v255, s100")
    for k in range(29):
        g("v_mov_b32 v254, s%d" % (70 + k))
        g("buffer_store_dword v254, v255, %s, 0 offen offset:%d" % (SRD_WS, 4 * k))
        g("s_waitcnt vmcnt(0)")
    g("s_mov_b64 exec, -1")


g("s_load_dwordx16 s[64:79], s[0:1], 0")
g("s_load_dwordx8 s[80:87], s[0:1], 64")
g("v_and_b32 %s, 63, %s" % (V_LANE, V_TID))
g("v_lshrrev_b32 %s, 6, %s" % (T[0], V_TID))
g("v_readfirstlane_b32 %s, %s" % (S_WAVE, T[0]))
g("s_cmp_ge_u32 s2, 256")
g("s_cbranch_scc1 L_exit")
g("s_waitcnt lgkmcnt(0)")


def mk_srd(srd, plo, nbytes):
    b = int(srd[2:].split(":")[0])
    g("s_mov_b32 s%d, s%d" % (b, plo))
    g("s_and_b32 s%d, s%d, 0xffff" % (b + 1, plo + 1))
    g("s_mov_b32 s%d, 0x%x" % (b + 2, nbytes))
    g("s_mov_b32 s%d, 0x00020000" % (b + 3))


mk_srd(SRD_X, 64, 1024)
mk_srd(SRD_K, 66, 0x8000000)
mk_srd(SRD_V, 68, 0x8000000)
mk_srd(SRD_WQ, 70, 512 * 4096 * 2)
mk_srd(SRD_WO, 72, 4096 * 512 * 2)
mk_srd(SRD_WG, 76, 512 * 1792 * 2)
mk_srd(SRD_WU, 78, 512 * 1792 * 2)
mk_srd(SRD_WD, 80, 1792 * 512 * 2)
mk_srd(SRD_OUT, 82, 1024)
mk_srd(SRD_DBG, 84, 256)
mk_srd(SRD_WS, 86, WS_BYTES)
g("s_mov_b32 %s, 0" % S_IT)
stamp(0)
g("s_mov_b32 %s, 0" % S_WSOFF)
g("s_and_b32 %s, s2, 7" % S_T0)
g("s_lshr_b32 %s, s2, 3" % S_T1)
g("s_lshl_b32 %s, %s, 5" % (S_WR, S_T0))
g("s_add_u32 %s, %s, %s" % (S_WR, S_WR, S_T1))
g("s_mul_i32 %s, %s, 28" % (S_HR, S_T0))
g("s_add_u32 %s, %s, %s" % (S_HR, S_HR, S_T1))
g("s_mov_b32 %s, 0x%x" % (S_WSNEXT, ITS))
g("s_mov_b32 %s, 400000" % S_TMO)
g("s_mov_b32 %s, 0x05040100" % S_SELLO)
g("s_mov_b32 %s, 0x07060302" % S_SELHI)
g("s_mov_b32 %s, 0xffff0000" % S_HIM)
g("s_mov_b32 %s, %s" % (S_C, f32bits(128 ** -0.5 * 1.4426950408889634)))
if ROT == "1":
    g("s_lshl_b32 %s, s2, 2" % S_ROT)
    g("s_add_u32 %s, %s, %s" % (S_ROT, S_ROT, S_WAVE))
    g("s_and_b32 %s, %s, 15" % (S_ROT, S_ROT))
    g("s_lshl_b32 %s, %s, 13" % (S_ROT, S_ROT))
elif ROT == "2":
    g("s_lshr_b32 %s, s2, 3" % S_ROT)
    g("s_lshl_b32 %s, %s, 2" % (S_ROT, S_ROT))
    g("s_add_u32 %s, %s, %s" % (S_ROT, S_ROT, S_WAVE))
    g("s_and_b32 %s, %s, 15" % (S_ROT, S_ROT))
    g("s_lshl_b32 %s, %s, 13" % (S_ROT, S_ROT))
g("s_lshl_b32 %s, %s, 19" % (S_T0, S_BLK))
g("s_lshl_b32 %s, %s, 17" % (S_T1, S_WAVE))
g("s_add_u32 %s, %s, %s" % (S_T0, S_T0, S_T1))
g("v_bfe_u32 %s, %s, 2, 2" % (T[0], V_LANE))
g("v_lshlrev_b32 %s, 8, %s" % (T[0], T[0]))
g("v_lshrrev_b32 %s, 4, %s" % (T[1], V_LANE))
g("v_lshlrev_b32 %s, 6, %s" % (T[1], T[1]))
g("v_and_b32 %s, 3, %s" % (T[2], V_LANE))
g("v_lshlrev_b32 %s, 4, %s" % (T[2], T[2]))
g("v_add3_u32 %s, %s, %s, %s" % (V_KOFF, T[0], T[1], T[2]))
g("v_add_u32 %s, %s, %s" % (V_KOFF, S_T0, V_KOFF))
g("v_lshlrev_b32 %s, 4, %s" % (V_VOFF, V_LANE))
g("v_add_u32 %s, %s, %s" % (V_VOFF, S_T0, V_VOFF))

g("v_mov_b32 %s, -1" % T[4])
g("v_mov_b32 %s, -1" % T[5])
g("v_lshlrev_b32 %s, 3, %s" % (T[0], V_TID))
g("s_lshl_b32 %s, %s, 11" % (S_T0, S_BLK))
g("v_add_u32 %s, %s, %s" % (T[0], S_T0, T[0]))
g("buffer_store_dwordx2 %s, %s, %s, 0 offen sc1" % (vr(8, 2), T[0], SRD_WS))
g("buffer_store_dwordx2 %s, %s, %s, %s offen sc1" % (vr(8, 2), T[0], SRD_WS, S_WSNEXT))
g("v_lshlrev_b32 %s, 3, %s" % (T[1], V_LANE))


def clear_small(nl, sbase_code):
    sbase_code()
    g("v_add_u32 %s, %s, %s" % (T[0], S_T0, T[1]))
    g("s_mov_b64 exec, 0x%x" % ((1 << nl) - 1))
    g("buffer_store_dwordx2 %s, %s, %s, 0 offen sc1" % (vr(8, 2), T[0], SRD_WS))
    g("buffer_store_dwordx2 %s, %s, %s, %s offen sc1" % (vr(8, 2), T[0], SRD_WS, S_WSNEXT))
    exec_all()


def role_base(srole, obase):
    def f():
        g("s_lshl_b32 %s, %s, 7" % (S_T0, srole))
        g("s_add_u32 %s, %s, 0x%x" % (S_T0, S_T0, obase))
    return f


if VST:
    stamp(17)
XF = [v(PK + i) for i in range(8)]
XF2 = [v(VC + i) for i in range(8)]


def copy_t2():
    g("s_mov_b32 %s, %s" % (S_T0, S_T2))


g("s_cmp_lt_u32 %s, 2" % S_WAVE)
g("s_cbranch_scc1 L_clear0")
q_base()
clear_small(16, copy_t2)
g("s_and_b32 %s, %s, 3" % (S_T0, S_WR))
g("s_lshl_b32 %s, %s, 8" % (S_T0, S_T0))
g("v_lshrrev_b32 %s, 2, %s" % (T[3], V_LANE))
g("v_lshlrev_b32 %s, 1, %s" % (T[3], T[3]))
for j in range(8):
    g("buffer_load_ushort %s, %s, %s, %s offen offset:%d" % (XF2[j], T[3], SRD_X, S_T0, 32 * j))
qproj_loads(ACC)
g("s_branch L_noclear")
g.label("L_clear0")
g("s_cmp_ge_u32 s2, 224")
g("s_cbranch_scc1 L_clear1")
h_base()
clear_small(32, copy_t2)
g.label("L_clear1")
g("s_cmp_lg_u32 %s, 0" % S_WAVE)
g("s_cbranch_scc1 L_noclear")
clear_small(4, role_base(S_BLK, O_ML))
clear_small(16, role_base(S_WR, O_Y))
g("s_cmp_ge_u32 s2, 224")
g("s_cbranch_scc1 L_noclear")
clear_small(8, role_base(S_HR, O_DN))
g.label("L_noclear")
if VST:
    stamp(18)

XN = [v(Z + i) for i in range(8)]
DUM = ACC + 28
CNT = QOP
QG = ACC
ops = []


def note(tag, n):
    ops.extend([tag] * n)


def wait_for(tag):
    last = max(i for i, t in enumerate(ops) if t == tag)
    g("s_waitcnt vmcnt(%d)" % (len(ops) - 1 - last))


def exec56():
    g("s_mov_b32 exec_lo, -1")
    g("s_mov_b32 exec_hi, 0x00ffffff")


def warm(which):
    g("s_and_b32 %s, s2, 7" % S_T0)
    g("s_lshr_b32 %s, s2, 3" % S_T1)
    if which == "wq":
        g("s_lshl_b32 %s, %s, 10" % (S_T0, S_T0))
        g("s_lshl_b32 %s, %s, 17" % (S_T1, S_T1))
        g("s_add_u32 %s, %s, %s" % (S_T0, S_T0, S_T1))
        g("s_lshl_b32 %s, %s, 15" % (S_T1, S_WAVE))
        g("s_add_u32 %s, %s, %s" % (S_T0, S_T0, S_T1))
        for i in range(4):
            g("s_add_u32 %s, %s, 0x%x" % (S_OFF, S_T0, i * 8192))
            g("buffer_load_dwordx4 %s, %s, %s, %s offen" % (vr(DUM, 4), T[3], SRD_WQ, S_OFF))
        note("warm", 4)
    elif which == "wo":
        g("s_lshl_b32 %s, %s, 19" % (S_T0, S_T0))
        g("s_lshl_b32 %s, %s, 14" % (S_T1, S_T1))
        g("s_add_u32 %s, %s, %s" % (S_T0, S_T0, S_T1))
        g("s_lshl_b32 %s, %s, 12" % (S_T1, S_WAVE))
        g("s_add_u32 %s, %s, %s" % (S_T0, S_T0, S_T1))
        for i in range(4):
            g("buffer_load_dwordx4 %s, %s, %s, %s offen offset:%d" % (vr(DUM, 4), T[3], SRD_WO, S_T0, i * 1024))
        note("warm", 4)
    elif which == "wd":
        g("s_mul_i32 %s, %s, 229376" % (S_T0, S_T0))
        g("s_mul_i32 %s, %s, 7168" % (S_T1, S_T1))
        g("s_add_u32 %s, %s, %s" % (S_T0, S_T0, S_T1))
        g("s_mul_i32 %s, %s, 1792" % (S_T1, S_WAVE))
        g("s_add_u32 %s, %s, %s" % (S_T0, S_T0, S_T1))
        exec56()
        for i in range(2):
            g("buffer_load_dwordx4 %s, %s, %s, %s offen offset:%d" % (vr(DUM, 4), T[3], SRD_WD, S_T0, i * 896))
        exec_all()
        note("warm", 2)
    elif which == "gu":
        g("s_mul_i32 %s, %s, 448" % (S_T0, S_T0))
        g("s_mul_i32 %s, %s, %d" % (S_T1, S_T1, 16 * 3584))
        g("s_add_u32 %s, %s, %s" % (S_T0, S_T0, S_T1))
        g("s_mul_i32 %s, %s, %d" % (S_T1, S_WAVE, 4 * 3584))
        g("s_add_u32 %s, %s, %s" % (S_T0, S_T0, S_T1))
        g("v_cmp_le_u32 vcc, 28, %s" % V_LANE)
        g("v_mov_b32 %s, %d" % (T[2], 3584 - 448))
        g("v_cndmask_b32 %s, 0, %s, vcc" % (T[2], T[2]))
        g("v_add_u32 %s, %s, %s" % (T[2], T[2], T[3]))
        exec56()
        for i in range(2):
            g("s_add_u32 %s, %s, %d" % (S_OFF, S_T0, i * 2 * 3584))
            g("buffer_load_dwordx4 %s, %s, %s, %s offen" % (vr(DUM, 4), T[2], SRD_WG, S_OFF))
            g("buffer_load_dwordx4 %s, %s, %s, %s offen" % (vr(DUM, 4), T[2], SRD_WU, S_OFF))
        exec_all()
        note("warm", 4)


g("v_lshlrev_b32 %s, 1, %s" % (T[3], V_LANE))
for i in range(8):
    g("buffer_load_ushort %s, %s, %s, 0 offen offset:%d" % (XF[i], T[3], SRD_X, 128 * i))
stream_piece(SRD_V, V_VOFF, 0, 0)
note("p0", 8)
PB = int(SRD_P[2:].split(":")[0])
GB, UB, QB = [int(x[2:].split(":")[0]) for x in (SRD_WG, SRD_WU, SRD_WQ)]
g("s_cmp_eq_u32 %s, 0" % S_WAVE)
g("s_cselect_b32 s%d, s%d, s%d" % (PB, GB, UB))
g("s_cselect_b32 s%d, s%d, s%d" % (PB + 1, GB + 1, UB + 1))
g("s_cmp_lt_u32 s2, 224")
g("s_cselect_b32 s%d, s%d, 0" % (PB + 2, GB + 2))
if VST:
    stamp(19)
stream_piece(SRD_V, V_VOFF, 1, 1)
note("p1", 8)
VD = int(os.environ.get("VD", "2"))
vslot = {p: (p % VD if p < 12 else p % 2) for p in range(16)}
vnext = VD
for p in range(2, VD):
    stream_piece(SRD_V, V_VOFF, p, p)
    note("p%d" % p, 8)
stamp(1)

g("v_lshlrev_b32 %s, 4, %s" % (T[5], V_LANE))
g("s_mul_i32 %s, %s, %d" % (S_T0, S_WAVE, NLDS * 1024))
g("s_add_u32 %s, %s, %d" % (S_T0, S_T0, L_V))
g("v_add_u32 %s, %s, %s" % (T[5], S_T0, T[5]))
V_LDSV = T[5]
U_Q, U_ARR = 0, 1
WARM = os.environ.get('WARM', '0') == '1'
for u in range(16):
    slot = vslot[u]
    R = slot_base(slot)
    wait_for("p%d" % u)
    if VST and u < 9:
        stamp(20 + u)
    for s in range(8):
        w_, b = s // 2, s % 2
        kind, loc = vop_loc(8 * u + s)
        sel = S_SELHI if b else S_SELLO
        tmpb = D + 4 * (s % 4)
        for p in range(4):
            dst = v(loc + p) if kind == "v" else v(tmpb + p)
            g("v_perm_b32 %s, %s, %s, %s" % (dst, v(R + 4 * (2 * p + 1) + w_), v(R + 4 * (2 * p) + w_), sel))
        if kind == "a":
            for p in range(4):
                g("v_accvgpr_write_b32 a%d, %s" % (loc + p, v(tmpb + p)))
        elif kind == "l":
            g("ds_write_b128 %s, %s offset:%d" % (V_LDSV, vr(tmpb, 4), loc))
            if s % 4 == 3:
                g("s_waitcnt lgkmcnt(0)")
    if vnext < 16:
        if vslot[vnext] == slot:
            stream_piece(SRD_V, V_VOFF, vnext, slot)
            note("p%d" % vnext, 8)
            vnext += 1
    else:
        assert slot == vnext % 2 and u >= 14
        stream_piece(SRD_K, V_KOFF, vnext - 16, slot)
        note("p%d" % vnext, 8)
        vnext += 1
    if WARM and u in (6, 8, 10):
        g("v_lshlrev_b32 %s, 4, %s" % (T[3], V_LANE))
        warm({6: "wo", 8: "gu", 10: "wd"}[u])
    if u == U_Q:
        g.comment("x, wq have landed (older than the piece just waited for): LN, q projection, publish q1 slice")
        for i in range(8):
            g("v_lshlrev_b32 %s, 16, %s" % (XF[i], XF[i]))
        g("s_cmp_lg_u32 %s, 0" % S_WAVE)
        g("s_cbranch_scc1 L_nox")
        g("v_lshlrev_b32 %s, 2, %s" % (T[2], V_LANE))
        for i in range(8):
            g("ds_write_b32 %s, %s offset:%d" % (T[2], XF[i], L_X + 256 * i))
        g("s_waitcnt lgkmcnt(0)")
        g.label("L_nox")
        g("s_cmp_lt_u32 %s, 2" % S_WAVE)
        g("s_cbranch_scc1 L_noq1")
        for i in range(8):
            g("v_lshlrev_b32 %s, 16, %s" % (XF2[i], XF2[i]))
        layernorm(XF, XF2, XN, T[2], T[3], T[4])
        q_base()
        gemv_publish(ACC, XN, PK, 2, S_T2, "0")
        g.label("L_noq1")
    if u == U_ARR:
        g.comment("clears and the q1 store are complete (older than the piece just waited for): arrive")
        g("s_barrier")
        g("s_cmp_lg_u32 %s, 0" % S_WAVE)
        g("s_cbranch_scc1 L_noarr")
        g("v_mov_b32 %s, 0" % T[0])
        g("v_mov_b32 %s, 1" % T[1])
        g("s_mov_b64 exec, 1")
        g("buffer_atomic_add %s, %s, %s, 0 offen sc1" % (T[1], T[0], SRD_DBG))
        exec_all()
        g.label("L_noarr")
    if u == 13:
        g("v_mov_b32 %s, 0" % T[0])
        g("buffer_load_dword %s, %s, %s, 0 offen sc1" % (v(CNT), T[0], SRD_DBG))
        note("cnt", 1)
    if u == 14:
        stamp(2)
        lp, done = newlabel("cnt"), newlabel("cdone")
        wait_for("cnt")
        g("v_mov_b32 %s, 0" % T[0])
        g.label(lp)
        g("v_readfirstlane_b32 %s, %s" % (S_T0, v(CNT)))
        g("s_cmp_ge_u32 %s, 256" % S_T0)
        g("s_cbranch_scc1 %s" % done)
        g("buffer_load_dword %s, %s, %s, 0 offen sc1" % (v(CNT), T[0], SRD_DBG))
        g("s_waitcnt vmcnt(0)")
        timeout_loop(lp)
        g.label(done)
        gather_q_addr()
        gather_q_issue(QG, "0")
        note("qg", 8)
        stamp(3)
wait_for("qg")
umax(T[1], [v(QG + i) for i in range(32)])
g("v_cmp_eq_u32 vcc, -1, %s" % T[1])
gather_q_sum(QG)
g("s_cbranch_vccz L_q1ok")
gather_q("0")
g.label("L_q1ok")
g("s_waitcnt lgkmcnt(0)")

stamp(4)
WW = LAND
DW = LAND + 16
DW2 = ACC
GML = PKS
GW = LAND + 32
QW = LAND + 32
GO = ACC


def wo_dw_loads():
    g("s_lshr_b32 %s, %s, 4" % (S_T0, S_WR))
    g("s_lshl_b32 %s, %s, 18" % (S_T0, S_T0))
    g("s_and_b32 %s, %s, 15" % (S_T1, S_WR))
    g("s_lshl_b32 %s, %s, 6" % (S_T1, S_T1))
    g("s_add_u32 %s, %s, %s" % (S_T0, S_T0, S_T1))
    g("s_lshl_b32 %s, %s, 16" % (S_T1, S_WAVE))
    g("s_add_u32 %s, %s, %s" % (S_T0, S_T0, S_T1))
    g("v_lshrrev_b32 %s, 2, %s" % (T[1], V_LANE))
    g("v_lshlrev_b32 %s, 12, %s" % (T[1], T[1]))
    g("v_and_b32 %s, 3, %s" % (T[2], V_LANE))
    g("v_lshl_add_u32 %s, %s, 4, %s" % (T[1], T[2], T[1]))
    for i in range(4):
        g("buffer_load_dwordx4 %s, %s, %s, %s offen offset:%d%s" % (vr(WW + 4 * i, 4), T[1], SRD_WO, S_T0, i * 1024, WPOL))


g.label("L_main")
for s in range(8):
    for r in range(4):
        g("v_mov_b32 %s, 0" % v(ACC + 4 * s + r))
g("v_mov_b32 %s, 0" % V_L)
for ch in range(4):
    for pn in range(4):
        i = 4 * ch + pn
        slot = i % 2
        R = LAND + 32 * slot
        if i == 15:
            g("s_cmp_lt_u32 %s, 2" % S_WAVE)
            g("s_cbranch_scc1 L_w15")
            g("s_waitcnt vmcnt(4)")
            g.label("L_w15")
        g("s_waitcnt vmcnt(8)")

        def qk_mfma(n):
            g("v_mfma_f32_16x16x32_bf16 %s, %s, %s, 0" % (vr(D + 4 * (n % 4), 4), vr(R + 4 * n, 4), vr(QOP, 4)))

        def qk_red(n):
            db = D + 4 * (n % 4)
            others = [t for t in range(4) if t != pn]
            first = True
            for k, t in enumerate(others):
                rot = (16 - 4 * (t - pn)) % 16
                src1 = v(db + pn) if first else T[0]
                last = k == 2
                dst = v(Z + n) if last else T[0]
                dpp("add_f32", dst, v(db + t), src1, "row_ror:%d" % rot, bank=(1 << pn) if last else 0xF)
                first = False
        for n in range(4):
            qk_mfma(n)
        for n in range(4):
            qk_red(n)
            qk_mfma(n + 4)
        if i + 2 < 16:
            stream_piece(SRD_K, V_KOFF, i + 2, slot)
        elif i == 14:
            wo_dw_loads()
            g("s_cmp_ge_u32 %s, 2" % S_WAVE)
            g("s_cbranch_scc1 L_nodw")
            dw_loads(DW)
            g.label("L_nodw")
        else:
            g("s_cmp_ge_u32 %s, 2" % S_WAVE)
            g("s_cbranch_scc1 L_nogl")
            gu_loads(GW)
            g.label("L_nogl")
        for n in range(4, 8):
            qk_red(n)
    if ch == 3:
        stamp(5)
    g.comment("softmax for chunk %d" % ch)
    g("v_max3_f32 %s, %s, %s, %s" % (T[0], v(Z), v(Z + 1), v(Z + 2)))
    g("v_max3_f32 %s, %s, %s, %s" % (T[0], T[0], v(Z + 3), v(Z + 4)))
    g("v_max3_f32 %s, %s, %s, %s" % (T[0], T[0], v(Z + 5), v(Z + 6)))
    g("v_max_f32 %s, %s, %s" % (T[0], T[0], v(Z + 7)))
    dpp("max_f32", T[0], T[0], T[0], "row_ror:4")
    dpp("max_f32", T[0], T[0], T[0], "row_ror:8")
    for sw in ("16", "32"):
        g("v_mov_b32 %s, %s" % (T[1], T[0]))
        g("v_permlane%s_swap_b32 %s, %s" % (sw, T[0], T[1]))
        g("v_max_f32 %s, %s, %s" % (T[0], T[0], T[1]))
    if ch == 0:
        g("v_mov_b32 %s, %s" % (V_M, T[0]))
    else:
        g("v_max_f32 %s, %s, %s" % (T[0], T[0], V_M))
        g("v_sub_f32 %s, %s, %s" % (T[1], V_M, T[0]))
        g("v_mul_f32 %s, %s, %s" % (T[1], S_C, T[1]))
        g("v_exp_f32 %s, %s" % (T[1], T[1]))
        g("v_mov_b32 %s, %s" % (V_M, T[0]))
        g("v_mul_f32 %s, %s, %s" % (V_L, V_L, T[1]))
        for r, sr in enumerate((S_R0, S_R1, S_R2, S_R3)):
            g("v_readlane_b32 %s, %s, %d" % (sr, T[1], r))
        for s in range(8):
            for r, sr in enumerate((S_R0, S_R1, S_R2, S_R3)):
                g("v_mul_f32 %s, %s, %s" % (v(ACC + 4 * s + r), sr, v(ACC + 4 * s + r)))
    g("v_mul_f32 %s, %s, %s" % (T[1], S_C, V_M))
    for a in range(8):
        g("v_fma_f32 %s, %s, %s, -%s" % (v(Z + a), v(Z + a), S_C, T[1]))
    for a in range(8):
        g("v_exp_f32 %s, %s" % (v(Z + a), v(Z + a)))
    for a in range(8):
        g("v_add_f32 %s, %s, %s" % (V_L, V_L, v(Z + a)))
    for p in range(4):
        g("v_cvt_pk_bf16_f32 %s, %s, %s" % (v(PK + p), v(Z + 2 * p), v(Z + 2 * p + 1)))
    g.comment("PV for chunk %d" % ch)
    ops = [(pn, s) for pn in range(4) for s in range(8)]
    ldsq = [k for k, (pn, s) in enumerate(ops) if vop_loc(32 * ch + k)[0] == "l"]
    issued = 0

    def issue_lds(k):
        slotr = D + 4 * (ldsq.index(k) % 4)
        g("ds_read_b128 %s, %s offset:%d" % (vr(slotr, 4), V_LDSV, vop_loc(32 * ch + k)[1]))
    for k in ldsq[:4]:
        issue_lds(k)
        issued += 1
    for k, (pn, s) in enumerate(ops):
        if s == 0 and pn > 0:
            for p in range(4):
                g("v_mov_b32_dpp %s, %s row_shl:%d row_mask:0xf bank_mask:0xf" % (v(PKS + p), v(PK + p), 4 * pn))
        A = vr(PK if pn == 0 else PKS, 4)
        kind, loc = vop_loc(32 * ch + k)
        if kind == "a":
            B = "a[%d:%d]" % (loc, loc + 3)
        elif kind == "v":
            B = vr(loc, 4)
        else:
            idx = ldsq.index(k)
            B = vr(D + 4 * (idx % 4), 4)
            g("s_waitcnt lgkmcnt(%d)" % (issued - idx - 1))
        g("v_mfma_f32_16x16x32_bf16 %s, %s, %s, %s" % (vr(ACC + 4 * s, 4), A, B, vr(ACC + 4 * s, 4)))
        if kind == "l" and issued < len(ldsq):
            issue_lds(ldsq[issued])
            issued += 1

stamp(6)
dpp("add_f32", V_L, V_L, V_L, "row_ror:4")
dpp("add_f32", V_L, V_L, V_L, "row_ror:8")
for sw in ("16", "32"):
    g("v_mov_b32 %s, %s" % (T[1], V_L))
    g("v_permlane%s_swap_b32 %s, %s" % (sw, V_L, T[1]))
    g("v_add_f32 %s, %s, %s" % (V_L, V_L, T[1]))
g("s_lshl_b32 %s, %s, 11" % (S_T0, S_WAVE))
g("v_lshlrev_b32 %s, 4, %s" % (T[0], V_LANE))
g("v_add_u32 %s, %s, %s" % (T[0], S_T0, T[0]))
g("s_lshl_b32 %s, %s, 5" % (S_T0, S_WAVE))
g("v_lshlrev_b32 %s, 3, %s" % (T[1], V_LANE))
g("v_add_u32 %s, %s, %s" % (T[1], S_T0, T[1]))
g("s_mov_b64 exec, 0xffff")
for s in range(8):
    g("ds_write_b128 %s, %s offset:%d" % (T[0], vr(ACC + 4 * s, 4), L_A + 256 * s))
g("s_mov_b64 exec, 0xf")
g("ds_write_b64 %s, %s offset:%d" % (T[1], vr(10, 2), L_ML))
exec_all()
g("s_waitcnt lgkmcnt(0)")
g("s_barrier")
g("v_and_b32 %s, 3, %s" % (T[0], V_LANE))
g("v_lshlrev_b32 %s, 9, %s" % (T[0], T[0]))
g("v_lshrrev_b32 %s, 2, %s" % (T[1], V_LANE))
g("v_lshlrev_b32 %s, 4, %s" % (T[1], T[1]))
g("v_add_u32 %s, %s, %s" % (T[0], T[0], T[1]))
g("s_lshl_b32 %s, %s, 2" % (S_T0, S_WAVE))
g("v_add_u32 %s, %s, %s" % (T[0], S_T0, T[0]))
g("s_lshl_b32 %s, %s, 3" % (S_T0, S_WAVE))
g("v_mov_b32 %s, %s" % (T[1], S_T0))
for vv in range(4):
    g("ds_read_b32 %s, %s offset:%d" % (v(D + 2 * vv), T[0], L_A + 2048 * vv))
    g("ds_read_b32 %s, %s offset:%d" % (v(D + 2 * vv + 1), T[0], L_A + 2048 * vv + 256))
    g("ds_read_b64 %s, %s offset:%d" % (vr(Z + 2 * vv, 2), T[1], L_ML + 32 * vv))
g("s_waitcnt lgkmcnt(0)")
g("v_max3_f32 %s, %s, %s, %s" % (T[2], v(Z), v(Z + 2), v(Z + 4)))
g("v_max_f32 %s, %s, %s" % (T[2], T[2], v(Z + 6)))
for vv in range(4):
    g("v_sub_f32 %s, %s, %s" % (v(Z + 2 * vv), v(Z + 2 * vv), T[2]))
    g("v_mul_f32 %s, %s, %s" % (v(Z + 2 * vv), S_C, v(Z + 2 * vv)))
    g("v_exp_f32 %s, %s" % (v(Z + 2 * vv), v(Z + 2 * vv)))
g("v_mul_f32 %s, %s, %s" % (v(PK), v(Z), v(D)))
g("v_mul_f32 %s, %s, %s" % (v(PK + 1), v(Z), v(D + 1)))
g("v_mul_f32 %s, %s, %s" % (T[3], v(Z), v(Z + 1)))
for vv in range(1, 4):
    g("v_fmac_f32 %s, %s, %s" % (v(PK), v(Z + 2 * vv), v(D + 2 * vv)))
    g("v_fmac_f32 %s, %s, %s" % (v(PK + 1), v(Z + 2 * vv), v(D + 2 * vv + 1)))
    g("v_fmac_f32 %s, %s, %s" % (T[3], v(Z + 2 * vv), v(Z + 2 * vv + 1)))
g("v_lshlrev_b32 %s, 3, %s" % (T[0], V_TID))
g("s_lshl_b32 %s, %s, 11" % (S_T0, S_BLK))
g("v_add_u32 %s, %s, %s" % (T[0], S_T0, T[0]))
g("buffer_store_dwordx2 %s, %s, %s, %s offen sc1" % (vr(PK, 2), T[0], SRD_WS, S_WSOFF))
g("s_cmp_lg_u32 %s, 0" % S_WAVE)
g("s_cbranch_scc1 L_noml")
g("v_lshlrev_b32 %s, 3, %s" % (T[1], V_LANE))
g("s_mov_b64 exec, 0xf")
for vv in range(4):
    g("ds_read_b64 %s, %s offset:%d" % (vr(Z + 2 * vv, 2), T[1], L_ML + 32 * vv))
g("s_lshl_b32 %s, %s, 7" % (S_T0, S_BLK))
g("s_add_u32 %s, %s, 0x%x" % (S_T0, S_T0, O_ML))
g("v_add_u32 %s, %s, %s" % (T[1], S_T0, T[1]))
g("s_waitcnt lgkmcnt(0)")
g("v_max3_f32 %s, %s, %s, %s" % (T[2], v(Z), v(Z + 2), v(Z + 4)))
g("v_max_f32 %s, %s, %s" % (T[2], T[2], v(Z + 6)))
for vv in range(4):
    g("v_sub_f32 %s, %s, %s" % (v(Z + 2 * vv), v(Z + 2 * vv), T[2]))
    g("v_mul_f32 %s, %s, %s" % (v(Z + 2 * vv), S_C, v(Z + 2 * vv)))
    g("v_exp_f32 %s, %s" % (v(Z + 2 * vv), v(Z + 2 * vv)))
g("v_mul_f32 %s, %s, %s" % (T[3], v(Z), v(Z + 1)))
for vv in range(1, 4):
    g("v_fmac_f32 %s, %s, %s" % (T[3], v(Z + 2 * vv), v(Z + 2 * vv + 1)))
g("buffer_store_dwordx2 %s, %s, %s, %s offen sc1" % (vr(6, 2), T[1], SRD_WS, S_WSOFF))
exec_all()
g.label("L_noml")

stamp(7)
g("s_lshr_b32 %s, %s, 5" % (S_T0, S_WR))
g("s_lshl_b32 %s, %s, 16" % (S_T0, S_T0))
g("s_lshl_b32 %s, %s, 14" % (S_T1, S_WAVE))
g("s_add_u32 %s, %s, %s" % (S_T0, S_T0, S_T1))
g("s_bfe_u32 %s, %s, 0x10004" % (S_T1, S_WR))
g("s_lshl_b32 %s, %s, 10" % (S_T1, S_T1))
g("s_add_u32 %s, %s, %s" % (S_T0, S_T0, S_T1))
g("v_lshlrev_b32 %s, 4, %s" % (T[0], V_LANE))
g("v_add_u32 %s, %s, %s" % (T[0], S_T0, T[0]))
g("s_lshr_b32 %s, %s, 5" % (S_T0, S_WR))
g("s_lshl_b32 %s, %s, 12" % (S_T0, S_T0))
g("s_bfe_u32 %s, %s, 0x10004" % (S_T1, S_WR))
g("s_lshl_b32 %s, %s, 4" % (S_T1, S_T1))
g("s_add_u32 %s, %s, %s" % (S_T0, S_T0, S_T1))
g("s_add_u32 %s, %s, 0x%x" % (S_T0, S_T0, O_ML))
g("v_and_b32 %s, 31, %s" % (T[1], V_LANE))
g("v_lshlrev_b32 %s, 7, %s" % (T[1], T[1]))
g("v_lshrrev_b32 %s, 5, %s" % (T[2], V_LANE))
g("v_lshlrev_b32 %s, 3, %s" % (T[2], T[2]))
g("v_add3_u32 %s, %s, %s, %s" % (T[1], T[1], T[2], S_T0))


def e1_issue(i):
    def f():
        if i < 8:
            g("s_add_u32 %s, %s, 0x%x" % (S_OFF, S_WSOFF, i * 2048))
            g("buffer_load_dwordx4 %s, %s, %s, %s offen sc1" % (vr(GO + 4 * i, 4), T[0], SRD_WS, S_OFF))
        else:
            g("buffer_load_dwordx2 %s, %s, %s, %s offen sc1" % (vr(GML, 2), T[1], SRD_WS, S_WSOFF))
    return f


poll_instr([e1_issue(i) for i in range(9)],
           [[v(GO + 4 * i + e) for e in range(4)] for i in range(8)] + [[v(GML), v(GML + 1)]], T[2])
stamp(8)
g("s_cmp_lt_u32 %s, 2" % S_WAVE)
g("s_cbranch_scc1 L_nok1")
g("s_cmp_lg_u32 %s, 0" % S_IT)
g("s_cbranch_scc1 L_nok1")
stream_piece(SRD_K, V_KOFF, 1, 1)
g.label("L_nok1")
g("v_mov_b32 %s, %s" % (T[2], v(GML)))
for ctl in ("quad_perm:[1,0,3,2]", "quad_perm:[2,3,0,1]", "row_ror:4", "row_ror:8"):
    dpp("max_f32", T[2], T[2], T[2], ctl)
g("v_mov_b32 %s, %s" % (T[3], T[2]))
g("v_permlane16_swap_b32 %s, %s" % (T[2], T[3]))
g("v_max_f32 %s, %s, %s" % (T[2], T[2], T[3]))
g("v_sub_f32 %s, %s, %s" % (T[2], v(GML), T[2]))
g("v_mul_f32 %s, %s, %s" % (T[2], S_C, T[2]))
g("v_exp_f32 %s, %s" % (T[2], T[2]))
g("v_mul_f32 %s, %s, %s" % (T[3], T[2], v(GML + 1)))
for ctl in ("quad_perm:[1,0,3,2]", "quad_perm:[2,3,0,1]", "row_ror:4", "row_ror:8"):
    dpp("add_f32", T[3], T[3], T[3], ctl)
g("v_mov_b32 %s, %s" % (T[4], T[3]))
g("v_permlane16_swap_b32 %s, %s" % (T[3], T[4]))
g("v_add_f32 %s, %s, %s" % (T[3], T[3], T[4]))
g("v_rcp_f32 %s, %s" % (T[4], T[3]))
g("v_fma_f32 %s, -%s, %s, 1.0" % (T[3], T[3], T[4]))
g("v_fma_f32 %s, %s, %s, %s" % (T[4], T[3], T[4], T[4]))
g("v_mul_f32 %s, %s, %s" % (T[2], T[2], T[4]))
g("v_and_b32 %s, 32, %s" % (T[3], V_LANE))
g("s_lshl_b32 %s, %s, 3" % (S_T0, S_WAVE))
g("v_add_u32 %s, %s, %s" % (T[3], S_T0, T[3]))
g("v_lshlrev_b32 %s, 2, %s" % (T[3], T[3]))
for i in range(8):
    g("v_add_u32 %s, %d, %s" % (T[4], 4 * i, T[3]))
    g("ds_bpermute_b32 %s, %s, %s" % (v(Z + i), T[4], T[2]))
g("s_waitcnt lgkmcnt(0)")
for e in range(4):
    g("v_mul_f32 %s, %s, %s" % (v(PK + e), v(Z), v(GO + e)))
for i in range(1, 8):
    for e in range(4):
        g("v_fmac_f32 %s, %s, %s" % (v(PK + e), v(Z + i), v(GO + 4 * i + e)))
g("s_lshl_b32 %s, %s, 10" % (S_T0, S_WAVE))
g("v_lshlrev_b32 %s, 4, %s" % (T[0], V_LANE))
g("v_add_u32 %s, %s, %s" % (T[1], S_T0, T[0]))
g("ds_write_b128 %s, %s offset:%d" % (T[1], vr(PK, 4), L_B))
g("s_waitcnt lgkmcnt(0)")
g("s_barrier")
g("v_lshrrev_b32 %s, 2, %s" % (T[0], V_LANE))
g("v_lshlrev_b32 %s, 4, %s" % (T[0], T[0]))
g("s_lshl_b32 %s, %s, 8" % (S_T0, S_WAVE))
g("v_add_u32 %s, %s, %s" % (T[0], S_T0, T[0]))
for vv in range(4):
    g("ds_read_b128 %s, %s offset:%d" % (vr(D + 4 * vv, 4), T[0], L_B + 1024 * vv))
g("s_waitcnt lgkmcnt(0)")
for e in range(4):
    g("v_add_f32 %s, %s, %s" % (v(D + e), v(D + e), v(D + 4 + e)))
    g("v_add_f32 %s, %s, %s" % (v(D + 8 + e), v(D + 8 + e), v(D + 12 + e)))
    g("v_add_f32 %s, %s, %s" % (v(D + e), v(D + e), v(D + 8 + e)))
rne2(v(D), v(D + 1), T[2])
rne2(v(D + 2), v(D + 3), T[2])
acc8 = [v(Z + i) for i in range(8)]
for a in acc8:
    g("v_mov_b32 %s, 0" % a)
for i in range(4):
    fma_pairs(acc8, [v(WW + 4 * i + k) for k in range(4)], v(D + i), T[2])
reduce_x(acc8, ("row_ror:4", "row_ror:8"), [v(D + 8 + i) for i in range(4)])
hand_in_l(Z, 4, EX_Y, T[2])
g("s_barrier")
hand_out(8, EX_Y, S_WR, O_Y, S_WSOFF, D, T[2], nsum=4)
stamp(9)


def read_x_all(XFb):
    g("v_lshlrev_b32 %s, 2, %s" % (T[0], V_LANE))
    g("v_add_u32 %s, 0x%x, %s" % (T[0], L_X, T[0]))
    for k in range(4):
        g("ds_read2st64_b32 %s, %s offset0:%d offset1:%d" % (vr(XFb + 2 * k, 2), T[0], 2 * k, 2 * k + 1))


def read_x_rows(XB, lb, srow):
    step = 64 >> lb
    g("v_lshrrev_b32 %s, %d, %s" % (T[1], lb, V_LANE))
    g("v_add_u32 %s, %s, %s" % (T[1], srow, T[1]))
    g("v_lshlrev_b32 %s, 2, %s" % (T[1], T[1]))
    g("v_add_u32 %s, 0x%x, %s" % (T[1], L_X, T[1]))
    for k in range(4):
        g("ds_read2_b32 %s, %s offset0:%d offset1:%d" % (vr(XB + 2 * k, 2), T[1], 2 * k * step, (2 * k + 1) * step))
    g("s_waitcnt lgkmcnt(0)")


def residual_update4(dsts, obase, rstride, lsh, XQ, tail="lds"):
    g("s_sub_u32 %s, %s, 2" % (S_T1, S_WAVE))
    g("s_lshl_b32 %s, %s, 10" % (S_T0, S_T1))
    g("v_lshlrev_b32 %s, 4, %s" % (T[0], V_LANE))
    g("v_add_u32 %s, %s, %s" % (T[0], S_T0, T[0]))
    g("ds_read_b128 %s, %s offset:%d" % (vr(XQ, 4), T[0], L_X))
    g("v_lshrrev_b32 %s, %d, %s" % (T[1], lsh - 2, V_LANE))
    g("v_lshlrev_b32 %s, 7, %s" % (T[1], T[1]))
    g("v_and_b32 %s, %d, %s" % (T[2], (1 << (lsh - 2)) - 1, V_LANE))
    g("v_lshlrev_b32 %s, 4, %s" % (T[2], T[2]))
    g("s_lshl_b32 %s, %s, %d" % (S_T0, S_T1, 15 - lsh))
    g("s_add_u32 %s, %s, 0x%x" % (S_T0, S_T0, obase))
    g("v_add3_u32 %s, %s, %s, %s" % (T[1], T[1], T[2], S_T0))

    def issue():
        for i, d in enumerate(dsts):
            g("s_add_u32 %s, %s, 0x%x" % (S_OFF, S_WSOFF, i * rstride))
            g("buffer_load_dwordx4 %s, %s, %s, %s offen sc1" % (vr(d, 4), T[1], SRD_WS, S_OFF))
    poll(issue, [v(d + e) for d in dsts for e in range(4)], T[2])
    cur = list(dsts)
    while len(cur) > 1:
        nxt = []
        for i in range(0, len(cur), 2):
            if i + 1 < len(cur):
                for e in range(4):
                    g("v_add_f32 %s, %s, %s" % (v(cur[i] + e), v(cur[i] + e), v(cur[i + 1] + e)))
            nxt.append(cur[i])
        cur = nxt
    S = cur[0]
    rne2(v(S), v(S + 1), T[2])
    rne2(v(S + 2), v(S + 3), T[3])
    g("s_waitcnt lgkmcnt(0)")
    for e in range(4):
        g("v_add_f32 %s, %s, %s" % (v(XQ + e), v(XQ + e), v(S + e)))
    rne2(v(XQ), v(XQ + 1), T[2])
    rne2(v(XQ + 2), v(XQ + 3), T[3])
    if tail == "out":
        g("v_lshrrev_b32 %s, 1, %s" % (T[0], T[0]))
        g("buffer_store_dwordx2 %s, %s, %s, 0 offen" % (vr(6, 2), T[0], SRD_OUT))
        g("s_waitcnt vmcnt(0)")
        return
    g("ds_write_b128 %s, %s offset:%d" % (T[0], vr(XQ, 4), L_X))
    g("s_waitcnt lgkmcnt(0)")


XFb = D
g("s_cmp_lt_u32 %s, 2" % S_WAVE)
g("s_cbranch_scc1 L_e2a")
residual_update4([ACC + 4 * i for i in range(8)] + [LAND + 4 * i for i in range(8)], O_Y, 2048, 5, QOP)
stamp(10)
g("s_barrier")
g("s_cmp_ge_u32 s2, 224")
g("s_cbranch_scc1 L_nodw2")
dw_loads(Z)
g.label("L_nodw2")
g("s_cmp_lg_u32 %s, 0" % S_IT)
g("s_cbranch_scc1 L_gudone")
qproj_loads(ACC)
stream_piece(SRD_K, V_KOFF, 0, 0)
g("s_branch L_gudone")
g.label("L_e2a")
g("s_barrier")
stamp(10)
g("s_cmp_ge_u32 s2, 224")
g("s_cbranch_scc1 L_gudone")
read_x_all(XFb)
g("s_and_b32 %s, %s, 7" % (S_T0, S_HR))
g("s_lshl_b32 %s, %s, 6" % (S_T0, S_T0))
read_x_rows(XFb + 8, 3, S_T0)
layernorm([v(XFb + i) for i in range(8)], [v(XFb + 8 + i) for i in range(8)], XN, T[0], T[1], T[2])
h_base()
gemv_publish(GW, XN, PK, 3, S_T2, S_WSOFF)
for k in range(8):
    g("v_mov_b32 %s, %s" % (v(Z + k), v(DW + k)))
g.label("L_gudone")

stamp(11)
g("s_cmp_ge_u32 s2, 224")
g("s_cbranch_scc1 L_noe3")
g("s_lshr_b32 %s, %s, 5" % (S_T0, S_HR))
g("s_lshl_b32 %s, %s, 14" % (S_T0, S_T0))
g("s_lshl_b32 %s, %s, 12" % (S_T1, S_WAVE))
g("s_add_u32 %s, %s, %s" % (S_T0, S_T0, S_T1))
g("s_add_u32 %s, %s, 0x%x" % (S_T0, S_T0, O_H))
g("v_lshrrev_b32 %s, 4, %s" % (T[0], V_LANE))
g("v_lshlrev_b32 %s, 9, %s" % (T[0], T[0]))
g("v_and_b32 %s, 15, %s" % (T[1], V_LANE))
g("v_lshlrev_b32 %s, 4, %s" % (T[1], T[1]))
g("v_add3_u32 %s, %s, %s, %s" % (T[0], T[0], T[1], S_T0))
accd = [v(PK + i) for i in range(4)]
for a in accd:
    g("v_mov_b32 %s, 0" % a)


def e3_issue():
    for k, off in enumerate((0, 256, 2048, 2304)):
        g("buffer_load_dwordx4 %s, %s, %s, %s offen offset:%d sc1" % (vr(D + 4 * k, 4), T[0], SRD_WS, S_WSOFF, off))


poll(e3_issue, [v(D + i) for i in range(16)], T[1])
stamp(12)
g("s_cmp_ge_u32 %s, 2" % S_WAVE)
g("s_cbranch_scc1 L_nok0")
g("s_cmp_lg_u32 %s, 0" % S_IT)
g("s_cbranch_scc1 L_nok0")
stream_piece(SRD_K, V_KOFF, 0, 0)
g.label("L_nok0")
for e in range(8):
    g("v_add_f32 %s, %s, %s" % (v(D + e), v(D + e), v(D + 8 + e)))
reduce_x([v(D + e) for e in range(8)], (), [v(D + 8 + i) for i in range(8)])
for k in range(0, 8, 2):
    rne2(v(D + k), v(D + k + 1), v(D + 8 + k))
for e in range(4):
    g("v_max_f32 %s, 0, %s" % (v(D + e), v(D + e)))
for e in range(4):
    g("v_mul_f32 %s, %s, %s" % (v(D + e), v(D + e), v(D + 4 + e)))
rne2(v(D), v(D + 1), v(D + 8))
rne2(v(D + 2), v(D + 3), v(D + 9))
for i in range(4):
    fma_pairs(accd, [v(Z + 2 * i), v(Z + 2 * i + 1)], v(D + i), T[1])
for ctl in ("quad_perm:[1,0,3,2]", "quad_perm:[2,3,0,1]", "row_ror:4", "row_ror:8"):
    for r in accd:
        dpp("add_f32", r, r, r, ctl)
g("s_lshl_b32 %s, %s, 6" % (S_T0, S_WAVE))
g("v_add_u32 %s, %s, %s" % (T[0], S_T0, V_LANE))
g("s_mov_b32 exec_lo, 0x00010001")
g("s_mov_b32 exec_hi, 0x00010001")
g("ds_write_b128 %s, %s offset:%d" % (T[0], vr(PK, 4), EX_DN))
exec_all()
g("s_waitcnt lgkmcnt(0)")
g("s_barrier")
hand_out(4, EX_DN, S_HR, O_DN, S_WSOFF, D, T[0], nsum=4)
g.label("L_noe3")
stamp(13)
g("s_cmp_lg_u32 %s, 0" % S_IT)
g("s_cbranch_scc1 L_final")

g("s_cmp_lt_u32 %s, 2" % S_WAVE)
g("s_cbranch_scc1 L_e4a")
residual_update4([Z + 4 * i for i in range(7)], O_DN, 4096, 4, QOP)
stamp(14)
g("s_barrier")
read_x_all(XFb)
g("s_and_b32 %s, %s, 3" % (S_T0, S_WR))
g("s_lshl_b32 %s, %s, 7" % (S_T0, S_T0))
read_x_rows(XFb + 8, 2, S_T0)
layernorm([v(XFb + i) for i in range(8)], [v(XFb + 8 + i) for i in range(8)], XN, T[0], T[1], T[2])
q_base()
gemv_publish(ACC, XN, PK, 2, S_T2, S_WSNEXT)
g("s_branch L_noq2")
g.label("L_e4a")
g("s_cmp_lt_u32 s2, 224")
g("s_cbranch_scc1 L_k0done")
stream_piece(SRD_K, V_KOFF, 0, 0)
g.label("L_k0done")
g("s_barrier")
stamp(14)
stream_piece(SRD_K, V_KOFF, 1, 1)
g.label("L_noq2")
stamp(15)
gather_q(S_WSNEXT)
stamp(16)
stamp_shift()
g("s_mov_b32 %s, 1" % S_IT)
g("s_mov_b32 %s, 0x%x" % (S_WSOFF, ITS))
g("s_branch L_main")

g.label("L_final")
stamp_dump()
g("s_cmp_lg_u32 s2, 0")
g("s_cbranch_scc1 L_exit")
g("s_cmp_lt_u32 %s, 2" % S_WAVE)
g("s_cbranch_scc1 L_exit")
residual_update4([Z + 4 * i for i in range(7)], O_DN, 4096, 4, QOP, tail="out")
g.label("L_exit")
g("s_endpgm")

body = g.finalize()

ref = open("interleave_layers__gqa_block_cached__glu_gated_reglu__decode.s.ref").read()
head = []
for l in ref.splitlines():
    if l.startswith("; @launch"):
        head.append("; @launch grid=(256,1,1) block=(256,1,1) lds=%d" % LDS_BYTES)
        break
    head.append(l)
out = "\n".join(head) + """
.amdgcn_target "amdgcn-amd-amdhsa--gfx950"
.text
.globl %s
.p2align 8
.type %s,@function
%s:
""" % (NAME, NAME, NAME) + body + """
.section .rodata,"a"
.p2align 6
.amdhsa_kernel %s
  .amdhsa_next_free_vgpr 512
  .amdhsa_next_free_sgpr 102
  .amdhsa_accum_offset 256
  .amdhsa_group_segment_fixed_size 0
  .amdhsa_kernarg_size 96
  .amdhsa_user_sgpr_count 2
  .amdhsa_user_sgpr_kernarg_segment_ptr 1
  .amdhsa_system_sgpr_workgroup_id_x 1
  .amdhsa_float_denorm_mode_32 3
.end_amdhsa_kernel
""" % NAME
path = sys.argv[1] if len(sys.argv) > 1 else "interleave_layers__gqa_block_cached__glu_gated_reglu__decode.s"
open(path, "w").write(out)
print("wrote", path, len(out.splitlines()), "lines")
```

```python
import os
import struct
import sys
from asmlib import Asm

NAME = "interleave_layers__gqa_block_cached__glu_gated_reglu__decode_kernel"
NT = " nt"
VPOL = os.environ.get("VPOL", NT)
KPOL = os.environ.get("KPOL", NT)
WQPOL = os.environ.get("WQPOL", "")
WPOL = os.environ.get("WPOL", "")
DEBUG = len(sys.argv) > 2 and sys.argv[2].startswith("dbg")
VST = len(sys.argv) > 2 and sys.argv[2] == "dbgv"
CLK = len(sys.argv) > 2 and sys.argv[2] == "dbgc"

O_PART, O_ML, O_Y, O_DN, O_Q, O_H = 0x0, 0x80000, 0x88000, 0x90000, 0x98000, 0xA8000
ITS = 0x100000
WS_BYTES = 0x800000
O_DBG = 0x200000
O_PACE = 0xF0000
PACE = int(os.environ.get("PACE", "0"))
PACE2 = int(os.environ.get("PACE2", "0"))
P_FIRST = 3
DST = int(os.environ.get("DST", "0"))
O_DSC = 0x400000
O_CT = 0x600000
S_H, S_N = "s0", "s1"
DS1 = int(os.environ.get("DS1", "1"))
DS2 = int(os.environ.get("DS2", "4"))
TOUCH = int(os.environ.get("TOUCH", "0"))
TOUCHPOL = os.environ.get("TOUCHPOL", "")
STEAL = int(os.environ.get("STEAL", "0"))
O_SC = 0x280000
SC_MASK = {1: 0xf000f000, 2: 0xff00ff00}.get(STEAL, 0)
THRN = int(os.environ["THRN"]) if os.environ.get("THRN") else None
THRN2 = int(os.environ["THRN2"]) if os.environ.get("THRN2") else None

NLDS = 36
L_SCR = 0
L_V = 16384
L_A = L_SCR
L_ML = L_A + 8192
EX_Y = L_A
EX_DN = L_A + 512
EX_Q = L_A + 1024
L_B = L_ML + 128
L_X = L_B + 4096
L_PACE = L_X + 2048
LDS_BYTES = 163840
assert L_PACE + 4 <= L_V and L_V + 4 * NLDS * 1024 <= LDS_BYTES

SRD_K, SRD_V, SRD_WS, SRD_WQ, SRD_WO, SRD_WG, SRD_WU, SRD_WD, SRD_X, SRD_OUT, SRD_DBG = [
    "s[%d:%d]" % (i, i + 3) for i in range(8, 52, 4)]
S_WAVE, S_OFF, S_IT, S_WSOFF, S_TMO, S_SELLO, S_SELHI, S_HIM, S_C = [
    "s%d" % i for i in range(52, 61)]
S_R0, S_R1, S_R2, S_R3 = "s61", "s62", "s63", "s64"
S_T0, S_T1, S_T2, S_T3 = "s65", "s66", "s67", "s68"
S_WSNEXT = "s69"
S_ROT = "s99"
ROT = os.environ.get("ROT", "1")
ROT = 0 if ROT == "0" else ROT
S_WR, S_HR, S_PM, S_DR, S_PBASE = "s3", "s4", "s5", "s6", "s7"
SRD_P = SRD_X
S_BLK = S_WR if os.environ.get("BLK", "1") == "1" else "s2"

V_TID, V_LANE, V_KOFF, V_VOFF = "v0", "v1", "v2", "v3"
T = ["v%d" % i for i in range(4, 10)]
V_M, V_L = "v10", "v11"
QOP = 12
Z = 16
PK = 24
PKS = 28
D = 32
ACC = 48
LAND = 80
VC = 144


def v(i):
    return "v%d" % i


def vr(i, n):
    return "v[%d:%d]" % (i, i + n - 1)


def f32bits(x):
    return "0x%08x" % struct.unpack("<I", struct.pack("<f", x))[0]


g = Asm()
_lbl = [0]


def newlabel(p):
    _lbl[0] += 1
    return "L_%s_%d" % (p, _lbl[0])


def dpp(op, dst, s0, s1, ctl, row=0xF, bank=0xF):
    g("v_%s_dpp %s, %s, %s %s row_mask:0x%x bank_mask:0x%x" % (op, dst, s0, s1, ctl, row, bank))


def reduce_row3(regs, op="add_f32"):
    for ctl in ("quad_perm:[1,0,3,2]", "quad_perm:[2,3,0,1]", "row_ror:4", "row_ror:8"):
        for r in regs:
            dpp(op, r, r, r, ctl)
    for r in regs:
        dpp(op, r, r, r, "row_bcast:15", row=0xA)
    for r in regs:
        dpp(op, r, r, r, "row_bcast:31", row=0xC)


def reduce_x(regs, dpps, t):
    for ctl in dpps:
        for r in regs:
            dpp("add_f32", r, r, r, ctl)
    for sw in ("16", "32"):
        for i in range(0, len(regs), len(t)):
            rs = regs[i:i + len(t)]
            for r, tt in zip(rs, t):
                g("v_mov_b32 %s, %s" % (tt, r))
            for r, tt in zip(rs, t):
                g("v_permlane%s_swap_b32 %s, %s" % (sw, r, tt))
            for r, tt in zip(rs, t):
                g("v_add_f32 %s, %s, %s" % (r, r, tt))


def rne1(dst, src):
    g("v_cvt_pk_bf16_f32 %s, %s, %s" % (dst, src, src))
    g("v_lshlrev_b32 %s, 16, %s" % (dst, dst))


def rne2(a, b, tmp):
    g("v_cvt_pk_bf16_f32 %s, %s, %s" % (tmp, a, b))
    g("v_lshlrev_b32 %s, 16, %s" % (a, tmp))
    g("v_and_b32 %s, %s, %s" % (b, S_HIM, tmp))


def umax(tmp, rs):
    rs = list(rs)
    if len(rs) == 1:
        g("v_mov_b32 %s, %s" % (tmp, rs[0]))
        return
    if len(rs) >= 3:
        g("v_max3_u32 %s, %s, %s, %s" % (tmp, rs[0], rs[1], rs[2]))
        rs = rs[3:]
    else:
        g("v_max_u32 %s, %s, %s" % (tmp, rs[0], rs[1]))
        rs = rs[2:]
    while rs:
        if len(rs) >= 2:
            g("v_max3_u32 %s, %s, %s, %s" % (tmp, tmp, rs[0], rs[1]))
            rs = rs[2:]
        else:
            g("v_max_u32 %s, %s, %s" % (tmp, tmp, rs[0]))
            rs = rs[1:]


def timeout_loop(lp):
    g("s_sub_u32 %s, %s, 1" % (S_TMO, S_TMO))
    g("s_cmp_eq_u32 %s, 0" % S_TMO)
    g("s_cbranch_scc0 %s" % lp)
    g("s_mov_b32 %s, 1" % S_TMO)


def poll(issue, regs, tmp, restore=None):
    lp, done = newlabel("poll"), newlabel("pdone")
    g.label(lp)
    issue()
    g("s_waitcnt vmcnt(0)")
    umax(tmp, regs)
    g("v_cmp_eq_u32 vcc, -1, %s" % tmp)
    g("s_cbranch_vccz %s" % done)
    g("s_mov_b64 exec, vcc")
    timeout_loop(lp)
    g.label(done)
    (restore or exec_all)()


def poll_instr(issues, regsets, tmp):
    lp, done = newlabel("poll"), newlabel("pdone")
    g("s_mov_b32 %s, 0x%x" % (S_PM, (1 << len(issues)) - 1))
    g.label(lp)
    for i, iss in enumerate(issues):
        g("s_bitcmp1_b32 %s, %d" % (S_PM, i))
        g("s_cselect_b64 exec, -1, 0")
        iss()
    exec_all()
    g("s_waitcnt vmcnt(0)")
    g("s_mov_b32 %s, 0" % S_PM)
    for i, rs in enumerate(regsets):
        umax(tmp, rs)
        g("v_cmp_eq_u32 vcc, -1, %s" % tmp)
        g("s_cmp_lg_u64 vcc, 0")
        g("s_cselect_b32 %s, %d, 0" % (S_T3, 1 << i))
        g("s_or_b32 %s, %s, %s" % (S_PM, S_PM, S_T3))
    g("s_cmp_eq_u32 %s, 0" % S_PM)
    g("s_cbranch_scc1 %s" % done)
    timeout_loop(lp)
    g.label(done)


def layernorm(XS, X, XN, t0, t1, t2):
    g("v_add_f32 %s, %s, %s" % (t0, XS[0], XS[1]))
    for i in range(2, 8):
        g("v_add_f32 %s, %s, %s" % (t0, t0, XS[i]))
    reduce_row3([t0])
    g("v_readlane_b32 %s, %s, 63" % (S_R0, t0))
    g("v_mov_b32 %s, %s" % (t1, S_R0))
    g("v_mul_f32 %s, %s, %s" % (t1, f32bits(1.0 / 512), t1))
    for i in range(8):
        g("v_sub_f32 %s, %s, %s" % (XN[i], XS[i], t1))
    g("v_mul_f32 %s, %s, %s" % (t0, XN[0], XN[0]))
    for i in range(1, 8):
        g("v_fmac_f32 %s, %s, %s" % (t0, XN[i], XN[i]))
    reduce_row3([t0])
    g("v_readlane_b32 %s, %s, 63" % (S_R0, t0))
    g("v_mov_b32 %s, %s" % (t0, S_R0))
    g("v_mul_f32 %s, %s, %s" % (t0, f32bits(1.0 / 512), t0))
    rne1(t1, t1)
    rne1(t0, t0)
    g("v_add_f32 %s, %s, %s" % (t0, f32bits(1e-5), t0))
    rne1(t0, t0)
    g("v_sqrt_f32 %s, %s" % (t0, t0))
    rne1(t0, t0)
    g("v_rcp_f32 %s, %s" % (t2, t0))
    for i in range(0, 8, 2):
        g("v_sub_f32 %s, %s, %s" % (XN[i], X[i], t1))
        g("v_sub_f32 %s, %s, %s" % (XN[i + 1], X[i + 1], t1))
        rne2(XN[i], XN[i + 1], X[i])
        for k in (i, i + 1):
            g("v_mul_f32 %s, %s, %s" % (X[k], XN[k], t2))
            g("v_fma_f32 %s, -%s, %s, %s" % (XN[k], X[k], t0, XN[k]))
            g("v_fma_f32 %s, %s, %s, %s" % (XN[k], XN[k], t2, X[k]))
        rne2(XN[i], XN[i + 1], X[i])


def fma_pairs(acc, wregs, x, t):
    for k, w in enumerate(wregs):
        g("v_lshlrev_b32 %s, 16, %s" % (t, w))
        g("v_fmac_f32 %s, %s, %s" % (acc[2 * k], x, t))
        g("v_and_b32 %s, %s, %s" % (t, S_HIM, w))
        g("v_fmac_f32 %s, %s, %s" % (acc[2 * k + 1], x, t))


def slot_base(slot):
    return LAND + 32 * slot if slot < 2 else VC + 48 + 32 * (slot - 2)


TAILN = int(os.environ.get("TAILN", "0"))
TAILPOL = os.environ.get("TAILPOL", "")


def if_odd_(lb):
    g("s_bitcmp1_b32 s2, 0")
    g("s_cbranch_scc1 %s" % lb)


def stream_piece(srd, voff, piece, slot, pol=None, foreign=False):
    base = slot_base(slot)
    if foreign:
        piece += 4
    if pol is None:
        pol = VPOL if srd == SRD_V else KPOL
    for half in range(2):
        if ROT:
            if half == 0:
                g("s_add_u32 %s, %s, 0x%x" % (S_OFF, S_ROT, piece * 8192))
                g("s_and_b32 %s, %s, 0x1ffff" % (S_OFF, S_OFF))
                if foreign:
                    g("s_add_u32 %s, %s, 0x80000" % (S_OFF, S_OFF))
            else:
                g("s_add_u32 %s, %s, 0x1000" % (S_OFF, S_OFF))
        else:
            g("s_mov_b32 %s, 0x%x" % (S_OFF, piece * 8192 + half * 4096))
        for n in range(4):
            r = base + 16 * half + 4 * n
            g("buffer_load_dwordx4 %s, %s, %s, %s offen offset:%d%s" % (vr(r, 4), voff, srd, S_OFF, n * 1024, pol))


def lane63():
    g("s_mov_b32 exec_lo, 0")
    g("s_mov_b32 exec_hi, 0x80000000")


def exec_all():
    g("s_mov_b64 exec, -1")


def qproj_loads(W):
    g("v_lshrrev_b32 %s, 2, %s" % (T[0], V_LANE))
    g("v_lshlrev_b32 %s, 13, %s" % (T[0], T[0]))
    g("v_and_b32 %s, 3, %s" % (T[1], V_LANE))
    g("v_lshl_add_u32 %s, %s, 4, %s" % (T[0], T[1], T[0]))
    g("s_and_b32 %s, %s, 3" % (S_T0, S_WR))
    g("s_lshl_b32 %s, %s, 20" % (S_T0, S_T0))
    g("s_lshr_b32 %s, %s, 2" % (S_T1, S_WR))
    g("s_lshl_b32 %s, %s, 7" % (S_T1, S_T1))
    g("s_add_u32 %s, %s, %s" % (S_T0, S_T0, S_T1))
    g("s_lshl_b32 %s, %s, 6" % (S_T1, S_WAVE))
    g("s_add_u32 %s, %s, %s" % (S_T0, S_T0, S_T1))
    g("s_sub_u32 %s, %s, 128" % (S_T0, S_T0))
    for j in range(8):
        g("s_add_u32 %s, %s, 0x%x" % (S_OFF, S_T0, j * 16 * 8192))
        g("buffer_load_dwordx4 %s, %s, %s, %s offen%s" % (vr(W + 4 * j, 4), T[0], SRD_WQ, S_OFF, WQPOL))


def gu_loads(W):
    g("v_lshrrev_b32 %s, 3, %s" % (T[1], V_LANE))
    g("s_movk_i32 %s, 3584" % S_T0)
    g("v_mul_lo_u32 %s, %s, %s" % (T[1], S_T0, T[1]))
    g("v_and_b32 %s, 7, %s" % (T[2], V_LANE))
    g("v_lshl_add_u32 %s, %s, 4, %s" % (T[1], T[2], T[1]))
    g("s_and_b32 %s, %s, 7" % (S_T0, S_HR))
    g("s_mul_i32 %s, %s, %d" % (S_T0, S_T0, 64 * 3584))
    g("s_lshr_b32 %s, %s, 3" % (S_T1, S_HR))
    g("s_lshl_b32 %s, %s, 7" % (S_T1, S_T1))
    g("s_add_u32 %s, %s, %s" % (S_T0, S_T0, S_T1))
    for j in range(8):
        g("s_add_u32 %s, %s, %d" % (S_OFF, S_T0, j * 8 * 3584))
        g("buffer_load_dwordx4 %s, %s, %s, %s offen%s" % (vr(W + 4 * j, 4), T[1], SRD_P, S_OFF, WPOL))


def dw_loads(W):
    g("s_lshr_b32 %s, %s, 4" % (S_T0, S_DR))
    g("s_lshl_b32 %s, %s, 18" % (S_T0, S_T0))
    g("s_and_b32 %s, %s, 15" % (S_T1, S_DR))
    g("s_lshl_b32 %s, %s, 6" % (S_T1, S_T1))
    g("s_add_u32 %s, %s, %s" % (S_T0, S_T0, S_T1))
    g("s_lshl_b32 %s, %s, 16" % (S_T1, S_WAVE))
    g("s_add_u32 %s, %s, %s" % (S_T0, S_T0, S_T1))
    g("v_and_b32 %s, 15, %s" % (T[1], V_LANE))
    g("v_lshlrev_b32 %s, 12, %s" % (T[1], T[1]))
    g("v_lshrrev_b32 %s, 4, %s" % (T[2], V_LANE))
    g("v_lshl_add_u32 %s, %s, 4, %s" % (T[1], T[2], T[1]))
    for i in range(4):
        g("buffer_load_dwordx4 %s, %s, %s, %s offen offset:%d%s" % (vr(W + 4 * i, 4), T[1], SRD_WD, S_T0, i * 1024, WPOL))


def gemv_publish(W, XN, A, lb, sbase, soff):
    acc = [v(A + i) for i in range(8)]
    for a in acc:
        g("v_mov_b32 %s, 0" % a)
    for i in range(8):
        fma_pairs(acc, [v(W + 4 * i + k) for k in range(4)], XN[i], T[1])
    reduce_x(acc, ("row_ror:4", "row_ror:8") if lb == 2 else ("row_ror:8",), [v(D + 8 + i) for i in range(4)])
    g("v_and_b32 %s, %d, %s" % (T[0], (1 << lb) - 1, V_LANE))
    g("v_lshlrev_b32 %s, 5, %s" % (T[0], T[0]))
    g("v_bfe_u32 %s, %s, %d, 1" % (T[1], V_LANE, lb))
    g("v_cmp_eq_u32 vcc, 1, %s" % T[1])
    g("v_lshl_add_u32 %s, %s, 4, %s" % (T[0], T[1], T[0]))
    g("v_add_u32 %s, %s, %s" % (T[0], sbase, T[0]))
    for e in range(4):
        g("v_cndmask_b32 %s, %s, %s, vcc" % (acc[e], acc[e], acc[4 + e]))
    g("s_mov_b64 exec, 0x%x" % ((1 << (2 << lb)) - 1))
    g("buffer_store_dwordx4 %s, %s, %s, %s offen sc1" % (vr(A, 4), T[0], SRD_WS, soff))
    exec_all()


def q_base():
    g("s_lshl_b32 %s, %s, 8" % (S_T2, S_WR))
    g("s_lshl_b32 %s, %s, 7" % (S_T3, S_WAVE))
    g("s_add_u32 %s, %s, %s" % (S_T2, S_T2, S_T3))
    g("s_add_u32 %s, %s, 0x%x" % (S_T2, S_T2, O_Q - 256))


def h_base():
    g("s_lshl_b32 %s, %s, 9" % (S_T2, S_HR))
    g("s_lshl_b32 %s, %s, 8" % (S_T3, S_WAVE))
    g("s_add_u32 %s, %s, %s" % (S_T2, S_T2, S_T3))
    g("s_add_u32 %s, %s, 0x%x" % (S_T2, S_T2, O_H))


def hand_in(A, nq, ex, wave0, t):
    g("s_mul_i32 %s, %s, %d" % (S_T0, S_WAVE, 16 * nq))
    g("v_mov_b32 %s, %s" % (t, S_T0))
    lane63()
    for k in range(nq):
        g("ds_write_b128 %s, %s offset:%d" % (t, vr(A + 4 * k, 4), ex - 16 * nq * wave0 + 16 * k))
    exec_all()
    g("s_waitcnt lgkmcnt(0)")


def hand_in_l(A, nl, ex, t):
    g("s_mul_i32 %s, %s, %d" % (S_T0, S_WAVE, 32 * nl))
    g("v_lshlrev_b32 %s, 5, %s" % (t, V_LANE))
    g("v_add_u32 %s, %s, %s" % (t, S_T0, t))
    g("s_mov_b64 exec, 0x%x" % ((1 << nl) - 1))
    for k in range(2):
        g("ds_write_b128 %s, %s offset:%d" % (t, vr(A + 4 * k, 4), ex + 16 * k))
    exec_all()
    g("s_waitcnt lgkmcnt(0)")


def hand_out(nl, ex, srole, obase, soff, A, t, nsum=1, glu=False):
    skip = newlabel("nopub")
    g("s_cmp_lg_u32 %s, 0" % S_WAVE)
    g("s_cbranch_scc1 %s" % skip)
    g("v_lshlrev_b32 %s, 4, %s" % (t, V_LANE))
    g("s_mov_b64 exec, 0x%x" % ((1 << nl) - 1))
    for k in range(nsum):
        g("ds_read_b128 %s, %s offset:%d" % (vr(A + 4 * k, 4), t, ex + 16 * nl * k))
    g("s_lshl_b32 %s, %s, 7" % (S_T0, srole))
    g("s_add_u32 %s, %s, 0x%x" % (S_T0, S_T0, obase))
    g("v_add_u32 %s, %s, %s" % (t, S_T0, t))
    g("s_waitcnt lgkmcnt(0)")
    if glu:
        for e in range(4):
            g("v_max_f32 %s, 0, %s" % (v(A + e), v(A + e)))
        for e in range(4):
            g("v_mul_f32 %s, %s, %s" % (v(A + e), v(A + e), v(A + 4 + e)))
        rne2(v(A), v(A + 1), v(A + 4))
        rne2(v(A + 2), v(A + 3), v(A + 5))
    elif nsum == 2:
        for e in range(4):
            g("v_add_f32 %s, %s, %s" % (v(A + e), v(A + e), v(A + 4 + e)))
    elif nsum == 4:
        for e in range(4):
            g("v_add_f32 %s, %s, %s" % (v(A + e), v(A + e), v(A + 4 + e)))
        for e in range(4):
            g("v_add_f32 %s, %s, %s" % (v(A + 8 + e), v(A + 8 + e), v(A + 12 + e)))
        for e in range(4):
            g("v_add_f32 %s, %s, %s" % (v(A + e), v(A + e), v(A + 8 + e)))
    g("buffer_store_dwordx4 %s, %s, %s, %s offen sc1" % (vr(A, 4), t, SRD_WS, soff))
    exec_all()
    g.label(skip)


def gather_q_addr():
    g("v_and_b32 %s, 3, %s" % (T[0], V_LANE))
    g("v_lshlrev_b32 %s, 11, %s" % (T[0], T[0]))
    g("v_lshrrev_b32 %s, 5, %s" % (T[1], V_LANE))
    g("v_lshl_add_u32 %s, %s, 10, %s" % (T[0], T[1], T[0]))
    g("v_bfe_u32 %s, %s, 4, 1" % (T[1], V_LANE))
    g("v_lshl_add_u32 %s, %s, 7, %s" % (T[0], T[1], T[0]))
    g("v_bfe_u32 %s, %s, 2, 2" % (T[1], V_LANE))
    g("v_lshl_add_u32 %s, %s, 5, %s" % (T[0], T[1], T[0]))
    g("s_lshr_b32 %s, %s, 5" % (S_T0, S_BLK))
    g("s_lshl_b32 %s, %s, 13" % (S_T0, S_T0))
    g("s_add_u32 %s, %s, 0x%x" % (S_T0, S_T0, O_Q))
    g("v_add_u32 %s, %s, %s" % (T[0], S_T0, T[0]))


def gather_q_issue(G, soff):
    for r in range(4):
        for k in range(2):
            g("buffer_load_dwordx4 %s, %s, %s, %s offen offset:%d sc1" % (vr(G + 8 * r + 4 * k, 4), T[0], SRD_WS, soff, 256 * r + 16 * k))


def gather_q_sum(G):
    for e in range(8):
        g("v_add_f32 %s, %s, %s" % (v(G + e), v(G + e), v(G + 8 + e)))
        g("v_add_f32 %s, %s, %s" % (v(G + 16 + e), v(G + 16 + e), v(G + 24 + e)))
    for e in range(8):
        g("v_add_f32 %s, %s, %s" % (v(G + e), v(G + e), v(G + 16 + e)))
    for p in range(4):
        g("v_cvt_pk_bf16_f32 %s, %s, %s" % (v(QOP + p), v(G + 2 * p), v(G + 2 * p + 1)))


def gather_q(soff):
    gather_q_addr()
    poll(lambda: gather_q_issue(Z, soff), [v(Z + i) for i in range(32)], T[1])
    gather_q_sum(Z)


def gather_q_shared(soff):
    g("s_lshr_b32 %s, %s, 5" % (S_T0, S_BLK))
    g("s_lshl_b32 %s, %s, 13" % (S_T0, S_T0))
    g("s_lshl_b32 %s, %s, 11" % (S_T1, S_WAVE))
    g("s_add_u32 %s, %s, %s" % (S_T0, S_T0, S_T1))
    g("s_add_u32 %s, %s, 0x%x" % (S_T0, S_T0, O_Q))
    g("v_lshlrev_b32 %s, 4, %s" % (T[0], V_LANE))
    g("v_add_u32 %s, %s, %s" % (T[0], S_T0, T[0]))
    g("s_lshl_b32 %s, %s, 8" % (S_T0, S_WAVE))
    g("v_lshlrev_b32 %s, 3, %s" % (T[2], V_LANE))
    g("v_add_u32 %s, %s, %s" % (T[2], S_T0, T[2]))
    g("v_and_b32 %s, 3, %s" % (T[3], V_LANE))
    g("v_lshlrev_b32 %s, 8, %s" % (T[3], T[3]))
    g("v_and_b32 %s, 0x3c, %s" % (T[4], V_LANE))
    g("v_lshl_add_u32 %s, %s, 2, %s" % (T[3], T[4], T[3]))

    def issue():
        for k in range(2):
            g("buffer_load_dwordx4 %s, %s, %s, %s offen offset:%d sc1" % (vr(Z + 4 * k, 4), T[0], SRD_WS, soff, 1024 * k))
    poll(issue, [v(Z + i) for i in range(8)], T[1])
    reduce_x([v(Z + i) for i in range(8)], (), [v(PK + i) for i in range(8)])
    for p in range(4):
        g("v_cvt_pk_bf16_f32 %s, %s, %s" % (v(PK + p), v(Z + 2 * p), v(Z + 2 * p + 1)))
    g("s_mov_b64 exec, 0xffff")
    for k in range(2):
        g("ds_write_b64 %s, %s offset:%d" % (T[2], vr(PK + 2 * k, 2), EX_Q + 128 * k))
    exec_all()
    g("s_waitcnt lgkmcnt(0)")
    g("s_barrier")
    g("ds_read_b128 %s, %s offset:%d" % (vr(QOP, 4), T[3], EX_Q))
    g("s_waitcnt lgkmcnt(0)")


def vop_loc(o):
    if o < 64:
        return ("a", 4 * o)
    if o < 64 + NLDS:
        return ("l", (o - 64) * 1024)
    return ("v", VC + 4 * (o - 64 - NLDS))


def stamp(k):
    if not DEBUG:
        return
    g("s_memrealtime s[100:101]")
    g("s_waitcnt lgkmcnt(0)")
    g("s_mov_b32 s%d, s100" % (70 + k))
    if CLK and k in (1, 4, 5):
        if k == 5:
            lb = newlabel("clk")
            g("s_cmp_lg_u32 %s, 0" % S_IT)
            g("s_cbranch_scc1 %s" % lb)
        g("s_memtime s[100:101]")
        g("s_waitcnt lgkmcnt(0)")
        if k == 1:
            g("s_mov_b32 s0, s100")
        elif k == 4:
            g("s_sub_u32 s0, s100, s0")
            g("s_mov_b32 s1, s100")
        else:
            g("s_sub_u32 s1, s100, s1")
            g.label(lb)


def stamp_shift():
    if not DEBUG or VST:
        return
    for k in range(12):
        g("s_mov_b32 s%d, s%d" % (87 + k, 75 + k))


def stamp_dump():
    if not DEBUG:
        return
    if sys.argv[2] == "dbgo":
        g("s_mov_b64 exec, 1")
        g("v_mov_b32 v255, 0")
        g("s_not_b32 s100, s70")
        sel = ["s100", "s70", "s74", "s87", "s90", "s92", "s95", "s96", "s98", "s75", "s78", "s80", "s83"]
        for k, sr in enumerate(sel):
            g("v_mov_b32 v254, %s" % sr)
            g("buffer_atomic_umax v254, v255, %s, 0 offen offset:%d sc1" % (SRD_DBG, 4 * (k + 1)))
            g("s_waitcnt vmcnt(0)")
        g("s_mov_b64 exec, -1")
        return
    g("s_lshl_b32 s100, s2, 2")
    g("s_add_u32 s100, s100, %s" % S_WAVE)
    g("s_lshl_b32 s100, s100, 8")
    g("s_add_u32 s100, s100, 0x%x" % O_DBG)
    g("s_mov_b64 exec, 1")
    g("v_mov_b32 v255, s100")
    for k in range(29):
        g("v_mov_b32 v254, s%d" % (70 + k))
        g("buffer_store_dword v254, v255, %s, 0 offen offset:%d" % (SRD_WS, 4 * k))
        g("s_waitcnt vmcnt(0)")
    if CLK or DST:
        for k in range(2):
            g("v_mov_b32 v254, s%d" % k)
            g("buffer_store_dword v254, v255, %s, 0 offen offset:%d" % (SRD_WS, 4 * (29 + k)))
            g("s_waitcnt vmcnt(0)")
    g("s_mov_b64 exec, -1")


g("s_load_dwordx16 s[64:79], s[0:1], 0")
g("s_load_dwordx8 s[80:87], s[0:1], 64")
g("v_and_b32 %s, 63, %s" % (V_LANE, V_TID))
g("v_lshrrev_b32 %s, 6, %s" % (T[0], V_TID))
g("v_readfirstlane_b32 %s, %s" % (S_WAVE, T[0]))
g("s_cmp_ge_u32 s2, 256")
g("s_cbranch_scc1 L_exit")
g("s_waitcnt lgkmcnt(0)")


def mk_srd(srd, plo, nbytes):
    b = int(srd[2:].split(":")[0])
    g("s_mov_b32 s%d, s%d" % (b, plo))
    g("s_and_b32 s%d, s%d, 0xffff" % (b + 1, plo + 1))
    g("s_mov_b32 s%d, 0x%x" % (b + 2, nbytes))
    g("s_mov_b32 s%d, 0x00020000" % (b + 3))


mk_srd(SRD_X, 64, 1024)
mk_srd(SRD_K, 66, 0x8000000)
mk_srd(SRD_V, 68, 0x8000000)
mk_srd(SRD_WQ, 70, 512 * 4096 * 2)
mk_srd(SRD_WO, 72, 4096 * 512 * 2)
mk_srd(SRD_WG, 76, 512 * 1792 * 2)
mk_srd(SRD_WU, 78, 512 * 1792 * 2)
mk_srd(SRD_WD, 80, 1792 * 512 * 2)
mk_srd(SRD_OUT, 82, 1024)
mk_srd(SRD_DBG, 84, 256)
mk_srd(SRD_WS, 86, WS_BYTES)
g("s_mov_b32 %s, 0" % S_IT)
stamp(0)
g("s_mov_b32 %s, 0" % S_WSOFF)
g("s_and_b32 %s, s2, 7" % S_T0)
g("s_lshr_b32 %s, s2, 3" % S_T1)
g("s_lshl_b32 %s, %s, 5" % (S_WR, S_T0))
g("s_add_u32 %s, %s, %s" % (S_WR, S_WR, S_T1))
g("s_mul_i32 %s, %s, 28" % (S_HR, S_T0))
g("s_add_u32 %s, %s, %s" % (S_HR, S_HR, S_T1))
g("s_lshr_b32 %s, %s, 1" % (S_DR, S_HR))
g("s_bitcmp1_b32 %s, 0" % S_HR)
g("s_cselect_b32 %s, 0x100, %s" % (S_DR, S_DR))
g("s_cmp_ge_u32 s2, 224")
g("s_cselect_b32 %s, 0x100, %s" % (S_DR, S_DR))
g("s_mov_b32 %s, 0x%x" % (S_WSNEXT, ITS))
g("s_mov_b32 %s, 400000" % S_TMO)
g("s_mov_b32 %s, 0x05040100" % S_SELLO)
g("s_mov_b32 %s, 0x07060302" % S_SELHI)
g("s_mov_b32 %s, 0xffff0000" % S_HIM)
g("s_mov_b32 %s, %s" % (S_C, f32bits(128 ** -0.5 * 1.4426950408889634)))
if ROT == "1":
    g("s_lshl_b32 %s, s2, 2" % S_ROT)
    g("s_add_u32 %s, %s, %s" % (S_ROT, S_ROT, S_WAVE))
    g("s_and_b32 %s, %s, 15" % (S_ROT, S_ROT))
    g("s_lshl_b32 %s, %s, 13" % (S_ROT, S_ROT))
elif ROT == "2":
    g("s_lshr_b32 %s, s2, 3" % S_ROT)
    g("s_lshl_b32 %s, %s, 2" % (S_ROT, S_ROT))
    g("s_add_u32 %s, %s, %s" % (S_ROT, S_ROT, S_WAVE))
    g("s_and_b32 %s, %s, 15" % (S_ROT, S_ROT))
    g("s_lshl_b32 %s, %s, 13" % (S_ROT, S_ROT))
g("s_lshl_b32 %s, %s, 19" % (S_T0, S_BLK))
g("s_lshl_b32 %s, %s, 17" % (S_T1, S_WAVE))
g("s_add_u32 %s, %s, %s" % (S_T0, S_T0, S_T1))
g("v_bfe_u32 %s, %s, 2, 2" % (T[0], V_LANE))
g("v_lshlrev_b32 %s, 8, %s" % (T[0], T[0]))
g("v_lshrrev_b32 %s, 4, %s" % (T[1], V_LANE))
g("v_lshlrev_b32 %s, 6, %s" % (T[1], T[1]))
g("v_and_b32 %s, 3, %s" % (T[2], V_LANE))
g("v_lshlrev_b32 %s, 4, %s" % (T[2], T[2]))
g("v_add3_u32 %s, %s, %s, %s" % (V_KOFF, T[0], T[1], T[2]))
g("v_add_u32 %s, %s, %s" % (V_KOFF, S_T0, V_KOFF))
g("v_lshlrev_b32 %s, 4, %s" % (V_VOFF, V_LANE))
g("v_add_u32 %s, %s, %s" % (V_VOFF, S_T0, V_VOFF))

g("v_mov_b32 %s, -1" % T[4])
g("v_mov_b32 %s, -1" % T[5])
g("v_lshlrev_b32 %s, 3, %s" % (T[0], V_TID))
g("s_lshl_b32 %s, %s, 11" % (S_T0, S_BLK))
g("v_add_u32 %s, %s, %s" % (T[0], S_T0, T[0]))
g("buffer_store_dwordx2 %s, %s, %s, 0 offen sc1" % (vr(8, 2), T[0], SRD_WS))
g("buffer_store_dwordx2 %s, %s, %s, %s offen sc1" % (vr(8, 2), T[0], SRD_WS, S_WSNEXT))
g("v_lshlrev_b32 %s, 3, %s" % (T[1], V_LANE))
if DST:
    g("v_mov_b32 %s, -1" % T[2])
    g("v_mov_b32 %s, -1" % T[3])
    g("s_lshl_b32 %s, s2, 2" % S_T0)
    g("s_add_u32 %s, %s, %s" % (S_T0, S_T0, S_WAVE))
    g("s_lshl_b32 %s, %s, 11" % (S_T1, S_T0))
    g("s_add_u32 %s, %s, 0x%x" % (S_T1, S_T1, O_DSC))
    g("v_lshlrev_b32 %s, 4, %s" % (T[0], V_LANE))
    for k in range(2):
        g("buffer_store_dwordx4 %s, %s, %s, %s offen offset:%d sc1" % (vr(6, 4), T[0], SRD_WS, S_T1, 1024 * k))
    g("s_lshl_b32 %s, %s, 8" % (S_T1, S_T0))
    g("s_add_u32 %s, %s, 0x%x" % (S_T1, S_T1, O_CT))
    g("v_lshlrev_b32 %s, 7, %s" % (T[0], V_LANE))
    g("v_mov_b32 %s, 0" % v(QOP))
    g("s_mov_b64 exec, 3")
    g("buffer_store_dword %s, %s, %s, %s offen sc1" % (v(QOP), T[0], SRD_WS, S_T1))
    exec_all()
if STEAL:
    g("s_bitcmp0_b32 s2, 0")
    g("s_cbranch_scc1 L_noscclr")
    g("s_lshr_b32 %s, s2, 1" % S_T0)
    g("s_lshl_b32 %s, %s, 12" % (S_T0, S_T0))
    g("s_lshl_b32 %s, %s, 10" % (S_T1, S_WAVE))
    g("s_add_u32 %s, %s, %s" % (S_T0, S_T0, S_T1))
    g("s_add_u32 %s, %s, 0x%x" % (S_T0, S_T0, O_SC))
    g("buffer_store_dwordx2 %s, %s, %s, %s offen sc1" % (vr(8, 2), T[1], SRD_WS, S_T0))
    g("buffer_store_dwordx2 %s, %s, %s, %s offen offset:512 sc1" % (vr(8, 2), T[1], SRD_WS, S_T0))
    g.label("L_noscclr")


def clear_small(nl, sbase_code):
    sbase_code()
    g("v_add_u32 %s, %s, %s" % (T[0], S_T0, T[1]))
    g("s_mov_b64 exec, 0x%x" % ((1 << nl) - 1))
    g("buffer_store_dwordx2 %s, %s, %s, 0 offen sc1" % (vr(8, 2), T[0], SRD_WS))
    g("buffer_store_dwordx2 %s, %s, %s, %s offen sc1" % (vr(8, 2), T[0], SRD_WS, S_WSNEXT))
    exec_all()


def role_base(srole, obase):
    def f():
        g("s_lshl_b32 %s, %s, 7" % (S_T0, srole))
        g("s_add_u32 %s, %s, 0x%x" % (S_T0, S_T0, obase))
    return f


if VST:
    stamp(17)
XF = [v(PK + i) for i in range(8)]
XF2 = [v(VC + i) for i in range(8)]


def copy_t2():
    g("s_mov_b32 %s, %s" % (S_T0, S_T2))


g("s_cmp_lt_u32 %s, 2" % S_WAVE)
g("s_cbranch_scc1 L_clear0")
q_base()
clear_small(16, copy_t2)
g("s_and_b32 %s, %s, 3" % (S_T0, S_WR))
g("s_lshl_b32 %s, %s, 8" % (S_T0, S_T0))
g("v_lshrrev_b32 %s, 2, %s" % (T[3], V_LANE))
g("v_lshlrev_b32 %s, 1, %s" % (T[3], T[3]))
for j in range(8):
    g("buffer_load_ushort %s, %s, %s, %s offen offset:%d" % (XF2[j], T[3], SRD_X, S_T0, 32 * j))
qproj_loads(ACC)
g("s_branch L_noclear")
g.label("L_clear0")
g("s_cmp_ge_u32 s2, 224")
g("s_cbranch_scc1 L_clear1")
h_base()
clear_small(32, copy_t2)
g.label("L_clear1")
g("s_cmp_lg_u32 %s, 0" % S_WAVE)
g("s_cbranch_scc1 L_noclear")
if PACE:
    g("s_bfe_u32 s0, s2, 0x30003")
    g("s_lshl_b32 s0, s0, 11")
    g("s_add_u32 s0, s0, 0x%x" % O_PACE)
    g("s_and_b32 %s, s2, 7" % S_T0)
    g("s_lshl_b32 %s, %s, 8" % (S_T0, S_T0))
    g("s_lshr_b32 %s, s2, 7" % S_T1)
    g("s_lshl_b32 %s, %s, 7" % (S_T1, S_T1))
    g("s_add_u32 %s, %s, %s" % (S_T0, S_T0, S_T1))
    g("s_add_u32 %s, %s, 0x%x" % (S_T0, S_T0, O_PACE))
    g("s_bfe_u32 %s, s2, 0x40003" % S_T1)
    g("s_cmp_eq_u32 %s, 8" % S_T1)
    g("s_cselect_b32 s1, %s, 0x800000" % S_T0)
    g("v_lshlrev_b32 %s, 11, %s" % (T[2], V_LANE))
    g("v_add_u32 %s, s1, %s" % (T[2], T[2]))
    g("v_mov_b32 %s, 0" % T[3])
    g("s_mov_b64 exec, 0xff")
    g("buffer_store_dword %s, %s, %s, 0 offen sc1" % (T[3], T[2], SRD_WS))
    exec_all()
    g("v_mov_b32 %s, 0x%x" % (T[2], L_PACE))
    g("v_mov_b32 %s, 0x7fffffff" % T[3])
    g("ds_write_b32 %s, %s" % (T[2], T[3]))
    g("s_waitcnt lgkmcnt(0)")
clear_small(4, role_base(S_BLK, O_ML))
clear_small(16, role_base(S_WR, O_Y))
g("s_cmp_ge_u32 %s, 112" % S_DR)
g("s_cbranch_scc1 L_noclear")
clear_small(16, role_base(S_DR, O_DN))
g.label("L_noclear")
if VST:
    stamp(18)

XN = [v(Z + i) for i in range(8)]
DUM = ACC + 28
CNT = QOP
QG = ACC
ops = []


def note(tag, n, w0=False):
    ops.extend([(tag, w0)] * n)


def wait_for(tag, w0ctx=False):
    last = max(i for i, t in enumerate(ops) if t[0] == tag)
    n0 = len(ops) - 1 - last
    n1 = sum(1 for t in ops[last + 1:] if not t[1])
    if w0ctx or n0 == n1:
        g("s_waitcnt vmcnt(%d)" % n0)
        return
    lb = newlabel("w0w")
    g("s_cmp_eq_u32 %s, 0" % S_WAVE)
    g("s_cbranch_scc1 %s" % lb)
    g("s_waitcnt vmcnt(%d)" % n1)
    g.label(lb)
    g("s_waitcnt vmcnt(%d)" % n0)


S_PRD, S_PWR = "s0", "s1"


def pace_reg(p):
    return V_M if p < 15 else V_VOFF


def pace_publish(val):
    g("v_lshlrev_b32 %s, 11, %s" % (T[4], V_LANE))
    g("v_add_u32 %s, %s, %s" % (T[4], S_PWR, T[4]))
    g("v_mov_b32 %s, %d" % (T[3], val))
    g("s_mov_b64 exec, 0xff")
    g("buffer_store_dword %s, %s, %s, 0 offen sc1" % (T[3], T[4], SRD_WS))
    exec_all()


def pace_load(r):
    g("v_lshlrev_b32 %s, 7, %s" % (T[4], V_LANE))
    g("s_mov_b64 exec, 0xffff")
    g("buffer_load_dword %s, %s, %s, %s offen sc1" % (r, T[4], SRD_WS, S_PRD))
    exec_all()


def pace_limit(val):
    g("v_mov_b32 %s, 0x%x" % (T[4], L_PACE))
    g("v_mov_b32 %s, %s" % (T[3], val))
    g("ds_write_b32 %s, %s" % (T[4], T[3]))


CK = [int(x) for x in os.environ.get("CK", "7,11,15,19,23,27").split(",")]
CK2 = [int(x) for x in os.environ.get("CK2", "35,39").split(",")]
NREP = 8
PUB = [int(x) for x in os.environ["PUB"].split(",")] if os.environ.get("PUB") else None


def pace(p, slack):
    lw, ld, lsp, lgo = [newlabel(x) for x in ("pw", "pd", "psp", "pgo")]
    ck = CK + CK2
    check, load, last = p in ck, p + 1 in ck, p in (CK[-1], CK2[-1])
    r = pace_reg(p - 1)
    g("s_cmp_lg_u32 %s, 0" % S_WAVE)
    g("s_cbranch_scc1 %s" % (lw if check else ld))
    if PUB is None or p in PUB:
        pace_publish(p + 1)
        note("ps%d" % p, 1, True)
    if check:
        wait_for("px%d" % (p - 1), True)
        if p < 15:
            g("v_readfirstlane_b32 %s, %s" % (S_T0, V_L))
            g("s_cmp_lt_u32 %s, 256" % S_T0)
            g("s_cbranch_scc1 %s" % lgo)
        g.label(lsp)
        dpp("add_u32", r, r, r, "quad_perm:[1,0,3,2]")
        dpp("min_u32", r, r, r, "quad_perm:[2,3,0,1]")
        dpp("min_u32", r, r, r, "row_half_mirror")
        dpp("min_u32", r, r, r, "row_ror:8")
        g("v_readlane_b32 %s, %s, 0" % (S_T0, r))
        g("s_add_u32 %s, %s, %d" % (S_T0, S_T0, slack))
        pace_limit(S_T0)
        g("s_cmp_ge_u32 %s, %d" % (S_T0, 2 * (p + 1)))
        g("s_cbranch_scc1 %s" % lgo)
        pace_load(r)
        g("s_waitcnt vmcnt(0)")
        timeout_loop(lsp)
        g.label(lgo)
        if last:
            pace_limit("0x7fffffff")
    if load:
        if p + 1 < 15:
            g("v_mov_b32 %s, 0" % T[4])
            g("buffer_load_dword %s, %s, %s, 0 offen sc1" % (V_L, T[4], SRD_DBG))
            note("pc%d" % p, 1, True)
        pace_load(pace_reg(p))
        note("px%d" % p, 1, True)
    if check:
        g("s_branch %s" % ld)
        g.label(lw)
        g("v_mov_b32 %s, 0x%x" % (T[4], L_PACE))
        g("ds_read_b32 %s, %s" % (T[3], T[4]))
        g("s_waitcnt lgkmcnt(0)")
        g("v_readfirstlane_b32 %s, %s" % (S_T0, T[3]))
        g("s_cmp_ge_u32 %s, %d" % (S_T0, 2 * (p + 1)))
        g("s_cbranch_scc1 %s" % ld)
        g("s_sleep 1")
        timeout_loop(lw)
    g.label(ld)


def exec56():
    g("s_mov_b32 exec_lo, -1")
    g("s_mov_b32 exec_hi, 0x00ffffff")


def warm(which):
    g("s_and_b32 %s, s2, 7" % S_T0)
    g("s_lshr_b32 %s, s2, 3" % S_T1)
    if which == "wq":
        g("s_lshl_b32 %s, %s, 10" % (S_T0, S_T0))
        g("s_lshl_b32 %s, %s, 17" % (S_T1, S_T1))
        g("s_add_u32 %s, %s, %s" % (S_T0, S_T0, S_T1))
        g("s_lshl_b32 %s, %s, 15" % (S_T1, S_WAVE))
        g("s_add_u32 %s, %s, %s" % (S_T0, S_T0, S_T1))
        for i in range(4):
            g("s_add_u32 %s, %s, 0x%x" % (S_OFF, S_T0, i * 8192))
            g("buffer_load_dwordx4 %s, %s, %s, %s offen" % (vr(DUM, 4), T[3], SRD_WQ, S_OFF))
        note("warm", 4)
    elif which == "wo":
        g("s_lshl_b32 %s, %s, 19" % (S_T0, S_T0))
        g("s_lshl_b32 %s, %s, 14" % (S_T1, S_T1))
        g("s_add_u32 %s, %s, %s" % (S_T0, S_T0, S_T1))
        g("s_lshl_b32 %s, %s, 12" % (S_T1, S_WAVE))
        g("s_add_u32 %s, %s, %s" % (S_T0, S_T0, S_T1))
        for i in range(4):
            g("buffer_load_dwordx4 %s, %s, %s, %s offen offset:%d" % (vr(DUM, 4), T[3], SRD_WO, S_T0, i * 1024))
        note("warm", 4)
    elif which == "wd":
        g("s_mul_i32 %s, %s, 229376" % (S_T0, S_T0))
        g("s_mul_i32 %s, %s, 7168" % (S_T1, S_T1))
        g("s_add_u32 %s, %s, %s" % (S_T0, S_T0, S_T1))
        g("s_mul_i32 %s, %s, 1792" % (S_T1, S_WAVE))
        g("s_add_u32 %s, %s, %s" % (S_T0, S_T0, S_T1))
        exec56()
        for i in range(2):
            g("buffer_load_dwordx4 %s, %s, %s, %s offen offset:%d" % (vr(DUM, 4), T[3], SRD_WD, S_T0, i * 896))
        exec_all()
        note("warm", 2)
    elif which == "gu":
        g("s_mul_i32 %s, %s, 448" % (S_T0, S_T0))
        g("s_mul_i32 %s, %s, %d" % (S_T1, S_T1, 16 * 3584))
        g("s_add_u32 %s, %s, %s" % (S_T0, S_T0, S_T1))
        g("s_mul_i32 %s, %s, %d" % (S_T1, S_WAVE, 4 * 3584))
        g("s_add_u32 %s, %s, %s" % (S_T0, S_T0, S_T1))
        g("v_cmp_le_u32 vcc, 28, %s" % V_LANE)
        g("v_mov_b32 %s, %d" % (T[2], 3584 - 448))
        g("v_cndmask_b32 %s, 0, %s, vcc" % (T[2], T[2]))
        g("v_add_u32 %s, %s, %s" % (T[2], T[2], T[3]))
        exec56()
        for i in range(2):
            g("s_add_u32 %s, %s, %d" % (S_OFF, S_T0, i * 2 * 3584))
            g("buffer_load_dwordx4 %s, %s, %s, %s offen" % (vr(DUM, 4), T[2], SRD_WG, S_OFF))
            g("buffer_load_dwordx4 %s, %s, %s, %s offen" % (vr(DUM, 4), T[2], SRD_WU, S_OFF))
        exec_all()
        note("warm", 4)


g("v_lshlrev_b32 %s, 1, %s" % (T[3], V_LANE))
for i in range(8):
    g("buffer_load_ushort %s, %s, %s, 0 offen offset:%d" % (XF[i], T[3], SRD_X, 128 * i))
stream_piece(SRD_V, V_VOFF, 0, 0)
note("p0", 8)
PB = int(SRD_P[2:].split(":")[0])
GB, UB, QB = [int(x[2:].split(":")[0]) for x in (SRD_WG, SRD_WU, SRD_WQ)]
g("s_cmp_eq_u32 %s, 0" % S_WAVE)
g("s_cselect_b32 s%d, s%d, s%d" % (PB, GB, UB))
g("s_cselect_b32 s%d, s%d, s%d" % (PB + 1, GB + 1, UB + 1))
g("s_cmp_lt_u32 s2, 224")
g("s_cselect_b32 s%d, s%d, 0" % (PB + 2, GB + 2))
if VST:
    stamp(19)
stream_piece(SRD_V, V_VOFF, 1, 1)
note("p1", 8)
VD = int(os.environ.get("VD", "2"))
vslot = {p: (p % VD if p < 12 else p % 2) for p in range(16)}
vnext = VD
for p in range(2, VD):
    stream_piece(SRD_V, V_VOFF, p, p)
    note("p%d" % p, 8)
stamp(1)

g("v_lshlrev_b32 %s, 4, %s" % (T[5], V_LANE))
g("s_mul_i32 %s, %s, %d" % (S_T0, S_WAVE, NLDS * 1024))
g("s_add_u32 %s, %s, %d" % (S_T0, S_T0, L_V))
g("v_add_u32 %s, %s, %s" % (T[5], S_T0, T[5]))
V_LDSV = T[5]
U_Q, U_ARR = 0, 1
WARM = os.environ.get('WARM', '0') == '1'
for u in range(16):
    slot = vslot[u]
    R = slot_base(slot)
    wait_for("p%d" % u)
    if VST and u < 9:
        stamp(20 + u)
    for s in range(8):
        w_, b = s // 2, s % 2
        kind, loc = vop_loc(8 * u + s)
        sel = S_SELHI if b else S_SELLO
        tmpb = D + 4 * (s % 4)
        for p in range(4):
            dst = v(loc + p) if kind == "v" else v(tmpb + p)
            g("v_perm_b32 %s, %s, %s, %s" % (dst, v(R + 4 * (2 * p + 1) + w_), v(R + 4 * (2 * p) + w_), sel))
        if kind == "a":
            for p in range(4):
                g("v_accvgpr_write_b32 a%d, %s" % (loc + p, v(tmpb + p)))
        elif kind == "l":
            g("ds_write_b128 %s, %s offset:%d" % (V_LDSV, vr(tmpb, 4), loc))
            if s % 4 == 3:
                g("s_waitcnt lgkmcnt(0)")
    if THRN is not None and u >= 2 and u not in (14, 15):
        g("s_waitcnt vmcnt(%d)" % THRN)
    if os.environ.get("THR") == "1" and u >= 2:
        g("s_bitcmp1_b32 s2, 0")
        g("s_cbranch_scc1 L_thr%d" % u)
        g("s_waitcnt vmcnt(0)")
        g.label("L_thr%d" % u)
    if PACE and u >= P_FIRST:
        pace(u, PACE)
    if vnext < 16:
        if vslot[vnext] == slot:
            stream_piece(SRD_V, V_VOFF, vnext, slot)
            note("p%d" % vnext, 8)
            vnext += 1
    else:
        assert slot == vnext % 2 and u >= 14
        if vnext - 16 < STEAL:
            lb1, lb2 = newlabel("fo"), newlabel("fo")
            if_odd_(lb1)
            stream_piece(SRD_K, V_KOFF, 16 - STEAL + vnext - 16, slot, None, True)
            g("s_branch %s" % lb2)
            g.label(lb1)
        stream_piece(SRD_K, V_KOFF, vnext - 16, slot)
        if vnext - 16 < STEAL:
            g.label(lb2)
        note("p%d" % vnext, 8)
        vnext += 1
    if WARM and u in (6, 8, 10):
        g("v_lshlrev_b32 %s, 4, %s" % (T[3], V_LANE))
        warm({6: "wo", 8: "gu", 10: "wd"}[u])
    if u == U_Q:
        g.comment("x, wq have landed (older than the piece just waited for): LN, q projection, publish q1 slice")
        for i in range(8):
            g("v_lshlrev_b32 %s, 16, %s" % (XF[i], XF[i]))
        g("s_cmp_lg_u32 %s, 0" % S_WAVE)
        g("s_cbranch_scc1 L_nox")
        g("v_lshlrev_b32 %s, 2, %s" % (T[2], V_LANE))
        for i in range(8):
            g("ds_write_b32 %s, %s offset:%d" % (T[2], XF[i], L_X + 256 * i))
        g("s_waitcnt lgkmcnt(0)")
        g.label("L_nox")
        g("s_cmp_lt_u32 %s, 2" % S_WAVE)
        g("s_cbranch_scc1 L_noq1")
        for i in range(8):
            g("v_lshlrev_b32 %s, 16, %s" % (XF2[i], XF2[i]))
        layernorm(XF, XF2, XN, T[2], T[3], T[4])
        q_base()
        gemv_publish(ACC, XN, PK, 2, S_T2, "0")
        g.label("L_noq1")
    if u == U_ARR:
        g.comment("clears and the q1 store are complete (older than the piece just waited for): arrive")
        g("s_barrier")
        g("s_cmp_lg_u32 %s, 0" % S_WAVE)
        g("s_cbranch_scc1 L_noarr")
        g("v_mov_b32 %s, 0" % T[0])
        g("v_mov_b32 %s, 1" % T[1])
        g("s_mov_b64 exec, 1")
        g("buffer_atomic_add %s, %s, %s, 0 offen sc1" % (T[1], T[0], SRD_DBG))
        exec_all()
        g.label("L_noarr")
    if u == 13:
        g("v_mov_b32 %s, 0" % T[0])
        g("buffer_load_dword %s, %s, %s, 0 offen sc1" % (v(CNT), T[0], SRD_DBG))
        note("cnt", 1)
    if u == 14:
        stamp(2)
        lp, done = newlabel("cnt"), newlabel("cdone")
        wait_for("cnt")
        g("v_mov_b32 %s, 0" % T[0])
        g.label(lp)
        g("v_readfirstlane_b32 %s, %s" % (S_T0, v(CNT)))
        g("s_cmp_ge_u32 %s, 256" % S_T0)
        g("s_cbranch_scc1 %s" % done)
        g("buffer_load_dword %s, %s, %s, 0 offen sc1" % (v(CNT), T[0], SRD_DBG))
        g("s_waitcnt vmcnt(0)")
        timeout_loop(lp)
        g.label(done)
        gather_q_addr()
        gather_q_issue(QG, "0")
        note("qg", 8)
        stamp(3)
wait_for("qg")
umax(T[1], [v(QG + i) for i in range(32)])
g("v_cmp_eq_u32 vcc, -1, %s" % T[1])
gather_q_sum(QG)
g("s_cbranch_vccz L_q1ok")
gather_q("0")
g.label("L_q1ok")
g("s_waitcnt lgkmcnt(0)")

stamp(4)
WW = LAND
DW = LAND + 16
DW2 = ACC
GML = PKS
GW = LAND + 32
QW = LAND + 32
GO = ACC


def wo_dw_loads():
    g("s_lshr_b32 %s, %s, 4" % (S_T0, S_WR))
    g("s_lshl_b32 %s, %s, 18" % (S_T0, S_T0))
    g("s_and_b32 %s, %s, 15" % (S_T1, S_WR))
    g("s_lshl_b32 %s, %s, 6" % (S_T1, S_T1))
    g("s_add_u32 %s, %s, %s" % (S_T0, S_T0, S_T1))
    g("s_lshl_b32 %s, %s, 16" % (S_T1, S_WAVE))
    g("s_add_u32 %s, %s, %s" % (S_T0, S_T0, S_T1))
    g("v_lshrrev_b32 %s, 2, %s" % (T[1], V_LANE))
    g("v_lshlrev_b32 %s, 12, %s" % (T[1], T[1]))
    g("v_and_b32 %s, 3, %s" % (T[2], V_LANE))
    g("v_lshl_add_u32 %s, %s, 4, %s" % (T[1], T[2], T[1]))
    for i in range(4):
        g("buffer_load_dwordx4 %s, %s, %s, %s offen offset:%d%s" % (vr(WW + 4 * i, 4), T[1], SRD_WO, S_T0, i * 1024, WPOL))


ORD1 = list(range(16))
ORD2 = [int(x) for x in os.environ["ORD2"].split(",")] if os.environ.get("ORD2") else None
assert ORD2 is None or sorted(ORD2) == ORD1
assert ORD2 or not PACE
assert not STEAL or (ORD2 and S_BLK == "s2" and not PACE and ROT == "1")


def softmax_pv(order, ch):
    g.comment("softmax for chunk %d" % ch)
    g("v_max3_f32 %s, %s, %s, %s" % (T[0], v(Z), v(Z + 1), v(Z + 2)))
    g("v_max3_f32 %s, %s, %s, %s" % (T[0], T[0], v(Z + 3), v(Z + 4)))
    g("v_max3_f32 %s, %s, %s, %s" % (T[0], T[0], v(Z + 5), v(Z + 6)))
    g("v_max_f32 %s, %s, %s" % (T[0], T[0], v(Z + 7)))
    dpp("max_f32", T[0], T[0], T[0], "row_ror:4")
    dpp("max_f32", T[0], T[0], T[0], "row_ror:8")
    for sw in ("16", "32"):
        g("v_mov_b32 %s, %s" % (T[1], T[0]))
        g("v_permlane%s_swap_b32 %s, %s" % (sw, T[0], T[1]))
        g("v_max_f32 %s, %s, %s" % (T[0], T[0], T[1]))
    if ch == 0:
        g("v_mov_b32 %s, %s" % (V_M, T[0]))
    else:
        g("v_max_f32 %s, %s, %s" % (T[0], T[0], V_M))
        g("v_sub_f32 %s, %s, %s" % (T[1], V_M, T[0]))
        g("v_mul_f32 %s, %s, %s" % (T[1], S_C, T[1]))
        g("v_exp_f32 %s, %s" % (T[1], T[1]))
        g("v_mov_b32 %s, %s" % (V_M, T[0]))
        g("v_mul_f32 %s, %s, %s" % (V_L, V_L, T[1]))
        for r, sr in enumerate((S_R0, S_R1, S_R2, S_R3)):
            g("v_readlane_b32 %s, %s, %d" % (sr, T[1], r))
        for s in range(8):
            for r, sr in enumerate((S_R0, S_R1, S_R2, S_R3)):
                g("v_mul_f32 %s, %s, %s" % (v(ACC + 4 * s + r), sr, v(ACC + 4 * s + r)))
    g("v_mul_f32 %s, %s, %s" % (T[1], S_C, V_M))
    for a in range(8):
        g("v_fma_f32 %s, %s, %s, -%s" % (v(Z + a), v(Z + a), S_C, T[1]))
    for a in range(8):
        g("v_exp_f32 %s, %s" % (v(Z + a), v(Z + a)))
    for a in range(8):
        g("v_add_f32 %s, %s, %s" % (V_L, V_L, v(Z + a)))
    for p in range(4):
        g("v_cvt_pk_bf16_f32 %s, %s, %s" % (v(PK + p), v(Z + 2 * p), v(Z + 2 * p + 1)))
    g.comment("PV for chunk %d" % ch)
    pvops = [(pn, s) for pn in range(4) for s in range(8)]
    ldsq = [k for k, (pn, s) in enumerate(pvops) if vop_loc(8 * order[4 * ch + k // 8] + k % 8)[0] == "l"]
    issued = 0

    def issue_lds(k):
        slotr = D + 4 * (ldsq.index(k) % 4)
        g("ds_read_b128 %s, %s offset:%d" % (vr(slotr, 4), V_LDSV, vop_loc(8 * order[4 * ch + k // 8] + k % 8)[1]))
    for k in ldsq[:4]:
        issue_lds(k)
        issued += 1
    for k, (pn, s) in enumerate(pvops):
        if s == 0 and pn > 0:
            for p in range(4):
                g("v_mov_b32_dpp %s, %s row_shl:%d row_mask:0xf bank_mask:0xf" % (v(PKS + p), v(PK + p), 4 * pn))
        A = vr(PK if pn == 0 else PKS, 4)
        kind, loc = vop_loc(8 * order[4 * ch + k // 8] + k % 8)
        if kind == "a":
            B = "a[%d:%d]" % (loc, loc + 3)
        elif kind == "v":
            B = vr(loc, 4)
        else:
            idx = ldsq.index(k)
            B = vr(D + 4 * (idx % 4), 4)
            g("s_waitcnt lgkmcnt(%d)" % (issued - idx - 1))
        g("v_mfma_f32_16x16x32_bf16 %s, %s, %s, %s" % (vr(ACC + 4 * s, 4), A, B, vr(ACC + 4 * s, 4)))
        if kind == "l" and issued < len(ldsq):
            issue_lds(ldsq[issued])
            issued += 1


def qk_mfma_(R, n):
    g("v_mfma_f32_16x16x32_bf16 %s, %s, %s, 0" % (vr(D + 4 * (n % 4), 4), vr(R + 4 * n, 4), vr(QOP, 4)))


def qk_red_(pn, n):
    db = D + 4 * (n % 4)
    others = [t for t in range(4) if t != pn]
    first = True
    for k, t in enumerate(others):
        rot = (16 - 4 * (t - pn)) % 16
        src1 = v(db + pn) if first else T[0]
        last = k == 2
        dst = v(Z + n) if last else T[0]
        dpp("add_f32", dst, v(db + t), src1, "row_ror:%d" % rot, bank=(1 << pn) if last else 0xF)
        first = False


def sc_addr(t, t2):
    g("v_lshrrev_b32 %s, 4, %s" % (t, V_LANE))
    g("v_lshlrev_b32 %s, 8, %s" % (t, t))
    g("v_and_b32 %s, 7, %s" % (t2, V_LANE))
    g("v_lshl_add_u32 %s, %s, 5, %s" % (t, t2, t))
    g("s_lshr_b32 %s, s2, 1" % S_T0)
    g("s_lshl_b32 %s, %s, 12" % (S_T0, S_T0))
    g("s_lshl_b32 %s, %s, 10" % (S_T1, S_WAVE))
    g("s_add_u32 %s, %s, %s" % (S_T0, S_T0, S_T1))
    g("s_add_u32 %s, %s, 0x%x" % (S_T0, S_T0, O_SC))
    g("v_add_u32 %s, %s, %s" % (t, S_T0, t))


def sc_exec():
    g("s_mov_b32 exec_lo, 0x%x" % SC_MASK)
    g("s_mov_b32 exec_hi, 0x%x" % SC_MASK)


def sc_loads(t):
    for k in range(2):
        g("buffer_load_dwordx4 %s, %s, %s, 0 offen offset:%d sc1" % (vr(LAND + 32 + 4 * k, 4), t, SRD_WS, 16 * k))


def if_odd(lb):
    g("s_bitcmp1_b32 s2, 0")
    g("s_cbranch_scc1 %s" % lb)


def steal_preloop():
    if_odd("L_main")
    for k in range(STEAL):
        pn = 4 - STEAL + k
        R = LAND + 32 * k
        g("s_waitcnt vmcnt(8)")
        for n in range(4):
            qk_mfma_(R, n)
        for n in range(4):
            qk_red_(pn, n)
            qk_mfma_(R, n + 4)
        if k < STEAL - 1 or STEAL == 1:
            stream_piece(SRD_K, V_KOFF, k, k)
        for n in range(4, 8):
            qk_red_(pn, n)
    sc_addr(T[1], T[2])
    sc_exec()
    for k in range(2):
        g("buffer_store_dwordx4 %s, %s, %s, 0 offen offset:%d sc1" % (vr(Z + 4 * k, 4), T[1], SRD_WS, 16 * k))
    exec_all()
    if STEAL == 1:
        g("s_waitcnt vmcnt(0)")
    else:
        stream_piece(SRD_K, V_KOFF, 1, 1)


def attn_pass(order, tag):
    st = STEAL if not tag else 0
    slack = PACE2 if tag else PACE
    pt = (lambda i: "q%d" % i) if tag else (lambda i: "p%d" % (16 + i))
    if tag:
        del ops[:]
        note(pt(0), 8)
        note(pt(1), 8)
    for s in range(8):
        for r in range(4):
            g("v_mov_b32 %s, 0" % v(ACC + 4 * s + r))
    g("v_mov_b32 %s, 0" % V_L)
    for ch in range(4):
        for pn in range(4):
            i = 4 * ch + pn
            slot = i % 2
            R = LAND + 32 * slot
            if i == 15:
                g("s_cmp_lt_u32 %s, 2" % S_WAVE)
                g("s_cbranch_scc1 L_w15%s" % tag + "")
                g("s_waitcnt vmcnt(4)")
                g.label("L_w15%s" % tag + "")
            skipqk = st and i >= 16 - st
            if skipqk and i == 14:
                if_odd("L_st14a")
            if st and i == 15 - st:
                lb = newlabel("stw")
                g("s_bitcmp0_b32 s2, 0")
                g("s_cbranch_scc1 %s" % lb)
                g("s_waitcnt vmcnt(%d)" % (0 if st == 2 else 2))
                g.label(lb)
            if slack and i < 15:
                wait_for(pt(i))
            else:
                g("s_waitcnt vmcnt(8)")
            if skipqk and i == 15:
                if_odd("L_st15a")
            if not tag and i >= 16 - TOUCH:
                g("v_and_b32 %s, 0xfffffc00, %s" % (T[3], V_KOFF))
                g("v_lshl_add_u32 %s, %s, 7, %s" % (T[3], V_LANE, T[3]))
                g("s_add_u32 %s, %s, 0x%x" % (S_OFF, S_ROT, order[i] * 8192))
                g("s_and_b32 %s, %s, 0x1ffff" % (S_OFF, S_OFF))
                g("buffer_load_dword %s, %s, %s, %s offen%s" % (V_VOFF, T[3], SRD_K, S_OFF, TOUCHPOL))
            for n in range(4):
                qk_mfma_(R, n)
            for n in range(4):
                qk_red_(pn, n)
                qk_mfma_(R, n + 4)
            if skipqk and i == 14:
                g.label("L_st14a")
            if skipqk and i == 15:
                g("s_branch L_st15b")
                g.label("L_st15a")
                sc_exec()
                umax(T[2], [v(LAND + 32 + e) for e in range(8)])
                g("v_cmp_eq_u32 vcc, -1, %s" % T[2])
                g("s_cbranch_vccz L_scok")
                sc_addr(T[1], T[2])
                poll(lambda: sc_loads(T[1]), [v(LAND + 32 + e) for e in range(8)], T[2], restore=sc_exec)
                g.label("L_scok")
                for e in range(8):
                    g("v_mov_b32 %s, %s" % (v(Z + e), v(LAND + 32 + e)))
                exec_all()
                g.label("L_st15b")
            if i + 2 < 16:
                if slack:
                    pace((30 if tag else 16) + i, slack)
                if (THRN2 if tag else THRN) is not None:
                    g("s_waitcnt vmcnt(%d)" % (THRN2 if tag else THRN))
                note(pt(i + 2), 8)
                if st and i + 2 >= 16 - st:
                    if_odd("L_sti%d" % i)
                stream_piece(SRD_K, V_KOFF, order[i + 2], slot, TAILPOL if tag == "" and ORD2 and i + 2 >= 16 - TAILN else None)
                if st and i == 13:
                    g("s_branch L_stj%d" % i)
                    g.label("L_sti%d" % i)
                    sc_addr(T[1], T[2])
                    sc_exec()
                    sc_loads(T[1])
                    exec_all()
                    g.label("L_stj%d" % i)
                elif st and i + 2 >= 16 - st:
                    g.label("L_sti%d" % i)
            elif i == 14:
                wo_dw_loads()
                g("s_cmp_ge_u32 %s, 2" % S_WAVE)
                g("s_cbranch_scc1 L_nodw%s" % tag + "")
                dw_loads(DW)
                g.label("L_nodw%s" % tag + "")
            else:
                g("s_cmp_ge_u32 %s, 2" % S_WAVE)
                g("s_cbranch_scc1 L_nogl%s" % tag + "")
                gu_loads(GW)
                g.label("L_nogl%s" % tag + "")
            if skipqk:
                if_odd("L_stc%d" % i)
            for n in range(4, 8):
                qk_red_(pn, n)
            if skipqk:
                g.label("L_stc%d" % i)
        if ch == 3:
            stamp(5)
        softmax_pv(order, ch)


def ct_base(dst, partner, mul_sh, obase):
    if partner:
        g("s_xor_b32 %s, s2, 3" % dst)
        g("s_lshl_b32 %s, %s, 2" % (dst, dst))
    else:
        g("s_lshl_b32 %s, s2, 2" % dst)
    g("s_add_u32 %s, %s, %s" % (dst, dst, S_WAVE))
    g("s_lshl_b32 %s, %s, %d" % (dst, dst, mul_sh))
    g("s_add_u32 %s, %s, 0x%x" % (dst, dst, obase))


def ct_load(r, partner, off):
    ct_base(S_T0, partner, 8, O_CT + off)
    g("v_mov_b32 %s, 0" % T[4])
    g("s_mov_b64 exec, 1")
    g("buffer_load_dword %s, %s, %s, %s offen sc1" % (r, T[4], SRD_WS, S_T0))
    exec_all()


def ct_store(val, partner, off):
    ct_base(S_T0, partner, 8, O_CT + off)
    g("v_mov_b32 %s, 0" % T[4])
    g("v_mov_b32 %s, %s" % (T[2], val))
    g("s_mov_b64 exec, 1")
    g("buffer_store_dword %s, %s, %s, %s offen sc1" % (T[2], T[4], SRD_WS, S_T0))
    exec_all()


def foreign_piece(piece, slot):
    base = slot_base(slot)
    g("s_xor_b32 %s, s2, 3" % S_T0)
    g("s_lshl_b32 %s, %s, 2" % (S_T0, S_T0))
    g("s_add_u32 %s, %s, %s" % (S_T0, S_T0, S_WAVE))
    g("s_add_u32 %s, %s, %d" % (S_T0, S_T0, piece))
    g("s_and_b32 %s, %s, 15" % (S_T0, S_T0))
    g("s_lshl_b32 %s, %s, 13" % (S_OFF, S_T0))
    for half in range(2):
        if half:
            g("s_add_u32 %s, %s, 0x1000" % (S_OFF, S_OFF))
        for n in range(4):
            r = base + 16 * half + 4 * n
            g("buffer_load_dwordx4 %s, %s, %s, %s offen offset:%d%s" % (vr(r, 4), V_VOFF, SRD_K, S_OFF, n * 1024, KPOL))


def either(cond, a, b):
    l1, l2 = newlabel("ea"), newlabel("eb")
    cond()
    g("s_cbranch_scc1 %s" % l1)
    b()
    g("s_branch %s" % l2)
    g.label(l1)
    a()
    g.label(l2)


def dsc_exec():
    g("s_cmp_eq_u32 %s, 4" % S_N)
    g("s_cselect_b32 exec_lo, -1, 0xff00ff00")
    g("s_cselect_b32 exec_hi, -1, 0xff00ff00")


def dsc_loads():
    for k in range(2):
        g("buffer_load_dwordx4 %s, %s, %s, %s offen offset:%d sc1" % (vr(LAND + 32 + 4 * k, 4), T[1], SRD_WS, S_T2, 16 * k))


def dsc_addr(partner):
    ct_base(S_T2, partner, 11, O_DSC)
    g("v_lshlrev_b32 %s, 5, %s" % (T[1], V_LANE))


def foreign_block(pieces, nxt):
    for k, pc in enumerate(pieces):
        R = LAND + 32 * k
        g("s_waitcnt vmcnt(8)")
        for n in range(4):
            qk_mfma_(R, n)
        for n in range(4):
            qk_red_(pc & 3, n)
            qk_mfma_(R, n + 4)
        nxt(k)
        for n in range(4, 8):
            qk_red_(pc & 3, n)
    dsc_addr(True)
    m = sum(0xf << (4 * (pc & 3)) for pc in pieces) * 0x10001
    g("s_mov_b32 exec_lo, 0x%x" % m)
    g("s_mov_b32 exec_hi, 0x%x" % m)
    for k in range(2):
        g("buffer_store_dwordx4 %s, %s, %s, %s offen offset:%d sc1" % (vr(Z + 4 * k, 4), T[1], SRD_WS, S_T2, 16 * k))
    exec_all()


def attn_pass_dst():
    order = ORD1
    ct_store("1", False, 0)
    g("s_xor_b32 %s, s2, 3" % S_T0)
    g("s_sub_u32 %s, %s, s2" % (S_T0, S_T0))
    g("s_lshl_b32 %s, %s, 19" % (S_T0, S_T0))
    g("v_add_u32 %s, %s, %s" % (V_VOFF, S_T0, V_KOFF))
    g("s_mov_b32 %s, 0" % S_H)
    g("s_mov_b32 %s, 0" % S_N)
    for s in range(8):
        for r in range(4):
            g("v_mov_b32 %s, 0" % v(ACC + 4 * s + r))
    g("v_mov_b32 %s, 0" % V_L)
    for ch in range(4):
        for pn in range(4):
            i = 4 * ch + pn
            slot = i % 2
            R = LAND + 32 * slot
            lskip, lred, lend = "L_ds%d" % i, "L_dr%d" % i, "L_de%d" % i
            if i == 15:
                g("s_cmp_lt_u32 %s, 2" % S_WAVE)
                g("s_cbranch_scc1 L_w15")
                g("s_waitcnt vmcnt(4)")
                g.label("L_w15")
                g("s_waitcnt vmcnt(8)")
            if i >= 12:
                g("s_cmp_gt_u32 %s, %d" % (S_N, 15 - i))
                g("s_cbranch_scc1 %s" % lskip)
            if i in (11, 13):
                lb = newlabel("dw")
                g("s_cmp_lg_u32 %s, %d" % (S_N, 15 - i))
                g("s_cbranch_scc1 %s" % lb)
                g("s_waitcnt vmcnt(0)")
                g.label(lb)
            if i < 15:
                g("s_waitcnt vmcnt(8)")
            for n in range(4):
                qk_mfma_(R, n)
            for n in range(4):
                qk_red_(pn, n)
                qk_mfma_(R, n + 4)
            if i == 15:
                g("s_branch %s" % lred)
                g.label(lskip)
                dsc_exec()
                umax(T[2], [v(LAND + 32 + e) for e in range(8)])
                g("v_cmp_eq_u32 vcc, -1, %s" % T[2])
                g("s_cbranch_vccz L_scok")
                dsc_addr(False)
                poll(dsc_loads, [v(LAND + 32 + e) for e in range(8)], T[2], restore=dsc_exec)
                g.label("L_scok")
                for e in range(8):
                    g("v_mov_b32 %s, %s" % (v(Z + e), v(LAND + 32 + e)))
                exec_all()
                g.label(lred)
            elif i >= 12:
                g.label(lskip)
            if i == DS1 + 1:
                g("v_readfirstlane_b32 %s, %s" % (S_H, T[3]))
            if i == DS2 + 1:
                g("v_readfirstlane_b32 %s, %s" % (S_T1, T[3]))
                g("s_cmp_eq_u32 %s, 0" % S_T1)
                g("s_cselect_b32 %s, 4, 2" % S_T1)
                g("s_cmp_eq_u32 %s, 0" % S_H)
                g("s_cselect_b32 %s, %s, 0" % (S_H, S_T1))
                g("s_cbranch_scc0 L_nocommit")
                ct_store(S_H, True, 128)
                g.label("L_nocommit")
            if i in (DS1, DS2):
                ct_load(T[3], True, 0)
            if i == 8:
                ct_load(T[3], False, 128)
            if i == 9:
                g("v_readfirstlane_b32 %s, %s" % (S_N, T[3]))
            if i in (6, 7):
                either(lambda: g("s_cmp_lg_u32 %s, 0" % S_H), lambda: foreign_piece(8 + i, slot),
                       lambda: stream_piece(SRD_K, V_KOFF, i + 2, slot))
            elif i < 10:
                stream_piece(SRD_K, V_KOFF, i + 2, slot)
            elif i < 13:
                lb = newlabel("di")
                g("s_cmp_gt_u32 %s, %d" % (S_N, 13 - i))
                g("s_cbranch_scc1 %s" % lb)
                stream_piece(SRD_K, V_KOFF, i + 2, slot)
                g.label(lb)
            elif i == 13:
                def scl():
                    dsc_addr(False)
                    dsc_exec()
                    dsc_loads()
                    exec_all()
                either(lambda: g("s_cmp_lg_u32 %s, 0" % S_N), scl, lambda: stream_piece(SRD_K, V_KOFF, 15, slot))
            elif i == 14:
                wo_dw_loads()
                g("s_cmp_ge_u32 %s, 2" % S_WAVE)
                g("s_cbranch_scc1 L_nodw")
                dw_loads(DW)
                g.label("L_nodw")
            else:
                g("s_cmp_ge_u32 %s, 2" % S_WAVE)
                g("s_cbranch_scc1 L_nogl")
                gu_loads(GW)
                g.label("L_nogl")
            if i >= 12:
                g("s_cmp_gt_u32 %s, %d" % (S_N, 15 - i))
                g("s_cbranch_scc1 %s" % lend)
            for n in range(4, 8):
                qk_red_(pn, n)
            if i >= 12:
                g.label(lend)
        if ch == 3:
            stamp(5)
        softmax_pv(order, ch)
        if ch == 1:
            g("s_cmp_eq_u32 %s, 0" % S_H)
            g("s_cbranch_scc1 L_nohelp")
            foreign_block((14, 15), lambda k: either(lambda: g("s_cmp_eq_u32 %s, 4" % S_H), lambda: foreign_piece(12 + k, k),
                                                     lambda: stream_piece(SRD_K, V_KOFF, 8 + k, k)))
            g("s_cmp_lg_u32 %s, 4" % S_H)
            g("s_cbranch_scc1 L_nohelp")
            foreign_block((12, 13), lambda k: stream_piece(SRD_K, V_KOFF, 8 + k, k))
            g.label("L_nohelp")


if STEAL:
    steal_preloop()
g.label("L_main")
if DST:
    assert ORD2 and S_BLK == "s2" and not PACE and not STEAL and ROT == "1" and DS1 + 1 <= DS2 <= 4
    attn_pass_dst()
else:
    attn_pass(ORD1, "")
g.label("L_endpass")
stamp(6)
dpp("add_f32", V_L, V_L, V_L, "row_ror:4")
dpp("add_f32", V_L, V_L, V_L, "row_ror:8")
for sw in ("16", "32"):
    g("v_mov_b32 %s, %s" % (T[1], V_L))
    g("v_permlane%s_swap_b32 %s, %s" % (sw, V_L, T[1]))
    g("v_add_f32 %s, %s, %s" % (V_L, V_L, T[1]))
g("s_lshl_b32 %s, %s, 11" % (S_T0, S_WAVE))
g("v_lshlrev_b32 %s, 4, %s" % (T[0], V_LANE))
g("v_add_u32 %s, %s, %s" % (T[0], S_T0, T[0]))
g("s_lshl_b32 %s, %s, 5" % (S_T0, S_WAVE))
g("v_lshlrev_b32 %s, 3, %s" % (T[1], V_LANE))
g("v_add_u32 %s, %s, %s" % (T[1], S_T0, T[1]))
g("s_mov_b64 exec, 0xffff")
for s in range(8):
    g("ds_write_b128 %s, %s offset:%d" % (T[0], vr(ACC + 4 * s, 4), L_A + 256 * s))
g("s_mov_b64 exec, 0xf")
g("ds_write_b64 %s, %s offset:%d" % (T[1], vr(10, 2), L_ML))
exec_all()
g("s_waitcnt lgkmcnt(0)")
g("s_barrier")
g("v_and_b32 %s, 3, %s" % (T[0], V_LANE))
g("v_lshlrev_b32 %s, 9, %s" % (T[0], T[0]))
g("v_lshrrev_b32 %s, 2, %s" % (T[1], V_LANE))
g("v_lshlrev_b32 %s, 4, %s" % (T[1], T[1]))
g("v_add_u32 %s, %s, %s" % (T[0], T[0], T[1]))
g("s_lshl_b32 %s, %s, 2" % (S_T0, S_WAVE))
g("v_add_u32 %s, %s, %s" % (T[0], S_T0, T[0]))
g("s_lshl_b32 %s, %s, 3" % (S_T0, S_WAVE))
g("v_mov_b32 %s, %s" % (T[1], S_T0))
for vv in range(4):
    g("ds_read_b32 %s, %s offset:%d" % (v(D + 2 * vv), T[0], L_A + 2048 * vv))
    g("ds_read_b32 %s, %s offset:%d" % (v(D + 2 * vv + 1), T[0], L_A + 2048 * vv + 256))
    g("ds_read_b64 %s, %s offset:%d" % (vr(Z + 2 * vv, 2), T[1], L_ML + 32 * vv))
g("s_waitcnt lgkmcnt(0)")
g("v_max3_f32 %s, %s, %s, %s" % (T[2], v(Z), v(Z + 2), v(Z + 4)))
g("v_max_f32 %s, %s, %s" % (T[2], T[2], v(Z + 6)))
for vv in range(4):
    g("v_sub_f32 %s, %s, %s" % (v(Z + 2 * vv), v(Z + 2 * vv), T[2]))
    g("v_mul_f32 %s, %s, %s" % (v(Z + 2 * vv), S_C, v(Z + 2 * vv)))
    g("v_exp_f32 %s, %s" % (v(Z + 2 * vv), v(Z + 2 * vv)))
g("v_mul_f32 %s, %s, %s" % (v(PK), v(Z), v(D)))
g("v_mul_f32 %s, %s, %s" % (v(PK + 1), v(Z), v(D + 1)))
g("v_mul_f32 %s, %s, %s" % (T[3], v(Z), v(Z + 1)))
for vv in range(1, 4):
    g("v_fmac_f32 %s, %s, %s" % (v(PK), v(Z + 2 * vv), v(D + 2 * vv)))
    g("v_fmac_f32 %s, %s, %s" % (v(PK + 1), v(Z + 2 * vv), v(D + 2 * vv + 1)))
    g("v_fmac_f32 %s, %s, %s" % (T[3], v(Z + 2 * vv), v(Z + 2 * vv + 1)))
g("v_lshlrev_b32 %s, 3, %s" % (T[0], V_TID))
g("s_lshl_b32 %s, %s, 11" % (S_T0, S_BLK))
g("v_add_u32 %s, %s, %s" % (T[0], S_T0, T[0]))
g("buffer_store_dwordx2 %s, %s, %s, %s offen sc1" % (vr(PK, 2), T[0], SRD_WS, S_WSOFF))
g("s_cmp_lg_u32 %s, 0" % S_WAVE)
g("s_cbranch_scc1 L_noml")
g("v_lshlrev_b32 %s, 3, %s" % (T[1], V_LANE))
g("s_mov_b64 exec, 0xf")
for vv in range(4):
    g("ds_read_b64 %s, %s offset:%d" % (vr(Z + 2 * vv, 2), T[1], L_ML + 32 * vv))
g("s_lshl_b32 %s, %s, 7" % (S_T0, S_BLK))
g("s_add_u32 %s, %s, 0x%x" % (S_T0, S_T0, O_ML))
g("v_add_u32 %s, %s, %s" % (T[1], S_T0, T[1]))
g("s_waitcnt lgkmcnt(0)")
g("v_max3_f32 %s, %s, %s, %s" % (T[2], v(Z), v(Z + 2), v(Z + 4)))
g("v_max_f32 %s, %s, %s" % (T[2], T[2], v(Z + 6)))
for vv in range(4):
    g("v_sub_f32 %s, %s, %s" % (v(Z + 2 * vv), v(Z + 2 * vv), T[2]))
    g("v_mul_f32 %s, %s, %s" % (v(Z + 2 * vv), S_C, v(Z + 2 * vv)))
    g("v_exp_f32 %s, %s" % (v(Z + 2 * vv), v(Z + 2 * vv)))
g("v_mul_f32 %s, %s, %s" % (T[3], v(Z), v(Z + 1)))
for vv in range(1, 4):
    g("v_fmac_f32 %s, %s, %s" % (T[3], v(Z + 2 * vv), v(Z + 2 * vv + 1)))
g("buffer_store_dwordx2 %s, %s, %s, %s offen sc1" % (vr(6, 2), T[1], SRD_WS, S_WSOFF))
exec_all()
g.label("L_noml")

stamp(7)
g("s_lshr_b32 %s, %s, 5" % (S_T0, S_WR))
g("s_lshl_b32 %s, %s, 16" % (S_T0, S_T0))
g("s_lshl_b32 %s, %s, 14" % (S_T1, S_WAVE))
g("s_add_u32 %s, %s, %s" % (S_T0, S_T0, S_T1))
g("s_bfe_u32 %s, %s, 0x10004" % (S_T1, S_WR))
g("s_lshl_b32 %s, %s, 10" % (S_T1, S_T1))
g("s_add_u32 %s, %s, %s" % (S_T0, S_T0, S_T1))
g("v_lshlrev_b32 %s, 4, %s" % (T[0], V_LANE))
g("v_add_u32 %s, %s, %s" % (T[0], S_T0, T[0]))
g("s_lshr_b32 %s, %s, 5" % (S_T0, S_WR))
g("s_lshl_b32 %s, %s, 12" % (S_T0, S_T0))
g("s_bfe_u32 %s, %s, 0x10004" % (S_T1, S_WR))
g("s_lshl_b32 %s, %s, 4" % (S_T1, S_T1))
g("s_add_u32 %s, %s, %s" % (S_T0, S_T0, S_T1))
g("s_add_u32 %s, %s, 0x%x" % (S_T0, S_T0, O_ML))
g("v_and_b32 %s, 31, %s" % (T[1], V_LANE))
g("v_lshlrev_b32 %s, 7, %s" % (T[1], T[1]))
g("v_lshrrev_b32 %s, 5, %s" % (T[2], V_LANE))
g("v_lshlrev_b32 %s, 3, %s" % (T[2], T[2]))
g("v_add3_u32 %s, %s, %s, %s" % (T[1], T[1], T[2], S_T0))


def e1_issue(i):
    def f():
        if i < 8:
            g("s_add_u32 %s, %s, 0x%x" % (S_OFF, S_WSOFF, i * 2048))
            g("buffer_load_dwordx4 %s, %s, %s, %s offen sc1" % (vr(GO + 4 * i, 4), T[0], SRD_WS, S_OFF))
        else:
            g("buffer_load_dwordx2 %s, %s, %s, %s offen sc1" % (vr(GML, 2), T[1], SRD_WS, S_WSOFF))
    return f


poll_instr([e1_issue(i) for i in range(9)],
           [[v(GO + 4 * i + e) for e in range(4)] for i in range(8)] + [[v(GML), v(GML + 1)]], T[2])
stamp(8)
g("s_cmp_lt_u32 %s, 2" % S_WAVE)
g("s_cbranch_scc1 L_nok1")
g("s_cmp_lg_u32 %s, 0" % S_IT)
g("s_cbranch_scc1 L_nok1")
stream_piece(SRD_K, V_KOFF, (ORD2 or ORD1)[1], 1)
g.label("L_nok1")
g("v_mov_b32 %s, %s" % (T[2], v(GML)))
for ctl in ("quad_perm:[1,0,3,2]", "quad_perm:[2,3,0,1]", "row_ror:4", "row_ror:8"):
    dpp("max_f32", T[2], T[2], T[2], ctl)
g("v_mov_b32 %s, %s" % (T[3], T[2]))
g("v_permlane16_swap_b32 %s, %s" % (T[2], T[3]))
g("v_max_f32 %s, %s, %s" % (T[2], T[2], T[3]))
g("v_sub_f32 %s, %s, %s" % (T[2], v(GML), T[2]))
g("v_mul_f32 %s, %s, %s" % (T[2], S_C, T[2]))
g("v_exp_f32 %s, %s" % (T[2], T[2]))
g("v_mul_f32 %s, %s, %s" % (T[3], T[2], v(GML + 1)))
for ctl in ("quad_perm:[1,0,3,2]", "quad_perm:[2,3,0,1]", "row_ror:4", "row_ror:8"):
    dpp("add_f32", T[3], T[3], T[3], ctl)
g("v_mov_b32 %s, %s" % (T[4], T[3]))
g("v_permlane16_swap_b32 %s, %s" % (T[3], T[4]))
g("v_add_f32 %s, %s, %s" % (T[3], T[3], T[4]))
g("v_rcp_f32 %s, %s" % (T[4], T[3]))
g("v_fma_f32 %s, -%s, %s, 1.0" % (T[3], T[3], T[4]))
g("v_fma_f32 %s, %s, %s, %s" % (T[4], T[3], T[4], T[4]))
g("v_mul_f32 %s, %s, %s" % (T[2], T[2], T[4]))
g("v_and_b32 %s, 32, %s" % (T[3], V_LANE))
g("s_lshl_b32 %s, %s, 3" % (S_T0, S_WAVE))
g("v_add_u32 %s, %s, %s" % (T[3], S_T0, T[3]))
g("v_lshlrev_b32 %s, 2, %s" % (T[3], T[3]))
for i in range(8):
    g("v_add_u32 %s, %d, %s" % (T[4], 4 * i, T[3]))
    g("ds_bpermute_b32 %s, %s, %s" % (v(Z + i), T[4], T[2]))
g("s_waitcnt lgkmcnt(0)")
for e in range(4):
    g("v_mul_f32 %s, %s, %s" % (v(PK + e), v(Z), v(GO + e)))
for i in range(1, 8):
    for e in range(4):
        g("v_fmac_f32 %s, %s, %s" % (v(PK + e), v(Z + i), v(GO + 4 * i + e)))
g("s_lshl_b32 %s, %s, 10" % (S_T0, S_WAVE))
g("v_lshlrev_b32 %s, 4, %s" % (T[0], V_LANE))
g("v_add_u32 %s, %s, %s" % (T[1], S_T0, T[0]))
g("ds_write_b128 %s, %s offset:%d" % (T[1], vr(PK, 4), L_B))
g("s_waitcnt lgkmcnt(0)")
g("s_barrier")
g("v_lshrrev_b32 %s, 2, %s" % (T[0], V_LANE))
g("v_lshlrev_b32 %s, 4, %s" % (T[0], T[0]))
g("s_lshl_b32 %s, %s, 8" % (S_T0, S_WAVE))
g("v_add_u32 %s, %s, %s" % (T[0], S_T0, T[0]))
for vv in range(4):
    g("ds_read_b128 %s, %s offset:%d" % (vr(D + 4 * vv, 4), T[0], L_B + 1024 * vv))
g("s_waitcnt lgkmcnt(0)")
for e in range(4):
    g("v_add_f32 %s, %s, %s" % (v(D + e), v(D + e), v(D + 4 + e)))
    g("v_add_f32 %s, %s, %s" % (v(D + 8 + e), v(D + 8 + e), v(D + 12 + e)))
    g("v_add_f32 %s, %s, %s" % (v(D + e), v(D + e), v(D + 8 + e)))
rne2(v(D), v(D + 1), T[2])
rne2(v(D + 2), v(D + 3), T[2])
acc8 = [v(Z + i) for i in range(8)]
for a in acc8:
    g("v_mov_b32 %s, 0" % a)
for i in range(4):
    fma_pairs(acc8, [v(WW + 4 * i + k) for k in range(4)], v(D + i), T[2])
reduce_x(acc8, ("row_ror:4", "row_ror:8"), [v(D + 8 + i) for i in range(4)])
hand_in_l(Z, 4, EX_Y, T[2])
g("s_barrier")
hand_out(8, EX_Y, S_WR, O_Y, S_WSOFF, D, T[2], nsum=4)
stamp(9)


def read_x_all(XFb):
    g("v_lshlrev_b32 %s, 2, %s" % (T[0], V_LANE))
    g("v_add_u32 %s, 0x%x, %s" % (T[0], L_X, T[0]))
    for k in range(4):
        g("ds_read2st64_b32 %s, %s offset0:%d offset1:%d" % (vr(XFb + 2 * k, 2), T[0], 2 * k, 2 * k + 1))


def read_x_rows(XB, lb, srow):
    step = 64 >> lb
    g("v_lshrrev_b32 %s, %d, %s" % (T[1], lb, V_LANE))
    g("v_add_u32 %s, %s, %s" % (T[1], srow, T[1]))
    g("v_lshlrev_b32 %s, 2, %s" % (T[1], T[1]))
    g("v_add_u32 %s, 0x%x, %s" % (T[1], L_X, T[1]))
    for k in range(4):
        g("ds_read2_b32 %s, %s offset0:%d offset1:%d" % (vr(XB + 2 * k, 2), T[1], 2 * k * step, (2 * k + 1) * step))
    g("s_waitcnt lgkmcnt(0)")


def residual_update4(dsts, obase, rstride, lsh, XQ, tail="lds"):
    g("s_sub_u32 %s, %s, 2" % (S_T1, S_WAVE))
    g("s_lshl_b32 %s, %s, 10" % (S_T0, S_T1))
    g("v_lshlrev_b32 %s, 4, %s" % (T[0], V_LANE))
    g("v_add_u32 %s, %s, %s" % (T[0], S_T0, T[0]))
    g("ds_read_b128 %s, %s offset:%d" % (vr(XQ, 4), T[0], L_X))
    g("v_lshrrev_b32 %s, %d, %s" % (T[1], lsh - 2, V_LANE))
    g("v_lshlrev_b32 %s, 7, %s" % (T[1], T[1]))
    g("v_and_b32 %s, %d, %s" % (T[2], (1 << (lsh - 2)) - 1, V_LANE))
    g("v_lshlrev_b32 %s, 4, %s" % (T[2], T[2]))
    g("s_lshl_b32 %s, %s, %d" % (S_T0, S_T1, 15 - lsh))
    g("s_add_u32 %s, %s, 0x%x" % (S_T0, S_T0, obase))
    g("v_add3_u32 %s, %s, %s, %s" % (T[1], T[1], T[2], S_T0))

    def issue():
        for i, d in enumerate(dsts):
            g("s_add_u32 %s, %s, 0x%x" % (S_OFF, S_WSOFF, i * rstride))
            g("buffer_load_dwordx4 %s, %s, %s, %s offen sc1" % (vr(d, 4), T[1], SRD_WS, S_OFF))
    poll(issue, [v(d + e) for d in dsts for e in range(4)], T[2])
    cur = list(dsts)
    while len(cur) > 1:
        nxt = []
        for i in range(0, len(cur), 2):
            if i + 1 < len(cur):
                for e in range(4):
                    g("v_add_f32 %s, %s, %s" % (v(cur[i] + e), v(cur[i] + e), v(cur[i + 1] + e)))
            nxt.append(cur[i])
        cur = nxt
    S = cur[0]
    rne2(v(S), v(S + 1), T[2])
    rne2(v(S + 2), v(S + 3), T[3])
    g("s_waitcnt lgkmcnt(0)")
    for e in range(4):
        g("v_add_f32 %s, %s, %s" % (v(XQ + e), v(XQ + e), v(S + e)))
    rne2(v(XQ), v(XQ + 1), T[2])
    rne2(v(XQ + 2), v(XQ + 3), T[3])
    if tail == "out":
        g("v_lshrrev_b32 %s, 1, %s" % (T[0], T[0]))
        g("buffer_store_dwordx2 %s, %s, %s, 0 offen" % (vr(6, 2), T[0], SRD_OUT))
        g("s_waitcnt vmcnt(0)")
        return
    g("ds_write_b128 %s, %s offset:%d" % (T[0], vr(XQ, 4), L_X))
    g("s_waitcnt lgkmcnt(0)")


XFb = D
g("s_cmp_lt_u32 %s, 2" % S_WAVE)
g("s_cbranch_scc1 L_e2a")
residual_update4([ACC + 4 * i for i in range(8)] + [LAND + 4 * i for i in range(8)], O_Y, 2048, 5, QOP)
stamp(10)
g("s_barrier")
g("s_cmp_ge_u32 %s, 112" % S_DR)
g("s_cbranch_scc1 L_nodw2")
dw_loads(Z)
g.label("L_nodw2")
g("s_cmp_lg_u32 %s, 0" % S_IT)
g("s_cbranch_scc1 L_gudone")
qproj_loads(ACC)
stream_piece(SRD_K, V_KOFF, (ORD2 or ORD1)[0], 0)
g("s_branch L_gudone")
g.label("L_e2a")
g("s_barrier")
stamp(10)
g("s_cmp_ge_u32 s2, 224")
g("s_cbranch_scc1 L_gudone")
read_x_all(XFb)
g("s_and_b32 %s, %s, 7" % (S_T0, S_HR))
g("s_lshl_b32 %s, %s, 6" % (S_T0, S_T0))
read_x_rows(XFb + 8, 3, S_T0)
layernorm([v(XFb + i) for i in range(8)], [v(XFb + 8 + i) for i in range(8)], XN, T[0], T[1], T[2])
h_base()
gemv_publish(GW, XN, PK, 3, S_T2, S_WSOFF)
for k in range(16):
    g("v_mov_b32 %s, %s" % (v(Z + k), v(DW + k)))
g.label("L_gudone")

stamp(11)
g("s_cmp_ge_u32 %s, 112" % S_DR)
g("s_cbranch_scc1 L_noe3")
g("s_lshr_b32 %s, %s, 4" % (S_T0, S_DR))
g("s_lshl_b32 %s, %s, 14" % (S_T0, S_T0))
g("s_lshl_b32 %s, %s, 12" % (S_T1, S_WAVE))
g("s_add_u32 %s, %s, %s" % (S_T0, S_T0, S_T1))
g("s_add_u32 %s, %s, 0x%x" % (S_T0, S_T0, O_H))
g("v_lshrrev_b32 %s, 4, %s" % (T[0], V_LANE))
g("v_lshlrev_b32 %s, 9, %s" % (T[0], T[0]))
g("v_and_b32 %s, 15, %s" % (T[1], V_LANE))
g("v_lshlrev_b32 %s, 4, %s" % (T[1], T[1]))
g("v_add3_u32 %s, %s, %s, %s" % (T[0], T[0], T[1], S_T0))
accd = [v(D + 8 + i) for i in range(8)]


def e3_issue():
    for k, off in enumerate((0, 256, 2048, 2304)):
        g("buffer_load_dwordx4 %s, %s, %s, %s offen offset:%d sc1" % (vr(D + 4 * k, 4), T[0], SRD_WS, S_WSOFF, off))


poll(e3_issue, [v(D + i) for i in range(16)], T[1])
stamp(12)
g("s_cmp_ge_u32 %s, 2" % S_WAVE)
g("s_cbranch_scc1 L_nok0")
g("s_cmp_lg_u32 %s, 0" % S_IT)
g("s_cbranch_scc1 L_nok0")
stream_piece(SRD_K, V_KOFF, (ORD2 or ORD1)[0], 0)
g.label("L_nok0")
for e in range(8):
    g("v_add_f32 %s, %s, %s" % (v(D + e), v(D + e), v(D + 8 + e)))
reduce_x([v(D + e) for e in range(8)], (), [v(D + 8 + i) for i in range(8)])
for k in range(0, 8, 2):
    rne2(v(D + k), v(D + k + 1), v(D + 8 + k))
for e in range(4):
    g("v_max_f32 %s, 0, %s" % (v(D + e), v(D + e)))
for e in range(4):
    g("v_mul_f32 %s, %s, %s" % (v(D + e), v(D + e), v(D + 4 + e)))
rne2(v(D), v(D + 1), v(D + 8))
rne2(v(D + 2), v(D + 3), v(D + 9))
for a in accd:
    g("v_mov_b32 %s, 0" % a)
for i in range(4):
    fma_pairs(accd, [v(Z + 4 * i + k) for k in range(4)], v(D + i), T[1])
for ctl in ("quad_perm:[1,0,3,2]", "quad_perm:[2,3,0,1]", "row_ror:4", "row_ror:8"):
    for r in accd:
        dpp("add_f32", r, r, r, ctl)
g("s_lshl_b32 %s, %s, 7" % (S_T0, S_WAVE))
g("v_lshlrev_b32 %s, 1, %s" % (T[0], V_LANE))
g("v_add_u32 %s, %s, %s" % (T[0], S_T0, T[0]))
g("s_mov_b32 exec_lo, 0x00010001")
g("s_mov_b32 exec_hi, 0x00010001")
for k in range(2):
    g("ds_write_b128 %s, %s offset:%d" % (T[0], vr(D + 8 + 4 * k, 4), EX_DN + 16 * k))
exec_all()
g("s_waitcnt lgkmcnt(0)")
g("s_barrier")
hand_out(8, EX_DN, S_DR, O_DN, S_WSOFF, D, T[0], nsum=4)
g.label("L_noe3")
stamp(13)
g("s_cmp_lg_u32 %s, 0" % S_IT)
g("s_cbranch_scc1 L_final")

g("s_cmp_lt_u32 %s, 2" % S_WAVE)
g("s_cbranch_scc1 L_e4a")
residual_update4([Z + 4 * i for i in range(7)], O_DN, 2048, 5, QOP)
stamp(14)
g("s_barrier")
read_x_all(XFb)
g("s_and_b32 %s, %s, 3" % (S_T0, S_WR))
g("s_lshl_b32 %s, %s, 7" % (S_T0, S_T0))
read_x_rows(XFb + 8, 2, S_T0)
layernorm([v(XFb + i) for i in range(8)], [v(XFb + 8 + i) for i in range(8)], XN, T[0], T[1], T[2])
q_base()
gemv_publish(ACC, XN, PK, 2, S_T2, S_WSNEXT)
g("s_branch L_noq2")
g.label("L_e4a")
g("s_cmp_lt_u32 %s, 112" % S_DR)
g("s_cbranch_scc1 L_k0done")
stream_piece(SRD_K, V_KOFF, (ORD2 or ORD1)[0], 0)
g.label("L_k0done")
g("s_barrier")
stamp(14)
stream_piece(SRD_K, V_KOFF, (ORD2 or ORD1)[1], 1)
g.label("L_noq2")
stamp(15)
gather_q_shared(S_WSNEXT)
stamp(16)
stamp_shift()
g("s_mov_b32 %s, 1" % S_IT)
g("s_mov_b32 %s, 0x%x" % (S_WSOFF, ITS))
if ORD2:
    attn_pass(ORD2, "b")
    g("s_branch L_endpass")
else:
    g("s_branch L_main")

g.label("L_final")
stamp_dump()
g("s_cmp_lg_u32 s2, 0")
g("s_cbranch_scc1 L_exit")
g("s_cmp_lt_u32 %s, 2" % S_WAVE)
g("s_cbranch_scc1 L_exit")
residual_update4([Z + 4 * i for i in range(7)], O_DN, 2048, 5, QOP, tail="out")
if DEBUG and sys.argv[2] == "dbgo":
    g("s_memrealtime s[100:101]")
    g("s_waitcnt lgkmcnt(0)")
    g("s_mov_b64 exec, 1")
    g("v_mov_b32 v255, 0")
    g("v_mov_b32 v254, s100")
    g("buffer_atomic_umax v254, v255, %s, 0 offen offset:56 sc1" % SRD_DBG)
    g("s_waitcnt vmcnt(0)")
g.label("L_exit")
g("s_endpgm")

body = g.finalize()

ref = open("interleave_layers__gqa_block_cached__glu_gated_reglu__decode.s.ref").read()
head = []
for l in ref.splitlines():
    if l.startswith("; @launch"):
        head.append("; @launch grid=(256,1,1) block=(256,1,1) lds=%d" % LDS_BYTES)
        break
    head.append(l)
out = "\n".join(head) + """
.amdgcn_target "amdgcn-amd-amdhsa--gfx950"
.text
.globl %s
.p2align 8
.type %s,@function
%s:
""" % (NAME, NAME, NAME) + body + """
.section .rodata,"a"
.p2align 6
.amdhsa_kernel %s
  .amdhsa_next_free_vgpr 512
  .amdhsa_next_free_sgpr 102
  .amdhsa_accum_offset 256
  .amdhsa_group_segment_fixed_size 0
  .amdhsa_kernarg_size 96
  .amdhsa_user_sgpr_count 2
  .amdhsa_user_sgpr_kernarg_segment_ptr 1
  .amdhsa_system_sgpr_workgroup_id_x 1
  .amdhsa_float_denorm_mode_32 3
.end_amdhsa_kernel
""" % NAME
path = sys.argv[1] if len(sys.argv) > 1 else "interleave_layers__gqa_block_cached__glu_gated_reglu__decode.s"
open(path, "w").write(out)
print("wrote", path, len(out.splitlines()), "lines")
```

```python
import os
import struct
import sys
from asmlib import Asm

NAME = "interleave_layers__gqa_block_cached__glu_gated_reglu__decode_kernel"
NT = " nt"
VPOL = os.environ.get("VPOL", NT)
KPOL = os.environ.get("KPOL", NT)
WQPOL = os.environ.get("WQPOL", "")
WPOL = os.environ.get("WPOL", "")
DEBUG = len(sys.argv) > 2 and sys.argv[2].startswith("dbg")
VST = len(sys.argv) > 2 and sys.argv[2] == "dbgv"
CLK = len(sys.argv) > 2 and sys.argv[2] == "dbgc"

O_PART, O_ML, O_Y, O_DN, O_Q, O_H = 0x0, 0x80000, 0x88000, 0x90000, 0x98000, 0xA8000
ITS = 0x100000
WS_BYTES = 0x800000
O_DBG = 0x200000
O_PACE = 0xF0000
PACE = int(os.environ.get("PACE", "0"))
PACE2 = int(os.environ.get("PACE2", "0"))
P_FIRST = 3
DST = int(os.environ.get("DST", "0"))
O_DSC = 0x400000
O_CT = 0x600000
S_H, S_N = "s0", "s1"
DS1 = int(os.environ.get("DS1", "1"))
DS2 = int(os.environ.get("DS2", "4"))
TOUCH = int(os.environ.get("TOUCH", "0"))
TOUCHPOL = os.environ.get("TOUCHPOL", "")
STEAL = int(os.environ.get("STEAL", "0"))
O_SC = 0x280000
SC_MASK = {1: 0xf000f000, 2: 0xff00ff00}.get(STEAL, 0)
THRN = int(os.environ["THRN"]) if os.environ.get("THRN") else None
THRN2 = int(os.environ["THRN2"]) if os.environ.get("THRN2") else None

NLDS = 36
L_SCR = 0
L_V = 16384
L_A = L_SCR
L_ML = L_A + 8192
EX_Y = L_A
EX_DN = L_A + 512
EX_Q = L_A + 1024
L_B = L_ML + 128
L_X = L_B + 4096
L_PACE = L_X + 2048
LDS_BYTES = 163840
assert L_PACE + 4 <= L_V and L_V + 4 * NLDS * 1024 <= LDS_BYTES

SRD_K, SRD_V, SRD_WS, SRD_WQ, SRD_WO, SRD_WG, SRD_WU, SRD_WD, SRD_X, SRD_OUT, SRD_DBG = [
    "s[%d:%d]" % (i, i + 3) for i in range(8, 52, 4)]
S_WAVE, S_OFF, S_IT, S_WSOFF, S_TMO, S_SELLO, S_SELHI, S_HIM, S_C = [
    "s%d" % i for i in range(52, 61)]
S_R0, S_R1, S_R2, S_R3 = "s61", "s62", "s63", "s64"
S_T0, S_T1, S_T2, S_T3 = "s65", "s66", "s67", "s68"
S_WSNEXT = "s69"
S_ROT = "s99"
ROT = os.environ.get("ROT", "1")
ROT = 0 if ROT == "0" else ROT
S_WR, S_HR, S_PM, S_DR, S_PBASE = "s3", "s4", "s5", "s6", "s7"
SRD_P = SRD_X
S_BLK = S_WR if os.environ.get("BLK", "1") == "1" else "s2"

V_TID, V_LANE, V_KOFF, V_VOFF = "v0", "v1", "v2", "v3"
T = ["v%d" % i for i in range(4, 10)]
V_M, V_L = "v10", "v11"
QOP = 12
Z = 16
PK = 24
PKS = 28
D = 32
ACC = 48
LAND = 80
VC = 144


def v(i):
    return "v%d" % i


def vr(i, n):
    return "v[%d:%d]" % (i, i + n - 1)


def f32bits(x):
    return "0x%08x" % struct.unpack("<I", struct.pack("<f", x))[0]


g = Asm()
_lbl = [0]


def newlabel(p):
    _lbl[0] += 1
    return "L_%s_%d" % (p, _lbl[0])


def dpp(op, dst, s0, s1, ctl, row=0xF, bank=0xF):
    g("v_%s_dpp %s, %s, %s %s row_mask:0x%x bank_mask:0x%x" % (op, dst, s0, s1, ctl, row, bank))


def reduce_row3(regs, op="add_f32"):
    for ctl in ("quad_perm:[1,0,3,2]", "quad_perm:[2,3,0,1]", "row_ror:4", "row_ror:8"):
        for r in regs:
            dpp(op, r, r, r, ctl)
    for r in regs:
        dpp(op, r, r, r, "row_bcast:15", row=0xA)
    for r in regs:
        dpp(op, r, r, r, "row_bcast:31", row=0xC)


def reduce_x(regs, dpps, t):
    for ctl in dpps:
        for r in regs:
            dpp("add_f32", r, r, r, ctl)
    for sw in ("16", "32"):
        for i in range(0, len(regs), len(t)):
            rs = regs[i:i + len(t)]
            for r, tt in zip(rs, t):
                g("v_mov_b32 %s, %s" % (tt, r))
            for r, tt in zip(rs, t):
                g("v_permlane%s_swap_b32 %s, %s" % (sw, r, tt))
            for r, tt in zip(rs, t):
                g("v_add_f32 %s, %s, %s" % (r, r, tt))


def rne1(dst, src):
    g("v_cvt_pk_bf16_f32 %s, %s, %s" % (dst, src, src))
    g("v_lshlrev_b32 %s, 16, %s" % (dst, dst))


def rne2(a, b, tmp):
    g("v_cvt_pk_bf16_f32 %s, %s, %s" % (tmp, a, b))
    g("v_lshlrev_b32 %s, 16, %s" % (a, tmp))
    g("v_and_b32 %s, %s, %s" % (b, S_HIM, tmp))


def umax(tmp, rs):
    rs = list(rs)
    if len(rs) == 1:
        g("v_mov_b32 %s, %s" % (tmp, rs[0]))
        return
    if len(rs) >= 3:
        g("v_max3_u32 %s, %s, %s, %s" % (tmp, rs[0], rs[1], rs[2]))
        rs = rs[3:]
    else:
        g("v_max_u32 %s, %s, %s" % (tmp, rs[0], rs[1]))
        rs = rs[2:]
    while rs:
        if len(rs) >= 2:
            g("v_max3_u32 %s, %s, %s, %s" % (tmp, tmp, rs[0], rs[1]))
            rs = rs[2:]
        else:
            g("v_max_u32 %s, %s, %s" % (tmp, tmp, rs[0]))
            rs = rs[1:]


def timeout_loop(lp):
    g("s_sub_u32 %s, %s, 1" % (S_TMO, S_TMO))
    g("s_cmp_eq_u32 %s, 0" % S_TMO)
    g("s_cbranch_scc0 %s" % lp)
    g("s_mov_b32 %s, 1" % S_TMO)


def poll(issue, regs, tmp, restore=None):
    lp, done = newlabel("poll"), newlabel("pdone")
    g.label(lp)
    issue()
    g("s_waitcnt vmcnt(0)")
    umax(tmp, regs)
    g("v_cmp_eq_u32 vcc, -1, %s" % tmp)
    g("s_cbranch_vccz %s" % done)
    g("s_mov_b64 exec, vcc")
    timeout_loop(lp)
    g.label(done)
    (restore or exec_all)()


PP = os.environ.get("PP", "")
PSL = int(os.environ.get("PSL", "10"))


def poll2(issue, n, regs, tmp, restore=None):
    lp, done = newlabel("poll"), newlabel("pdone")
    issue()
    g("s_sleep %d" % PSL)
    g.label(lp)
    issue()
    g("s_waitcnt vmcnt(%d)" % n)
    umax(tmp, regs)
    g("v_cmp_eq_u32 vcc, -1, %s" % tmp)
    g("s_cbranch_vccz %s" % done)
    g("s_mov_b64 exec, vcc")
    timeout_loop(lp)
    g.label(done)
    (restore or exec_all)()


def poll_instr(issues, regsets, tmp):
    lp, done = newlabel("poll"), newlabel("pdone")
    g("s_mov_b32 %s, 0x%x" % (S_PM, (1 << len(issues)) - 1))
    g.label(lp)
    for i, iss in enumerate(issues):
        g("s_bitcmp1_b32 %s, %d" % (S_PM, i))
        g("s_cselect_b64 exec, -1, 0")
        iss()
    exec_all()
    g("s_waitcnt vmcnt(0)")
    g("s_mov_b32 %s, 0" % S_PM)
    for i, rs in enumerate(regsets):
        umax(tmp, rs)
        g("v_cmp_eq_u32 vcc, -1, %s" % tmp)
        g("s_cmp_lg_u64 vcc, 0")
        g("s_cselect_b32 %s, %d, 0" % (S_T3, 1 << i))
        g("s_or_b32 %s, %s, %s" % (S_PM, S_PM, S_T3))
    g("s_cmp_eq_u32 %s, 0" % S_PM)
    g("s_cbranch_scc1 %s" % done)
    timeout_loop(lp)
    g.label(done)


def layernorm(XS, X, XN, t0, t1, t2):
    g("v_add_f32 %s, %s, %s" % (t0, XS[0], XS[1]))
    for i in range(2, 8):
        g("v_add_f32 %s, %s, %s" % (t0, t0, XS[i]))
    reduce_row3([t0])
    g("v_readlane_b32 %s, %s, 63" % (S_R0, t0))
    g("v_mov_b32 %s, %s" % (t1, S_R0))
    g("v_mul_f32 %s, %s, %s" % (t1, f32bits(1.0 / 512), t1))
    for i in range(8):
        g("v_sub_f32 %s, %s, %s" % (XN[i], XS[i], t1))
    g("v_mul_f32 %s, %s, %s" % (t0, XN[0], XN[0]))
    for i in range(1, 8):
        g("v_fmac_f32 %s, %s, %s" % (t0, XN[i], XN[i]))
    reduce_row3([t0])
    g("v_readlane_b32 %s, %s, 63" % (S_R0, t0))
    g("v_mov_b32 %s, %s" % (t0, S_R0))
    g("v_mul_f32 %s, %s, %s" % (t0, f32bits(1.0 / 512), t0))
    rne1(t1, t1)
    rne1(t0, t0)
    g("v_add_f32 %s, %s, %s" % (t0, f32bits(1e-5), t0))
    rne1(t0, t0)
    g("v_sqrt_f32 %s, %s" % (t0, t0))
    rne1(t0, t0)
    g("v_rcp_f32 %s, %s" % (t2, t0))
    for i in range(0, 8, 2):
        g("v_sub_f32 %s, %s, %s" % (XN[i], X[i], t1))
        g("v_sub_f32 %s, %s, %s" % (XN[i + 1], X[i + 1], t1))
        rne2(XN[i], XN[i + 1], X[i])
        for k in (i, i + 1):
            g("v_mul_f32 %s, %s, %s" % (X[k], XN[k], t2))
            g("v_fma_f32 %s, -%s, %s, %s" % (XN[k], X[k], t0, XN[k]))
            g("v_fma_f32 %s, %s, %s, %s" % (XN[k], XN[k], t2, X[k]))
        rne2(XN[i], XN[i + 1], X[i])


def fma_pairs(acc, wregs, x, t):
    for k, w in enumerate(wregs):
        g("v_lshlrev_b32 %s, 16, %s" % (t, w))
        g("v_fmac_f32 %s, %s, %s" % (acc[2 * k], x, t))
        g("v_and_b32 %s, %s, %s" % (t, S_HIM, w))
        g("v_fmac_f32 %s, %s, %s" % (acc[2 * k + 1], x, t))


def slot_base(slot):
    return LAND + 32 * slot if slot < 2 else VC + 48 + 32 * (slot - 2)


TAILN = int(os.environ.get("TAILN", "0"))
TAILPOL = os.environ.get("TAILPOL", "")


def if_odd_(lb):
    g("s_bitcmp1_b32 s2, 0")
    g("s_cbranch_scc1 %s" % lb)


def stream_piece(srd, voff, piece, slot, pol=None, foreign=False):
    base = slot_base(slot)
    if foreign:
        piece += 4
    if pol is None:
        pol = VPOL if srd == SRD_V else KPOL
    for half in range(2):
        if ROT:
            if half == 0:
                g("s_add_u32 %s, %s, 0x%x" % (S_OFF, S_ROT, piece * 8192))
                g("s_and_b32 %s, %s, 0x1ffff" % (S_OFF, S_OFF))
                if foreign:
                    g("s_add_u32 %s, %s, 0x80000" % (S_OFF, S_OFF))
            else:
                g("s_add_u32 %s, %s, 0x1000" % (S_OFF, S_OFF))
        else:
            g("s_mov_b32 %s, 0x%x" % (S_OFF, piece * 8192 + half * 4096))
        for n in range(4):
            r = base + 16 * half + 4 * n
            g("buffer_load_dwordx4 %s, %s, %s, %s offen offset:%d%s" % (vr(r, 4), voff, srd, S_OFF, n * 1024, pol))


def lane63():
    g("s_mov_b32 exec_lo, 0")
    g("s_mov_b32 exec_hi, 0x80000000")


def exec_all():
    g("s_mov_b64 exec, -1")


def qproj_loads(W):
    g("v_lshrrev_b32 %s, 2, %s" % (T[0], V_LANE))
    g("v_lshlrev_b32 %s, 13, %s" % (T[0], T[0]))
    g("v_and_b32 %s, 3, %s" % (T[1], V_LANE))
    g("v_lshl_add_u32 %s, %s, 4, %s" % (T[0], T[1], T[0]))
    g("s_and_b32 %s, %s, 3" % (S_T0, S_WR))
    g("s_lshl_b32 %s, %s, 20" % (S_T0, S_T0))
    g("s_lshr_b32 %s, %s, 2" % (S_T1, S_WR))
    g("s_lshl_b32 %s, %s, 7" % (S_T1, S_T1))
    g("s_add_u32 %s, %s, %s" % (S_T0, S_T0, S_T1))
    g("s_lshl_b32 %s, %s, 6" % (S_T1, S_WAVE))
    g("s_add_u32 %s, %s, %s" % (S_T0, S_T0, S_T1))
    g("s_sub_u32 %s, %s, 128" % (S_T0, S_T0))
    for j in range(8):
        g("s_add_u32 %s, %s, 0x%x" % (S_OFF, S_T0, j * 16 * 8192))
        g("buffer_load_dwordx4 %s, %s, %s, %s offen%s" % (vr(W + 4 * j, 4), T[0], SRD_WQ, S_OFF, WQPOL))


def gu_loads(W):
    g("v_lshrrev_b32 %s, 3, %s" % (T[1], V_LANE))
    g("s_movk_i32 %s, 3584" % S_T0)
    g("v_mul_lo_u32 %s, %s, %s" % (T[1], S_T0, T[1]))
    g("v_and_b32 %s, 7, %s" % (T[2], V_LANE))
    g("v_lshl_add_u32 %s, %s, 4, %s" % (T[1], T[2], T[1]))
    g("s_and_b32 %s, %s, 7" % (S_T0, S_HR))
    g("s_mul_i32 %s, %s, %d" % (S_T0, S_T0, 64 * 3584))
    g("s_lshr_b32 %s, %s, 3" % (S_T1, S_HR))
    g("s_lshl_b32 %s, %s, 7" % (S_T1, S_T1))
    g("s_add_u32 %s, %s, %s" % (S_T0, S_T0, S_T1))
    for j in range(8):
        g("s_add_u32 %s, %s, %d" % (S_OFF, S_T0, j * 8 * 3584))
        g("buffer_load_dwordx4 %s, %s, %s, %s offen%s" % (vr(W + 4 * j, 4), T[1], SRD_P, S_OFF, WPOL))


def dw_loads(W):
    g("s_lshr_b32 %s, %s, 4" % (S_T0, S_DR))
    g("s_lshl_b32 %s, %s, 18" % (S_T0, S_T0))
    g("s_and_b32 %s, %s, 15" % (S_T1, S_DR))
    g("s_lshl_b32 %s, %s, 6" % (S_T1, S_T1))
    g("s_add_u32 %s, %s, %s" % (S_T0, S_T0, S_T1))
    g("s_lshl_b32 %s, %s, 16" % (S_T1, S_WAVE))
    g("s_add_u32 %s, %s, %s" % (S_T0, S_T0, S_T1))
    g("v_and_b32 %s, 15, %s" % (T[1], V_LANE))
    g("v_lshlrev_b32 %s, 12, %s" % (T[1], T[1]))
    g("v_lshrrev_b32 %s, 4, %s" % (T[2], V_LANE))
    g("v_lshl_add_u32 %s, %s, 4, %s" % (T[1], T[2], T[1]))
    for i in range(4):
        g("buffer_load_dwordx4 %s, %s, %s, %s offen offset:%d%s" % (vr(W + 4 * i, 4), T[1], SRD_WD, S_T0, i * 1024, WPOL))


def gemv_publish(W, XN, A, lb, sbase, soff):
    acc = [v(A + i) for i in range(8)]
    for a in acc:
        g("v_mov_b32 %s, 0" % a)
    for i in range(8):
        fma_pairs(acc, [v(W + 4 * i + k) for k in range(4)], XN[i], T[1])
    reduce_x(acc, ("row_ror:4", "row_ror:8") if lb == 2 else ("row_ror:8",), [v(D + 8 + i) for i in range(4)])
    g("v_and_b32 %s, %d, %s" % (T[0], (1 << lb) - 1, V_LANE))
    g("v_lshlrev_b32 %s, 5, %s" % (T[0], T[0]))
    g("v_bfe_u32 %s, %s, %d, 1" % (T[1], V_LANE, lb))
    g("v_cmp_eq_u32 vcc, 1, %s" % T[1])
    g("v_lshl_add_u32 %s, %s, 4, %s" % (T[0], T[1], T[0]))
    g("v_add_u32 %s, %s, %s" % (T[0], sbase, T[0]))
    for e in range(4):
        g("v_cndmask_b32 %s, %s, %s, vcc" % (acc[e], acc[e], acc[4 + e]))
    g("s_mov_b64 exec, 0x%x" % ((1 << (2 << lb)) - 1))
    g("buffer_store_dwordx4 %s, %s, %s, %s offen sc1" % (vr(A, 4), T[0], SRD_WS, soff))
    exec_all()


def q_base():
    g("s_lshl_b32 %s, %s, 8" % (S_T2, S_WR))
    g("s_lshl_b32 %s, %s, 7" % (S_T3, S_WAVE))
    g("s_add_u32 %s, %s, %s" % (S_T2, S_T2, S_T3))
    g("s_add_u32 %s, %s, 0x%x" % (S_T2, S_T2, O_Q - 256))


def h_base():
    g("s_lshl_b32 %s, %s, 9" % (S_T2, S_HR))
    g("s_lshl_b32 %s, %s, 8" % (S_T3, S_WAVE))
    g("s_add_u32 %s, %s, %s" % (S_T2, S_T2, S_T3))
    g("s_add_u32 %s, %s, 0x%x" % (S_T2, S_T2, O_H))


def hand_in(A, nq, ex, wave0, t):
    g("s_mul_i32 %s, %s, %d" % (S_T0, S_WAVE, 16 * nq))
    g("v_mov_b32 %s, %s" % (t, S_T0))
    lane63()
    for k in range(nq):
        g("ds_write_b128 %s, %s offset:%d" % (t, vr(A + 4 * k, 4), ex - 16 * nq * wave0 + 16 * k))
    exec_all()
    g("s_waitcnt lgkmcnt(0)")


def hand_in_l(A, nl, ex, t):
    g("s_mul_i32 %s, %s, %d" % (S_T0, S_WAVE, 32 * nl))
    g("v_lshlrev_b32 %s, 5, %s" % (t, V_LANE))
    g("v_add_u32 %s, %s, %s" % (t, S_T0, t))
    g("s_mov_b64 exec, 0x%x" % ((1 << nl) - 1))
    for k in range(2):
        g("ds_write_b128 %s, %s offset:%d" % (t, vr(A + 4 * k, 4), ex + 16 * k))
    exec_all()
    g("s_waitcnt lgkmcnt(0)")


def hand_out(nl, ex, srole, obase, soff, A, t, nsum=1, glu=False):
    skip = newlabel("nopub")
    g("s_cmp_lg_u32 %s, 0" % S_WAVE)
    g("s_cbranch_scc1 %s" % skip)
    g("v_lshlrev_b32 %s, 4, %s" % (t, V_LANE))
    g("s_mov_b64 exec, 0x%x" % ((1 << nl) - 1))
    for k in range(nsum):
        g("ds_read_b128 %s, %s offset:%d" % (vr(A + 4 * k, 4), t, ex + 16 * nl * k))
    g("s_lshl_b32 %s, %s, 7" % (S_T0, srole))
    g("s_add_u32 %s, %s, 0x%x" % (S_T0, S_T0, obase))
    g("v_add_u32 %s, %s, %s" % (t, S_T0, t))
    g("s_waitcnt lgkmcnt(0)")
    if glu:
        for e in range(4):
            g("v_max_f32 %s, 0, %s" % (v(A + e), v(A + e)))
        for e in range(4):
            g("v_mul_f32 %s, %s, %s" % (v(A + e), v(A + e), v(A + 4 + e)))
        rne2(v(A), v(A + 1), v(A + 4))
        rne2(v(A + 2), v(A + 3), v(A + 5))
    elif nsum == 2:
        for e in range(4):
            g("v_add_f32 %s, %s, %s" % (v(A + e), v(A + e), v(A + 4 + e)))
    elif nsum == 4:
        for e in range(4):
            g("v_add_f32 %s, %s, %s" % (v(A + e), v(A + e), v(A + 4 + e)))
        for e in range(4):
            g("v_add_f32 %s, %s, %s" % (v(A + 8 + e), v(A + 8 + e), v(A + 12 + e)))
        for e in range(4):
            g("v_add_f32 %s, %s, %s" % (v(A + e), v(A + e), v(A + 8 + e)))
    g("buffer_store_dwordx4 %s, %s, %s, %s offen sc1" % (vr(A, 4), t, SRD_WS, soff))
    exec_all()
    g.label(skip)


def gather_q_addr():
    g("v_and_b32 %s, 3, %s" % (T[0], V_LANE))
    g("v_lshlrev_b32 %s, 11, %s" % (T[0], T[0]))
    g("v_lshrrev_b32 %s, 5, %s" % (T[1], V_LANE))
    g("v_lshl_add_u32 %s, %s, 10, %s" % (T[0], T[1], T[0]))
    g("v_bfe_u32 %s, %s, 4, 1" % (T[1], V_LANE))
    g("v_lshl_add_u32 %s, %s, 7, %s" % (T[0], T[1], T[0]))
    g("v_bfe_u32 %s, %s, 2, 2" % (T[1], V_LANE))
    g("v_lshl_add_u32 %s, %s, 5, %s" % (T[0], T[1], T[0]))
    g("s_lshr_b32 %s, %s, 5" % (S_T0, S_BLK))
    g("s_lshl_b32 %s, %s, 13" % (S_T0, S_T0))
    g("s_add_u32 %s, %s, 0x%x" % (S_T0, S_T0, O_Q))
    g("v_add_u32 %s, %s, %s" % (T[0], S_T0, T[0]))


def gather_q_issue(G, soff):
    for r in range(4):
        for k in range(2):
            g("buffer_load_dwordx4 %s, %s, %s, %s offen offset:%d sc1" % (vr(G + 8 * r + 4 * k, 4), T[0], SRD_WS, soff, 256 * r + 16 * k))


def gather_q_sum(G):
    for e in range(8):
        g("v_add_f32 %s, %s, %s" % (v(G + e), v(G + e), v(G + 8 + e)))
        g("v_add_f32 %s, %s, %s" % (v(G + 16 + e), v(G + 16 + e), v(G + 24 + e)))
    for e in range(8):
        g("v_add_f32 %s, %s, %s" % (v(G + e), v(G + e), v(G + 16 + e)))
    for p in range(4):
        g("v_cvt_pk_bf16_f32 %s, %s, %s" % (v(QOP + p), v(G + 2 * p), v(G + 2 * p + 1)))


def gather_q(soff):
    gather_q_addr()
    poll(lambda: gather_q_issue(Z, soff), [v(Z + i) for i in range(32)], T[1])
    gather_q_sum(Z)


def gather_q_shared(soff):
    g("s_lshr_b32 %s, %s, 5" % (S_T0, S_BLK))
    g("s_lshl_b32 %s, %s, 13" % (S_T0, S_T0))
    g("s_lshl_b32 %s, %s, 11" % (S_T1, S_WAVE))
    g("s_add_u32 %s, %s, %s" % (S_T0, S_T0, S_T1))
    g("s_add_u32 %s, %s, 0x%x" % (S_T0, S_T0, O_Q))
    g("v_lshlrev_b32 %s, 4, %s" % (T[0], V_LANE))
    g("v_add_u32 %s, %s, %s" % (T[0], S_T0, T[0]))
    g("s_lshl_b32 %s, %s, 8" % (S_T0, S_WAVE))
    g("v_lshlrev_b32 %s, 3, %s" % (T[2], V_LANE))
    g("v_add_u32 %s, %s, %s" % (T[2], S_T0, T[2]))
    g("v_and_b32 %s, 3, %s" % (T[3], V_LANE))
    g("v_lshlrev_b32 %s, 8, %s" % (T[3], T[3]))
    g("v_and_b32 %s, 0x3c, %s" % (T[4], V_LANE))
    g("v_lshl_add_u32 %s, %s, 2, %s" % (T[3], T[4], T[3]))

    G = PK if "q" in PP else Z
    P4 = D + 8 if "q" in PP else PK

    def issue():
        for k in range(2):
            g("buffer_load_dwordx4 %s, %s, %s, %s offen offset:%d sc1" % (vr(G + 4 * k, 4), T[0], SRD_WS, soff, 1024 * k))
    if "q" in PP:
        poll2(issue, 2, [v(G + i) for i in range(8)], T[1])
        for i in range(8):
            g("v_mov_b32 %s, %s" % (v(Z + i), v(G + i)))
        reduce_x([v(Z + i) for i in range(8)], (), [v(D + i) for i in range(8)])
    else:
        poll(issue, [v(Z + i) for i in range(8)], T[1])
        reduce_x([v(Z + i) for i in range(8)], (), [v(PK + i) for i in range(8)])
    for p in range(4):
        g("v_cvt_pk_bf16_f32 %s, %s, %s" % (v(P4 + p), v(Z + 2 * p), v(Z + 2 * p + 1)))
    g("s_mov_b64 exec, 0xffff")
    for k in range(2):
        g("ds_write_b64 %s, %s offset:%d" % (T[2], vr(P4 + 2 * k, 2), EX_Q + 128 * k))
    exec_all()
    g("s_waitcnt lgkmcnt(0)")
    g("s_barrier")
    g("ds_read_b128 %s, %s offset:%d" % (vr(QOP, 4), T[3], EX_Q))
    g("s_waitcnt lgkmcnt(0)")


def vop_loc(o):
    if o < 64:
        return ("a", 4 * o)
    if o < 64 + NLDS:
        return ("l", (o - 64) * 1024)
    return ("v", VC + 4 * (o - 64 - NLDS))


def stamp(k):
    if not DEBUG:
        return
    g("s_memrealtime s[100:101]")
    g("s_waitcnt lgkmcnt(0)")
    g("s_mov_b32 s%d, s100" % (70 + k))
    if CLK and k in (1, 4, 5):
        if k == 5:
            lb = newlabel("clk")
            g("s_cmp_lg_u32 %s, 0" % S_IT)
            g("s_cbranch_scc1 %s" % lb)
        g("s_memtime s[100:101]")
        g("s_waitcnt lgkmcnt(0)")
        if k == 1:
            g("s_mov_b32 s0, s100")
        elif k == 4:
            g("s_sub_u32 s0, s100, s0")
            g("s_mov_b32 s1, s100")
        else:
            g("s_sub_u32 s1, s100, s1")
            g.label(lb)


def stamp_shift():
    if not DEBUG or VST:
        return
    for k in range(12):
        g("s_mov_b32 s%d, s%d" % (87 + k, 75 + k))


def stamp_dump():
    if not DEBUG:
        return
    if sys.argv[2] == "dbgo":
        g("s_mov_b64 exec, 1")
        g("v_mov_b32 v255, 0")
        g("s_not_b32 s100, s70")
        sel = ["s100", "s70", "s74", "s87", "s90", "s92", "s95", "s96", "s98", "s75", "s78", "s80", "s83"]
        for k, sr in enumerate(sel):
            g("v_mov_b32 v254, %s" % sr)
            g("buffer_atomic_umax v254, v255, %s, 0 offen offset:%d sc1" % (SRD_DBG, 4 * (k + 1)))
            g("s_waitcnt vmcnt(0)")
        g("s_mov_b64 exec, -1")
        return
    g("s_lshl_b32 s100, s2, 2")
    g("s_add_u32 s100, s100, %s" % S_WAVE)
    g("s_lshl_b32 s100, s100, 8")
    g("s_add_u32 s100, s100, 0x%x" % O_DBG)
    g("s_mov_b64 exec, 1")
    g("v_mov_b32 v255, s100")
    for k in range(29):
        g("v_mov_b32 v254, s%d" % (70 + k))
        g("buffer_store_dword v254, v255, %s, 0 offen offset:%d" % (SRD_WS, 4 * k))
        g("s_waitcnt vmcnt(0)")
    if CLK or DST:
        for k in range(2):
            g("v_mov_b32 v254, s%d" % k)
            g("buffer_store_dword v254, v255, %s, 0 offen offset:%d" % (SRD_WS, 4 * (29 + k)))
            g("s_waitcnt vmcnt(0)")
    g("s_mov_b64 exec, -1")


g("s_load_dwordx16 s[64:79], s[0:1], 0")
g("s_load_dwordx8 s[80:87], s[0:1], 64")
g("v_and_b32 %s, 63, %s" % (V_LANE, V_TID))
g("v_lshrrev_b32 %s, 6, %s" % (T[0], V_TID))
g("v_readfirstlane_b32 %s, %s" % (S_WAVE, T[0]))
g("s_cmp_ge_u32 s2, 256")
g("s_cbranch_scc1 L_exit")
g("s_waitcnt lgkmcnt(0)")


def mk_srd(srd, plo, nbytes):
    b = int(srd[2:].split(":")[0])
    g("s_mov_b32 s%d, s%d" % (b, plo))
    g("s_and_b32 s%d, s%d, 0xffff" % (b + 1, plo + 1))
    g("s_mov_b32 s%d, 0x%x" % (b + 2, nbytes))
    g("s_mov_b32 s%d, 0x00020000" % (b + 3))


mk_srd(SRD_X, 64, 1024)
mk_srd(SRD_K, 66, 0x8000000)
mk_srd(SRD_V, 68, 0x8000000)
mk_srd(SRD_WQ, 70, 512 * 4096 * 2)
mk_srd(SRD_WO, 72, 4096 * 512 * 2)
mk_srd(SRD_WG, 76, 512 * 1792 * 2)
mk_srd(SRD_WU, 78, 512 * 1792 * 2)
mk_srd(SRD_WD, 80, 1792 * 512 * 2)
mk_srd(SRD_OUT, 82, 1024)
mk_srd(SRD_DBG, 84, 256)
mk_srd(SRD_WS, 86, WS_BYTES)
g("s_mov_b32 %s, 0" % S_IT)
stamp(0)
g("s_mov_b32 %s, 0" % S_WSOFF)
g("s_and_b32 %s, s2, 7" % S_T0)
g("s_lshr_b32 %s, s2, 3" % S_T1)
g("s_lshl_b32 %s, %s, 5" % (S_WR, S_T0))
g("s_add_u32 %s, %s, %s" % (S_WR, S_WR, S_T1))
g("s_mul_i32 %s, %s, 28" % (S_HR, S_T0))
g("s_add_u32 %s, %s, %s" % (S_HR, S_HR, S_T1))
g("s_lshr_b32 %s, %s, 1" % (S_DR, S_HR))
g("s_bitcmp1_b32 %s, 0" % S_HR)
g("s_cselect_b32 %s, 0x100, %s" % (S_DR, S_DR))
g("s_cmp_ge_u32 s2, 224")
g("s_cselect_b32 %s, 0x100, %s" % (S_DR, S_DR))
g("s_mov_b32 %s, 0x%x" % (S_WSNEXT, ITS))
g("s_mov_b32 %s, 400000" % S_TMO)
g("s_mov_b32 %s, 0x05040100" % S_SELLO)
g("s_mov_b32 %s, 0x07060302" % S_SELHI)
g("s_mov_b32 %s, 0xffff0000" % S_HIM)
g("s_mov_b32 %s, %s" % (S_C, f32bits(128 ** -0.5 * 1.4426950408889634)))
if ROT == "1":
    g("s_lshl_b32 %s, s2, 2" % S_ROT)
    g("s_add_u32 %s, %s, %s" % (S_ROT, S_ROT, S_WAVE))
    g("s_and_b32 %s, %s, 15" % (S_ROT, S_ROT))
    g("s_lshl_b32 %s, %s, 13" % (S_ROT, S_ROT))
elif ROT == "2":
    g("s_lshr_b32 %s, s2, 3" % S_ROT)
    g("s_lshl_b32 %s, %s, 2" % (S_ROT, S_ROT))
    g("s_add_u32 %s, %s, %s" % (S_ROT, S_ROT, S_WAVE))
    g("s_and_b32 %s, %s, 15" % (S_ROT, S_ROT))
    g("s_lshl_b32 %s, %s, 13" % (S_ROT, S_ROT))
g("s_lshl_b32 %s, %s, 19" % (S_T0, S_BLK))
g("s_lshl_b32 %s, %s, 17" % (S_T1, S_WAVE))
g("s_add_u32 %s, %s, %s" % (S_T0, S_T0, S_T1))
g("v_bfe_u32 %s, %s, 2, 2" % (T[0], V_LANE))
g("v_lshlrev_b32 %s, 8, %s" % (T[0], T[0]))
g("v_lshrrev_b32 %s, 4, %s" % (T[1], V_LANE))
g("v_lshlrev_b32 %s, 6, %s" % (T[1], T[1]))
g("v_and_b32 %s, 3, %s" % (T[2], V_LANE))
g("v_lshlrev_b32 %s, 4, %s" % (T[2], T[2]))
g("v_add3_u32 %s, %s, %s, %s" % (V_KOFF, T[0], T[1], T[2]))
g("v_add_u32 %s, %s, %s" % (V_KOFF, S_T0, V_KOFF))
g("v_lshlrev_b32 %s, 4, %s" % (V_VOFF, V_LANE))
g("v_add_u32 %s, %s, %s" % (V_VOFF, S_T0, V_VOFF))
EARLYV = os.environ.get("EARLYV", "0") == "1"
if EARLYV:
    stream_piece(SRD_V, V_VOFF, 0, 0)
    stream_piece(SRD_V, V_VOFF, 1, 1)

g("v_mov_b32 %s, -1" % T[4])
g("v_mov_b32 %s, -1" % T[5])
g("v_lshlrev_b32 %s, 3, %s" % (T[0], V_TID))
g("s_lshl_b32 %s, %s, 11" % (S_T0, S_BLK))
g("v_add_u32 %s, %s, %s" % (T[0], S_T0, T[0]))
g("buffer_store_dwordx2 %s, %s, %s, 0 offen sc1" % (vr(8, 2), T[0], SRD_WS))
g("buffer_store_dwordx2 %s, %s, %s, %s offen sc1" % (vr(8, 2), T[0], SRD_WS, S_WSNEXT))
g("v_lshlrev_b32 %s, 3, %s" % (T[1], V_LANE))
if DST:
    g("v_mov_b32 %s, -1" % T[2])
    g("v_mov_b32 %s, -1" % T[3])
    g("s_lshl_b32 %s, s2, 2" % S_T0)
    g("s_add_u32 %s, %s, %s" % (S_T0, S_T0, S_WAVE))
    g("s_lshl_b32 %s, %s, 11" % (S_T1, S_T0))
    g("s_add_u32 %s, %s, 0x%x" % (S_T1, S_T1, O_DSC))
    g("v_lshlrev_b32 %s, 4, %s" % (T[0], V_LANE))
    for k in range(2):
        g("buffer_store_dwordx4 %s, %s, %s, %s offen offset:%d sc1" % (vr(6, 4), T[0], SRD_WS, S_T1, 1024 * k))
    g("s_lshl_b32 %s, %s, 8" % (S_T1, S_T0))
    g("s_add_u32 %s, %s, 0x%x" % (S_T1, S_T1, O_CT))
    g("v_lshlrev_b32 %s, 7, %s" % (T[0], V_LANE))
    g("v_mov_b32 %s, 0" % v(QOP))
    g("s_mov_b64 exec, 3")
    g("buffer_store_dword %s, %s, %s, %s offen sc1" % (v(QOP), T[0], SRD_WS, S_T1))
    exec_all()
if STEAL:
    g("s_bitcmp0_b32 s2, 0")
    g("s_cbranch_scc1 L_noscclr")
    g("s_lshr_b32 %s, s2, 1" % S_T0)
    g("s_lshl_b32 %s, %s, 12" % (S_T0, S_T0))
    g("s_lshl_b32 %s, %s, 10" % (S_T1, S_WAVE))
    g("s_add_u32 %s, %s, %s" % (S_T0, S_T0, S_T1))
    g("s_add_u32 %s, %s, 0x%x" % (S_T0, S_T0, O_SC))
    g("buffer_store_dwordx2 %s, %s, %s, %s offen sc1" % (vr(8, 2), T[1], SRD_WS, S_T0))
    g("buffer_store_dwordx2 %s, %s, %s, %s offen offset:512 sc1" % (vr(8, 2), T[1], SRD_WS, S_T0))
    g.label("L_noscclr")


def clear_small(nl, sbase_code):
    sbase_code()
    g("v_add_u32 %s, %s, %s" % (T[0], S_T0, T[1]))
    g("s_mov_b64 exec, 0x%x" % ((1 << nl) - 1))
    g("buffer_store_dwordx2 %s, %s, %s, 0 offen sc1" % (vr(8, 2), T[0], SRD_WS))
    g("buffer_store_dwordx2 %s, %s, %s, %s offen sc1" % (vr(8, 2), T[0], SRD_WS, S_WSNEXT))
    exec_all()


def role_base(srole, obase):
    def f():
        g("s_lshl_b32 %s, %s, 7" % (S_T0, srole))
        g("s_add_u32 %s, %s, 0x%x" % (S_T0, S_T0, obase))
    return f


if VST:
    stamp(17)
XF = [v(PK + i) for i in range(8)]
XF2 = [v(VC + i) for i in range(8)]


def copy_t2():
    g("s_mov_b32 %s, %s" % (S_T0, S_T2))


g("s_cmp_lt_u32 %s, 2" % S_WAVE)
g("s_cbranch_scc1 L_clear0")
q_base()
clear_small(16, copy_t2)
g("s_and_b32 %s, %s, 3" % (S_T0, S_WR))
g("s_lshl_b32 %s, %s, 8" % (S_T0, S_T0))
g("v_lshrrev_b32 %s, 2, %s" % (T[3], V_LANE))
g("v_lshlrev_b32 %s, 1, %s" % (T[3], T[3]))
for j in range(8):
    g("buffer_load_ushort %s, %s, %s, %s offen offset:%d" % (XF2[j], T[3], SRD_X, S_T0, 32 * j))
qproj_loads(ACC)
g("s_branch L_noclear")
g.label("L_clear0")
g("s_cmp_ge_u32 s2, 224")
g("s_cbranch_scc1 L_clear1")
h_base()
clear_small(32, copy_t2)
g.label("L_clear1")
g("s_cmp_lg_u32 %s, 0" % S_WAVE)
g("s_cbranch_scc1 L_noclear")
if PACE:
    g("s_bfe_u32 s0, s2, 0x30003")
    g("s_lshl_b32 s0, s0, 11")
    g("s_add_u32 s0, s0, 0x%x" % O_PACE)
    g("s_and_b32 %s, s2, 7" % S_T0)
    g("s_lshl_b32 %s, %s, 8" % (S_T0, S_T0))
    g("s_lshr_b32 %s, s2, 7" % S_T1)
    g("s_lshl_b32 %s, %s, 7" % (S_T1, S_T1))
    g("s_add_u32 %s, %s, %s" % (S_T0, S_T0, S_T1))
    g("s_add_u32 %s, %s, 0x%x" % (S_T0, S_T0, O_PACE))
    g("s_bfe_u32 %s, s2, 0x40003" % S_T1)
    g("s_cmp_eq_u32 %s, 8" % S_T1)
    g("s_cselect_b32 s1, %s, 0x800000" % S_T0)
    g("v_lshlrev_b32 %s, 11, %s" % (T[2], V_LANE))
    g("v_add_u32 %s, s1, %s" % (T[2], T[2]))
    g("v_mov_b32 %s, 0" % T[3])
    g("s_mov_b64 exec, 0xff")
    g("buffer_store_dword %s, %s, %s, 0 offen sc1" % (T[3], T[2], SRD_WS))
    exec_all()
    g("v_mov_b32 %s, 0x%x" % (T[2], L_PACE))
    g("v_mov_b32 %s, 0x7fffffff" % T[3])
    g("ds_write_b32 %s, %s" % (T[2], T[3]))
    g("s_waitcnt lgkmcnt(0)")
clear_small(4, role_base(S_BLK, O_ML))
clear_small(16, role_base(S_WR, O_Y))
g("s_cmp_ge_u32 %s, 112" % S_DR)
g("s_cbranch_scc1 L_noclear")
clear_small(16, role_base(S_DR, O_DN))
g.label("L_noclear")
if VST:
    stamp(18)

XN = [v(Z + i) for i in range(8)]
DUM = ACC + 28
CNT = QOP
QG = ACC
ops = []


def note(tag, n, w0=False):
    ops.extend([(tag, w0)] * n)


def wait_for(tag, w0ctx=False):
    last = max(i for i, t in enumerate(ops) if t[0] == tag)
    n0 = len(ops) - 1 - last
    n1 = sum(1 for t in ops[last + 1:] if not t[1])
    if w0ctx or n0 == n1:
        g("s_waitcnt vmcnt(%d)" % n0)
        return
    lb = newlabel("w0w")
    g("s_cmp_eq_u32 %s, 0" % S_WAVE)
    g("s_cbranch_scc1 %s" % lb)
    g("s_waitcnt vmcnt(%d)" % n1)
    g.label(lb)
    g("s_waitcnt vmcnt(%d)" % n0)


S_PRD, S_PWR = "s0", "s1"


def pace_reg(p):
    return V_M if p < 15 else V_VOFF


def pace_publish(val):
    g("v_lshlrev_b32 %s, 11, %s" % (T[4], V_LANE))
    g("v_add_u32 %s, %s, %s" % (T[4], S_PWR, T[4]))
    g("v_mov_b32 %s, %d" % (T[3], val))
    g("s_mov_b64 exec, 0xff")
    g("buffer_store_dword %s, %s, %s, 0 offen sc1" % (T[3], T[4], SRD_WS))
    exec_all()


def pace_load(r):
    g("v_lshlrev_b32 %s, 7, %s" % (T[4], V_LANE))
    g("s_mov_b64 exec, 0xffff")
    g("buffer_load_dword %s, %s, %s, %s offen sc1" % (r, T[4], SRD_WS, S_PRD))
    exec_all()


def pace_limit(val):
    g("v_mov_b32 %s, 0x%x" % (T[4], L_PACE))
    g("v_mov_b32 %s, %s" % (T[3], val))
    g("ds_write_b32 %s, %s" % (T[4], T[3]))


CK = [int(x) for x in os.environ.get("CK", "7,11,15,19,23,27").split(",")]
CK2 = [int(x) for x in os.environ.get("CK2", "35,39").split(",")]
NREP = 8
PUB = [int(x) for x in os.environ["PUB"].split(",")] if os.environ.get("PUB") else None


def pace(p, slack):
    lw, ld, lsp, lgo = [newlabel(x) for x in ("pw", "pd", "psp", "pgo")]
    ck = CK + CK2
    check, load, last = p in ck, p + 1 in ck, p in (CK[-1], CK2[-1])
    r = pace_reg(p - 1)
    g("s_cmp_lg_u32 %s, 0" % S_WAVE)
    g("s_cbranch_scc1 %s" % (lw if check else ld))
    if PUB is None or p in PUB:
        pace_publish(p + 1)
        note("ps%d" % p, 1, True)
    if check:
        wait_for("px%d" % (p - 1), True)
        if p < 15:
            g("v_readfirstlane_b32 %s, %s" % (S_T0, V_L))
            g("s_cmp_lt_u32 %s, 256" % S_T0)
            g("s_cbranch_scc1 %s" % lgo)
        g.label(lsp)
        dpp("add_u32", r, r, r, "quad_perm:[1,0,3,2]")
        dpp("min_u32", r, r, r, "quad_perm:[2,3,0,1]")
        dpp("min_u32", r, r, r, "row_half_mirror")
        dpp("min_u32", r, r, r, "row_ror:8")
        g("v_readlane_b32 %s, %s, 0" % (S_T0, r))
        g("s_add_u32 %s, %s, %d" % (S_T0, S_T0, slack))
        pace_limit(S_T0)
        g("s_cmp_ge_u32 %s, %d" % (S_T0, 2 * (p + 1)))
        g("s_cbranch_scc1 %s" % lgo)
        pace_load(r)
        g("s_waitcnt vmcnt(0)")
        timeout_loop(lsp)
        g.label(lgo)
        if last:
            pace_limit("0x7fffffff")
    if load:
        if p + 1 < 15:
            g("v_mov_b32 %s, 0" % T[4])
            g("buffer_load_dword %s, %s, %s, 0 offen sc1" % (V_L, T[4], SRD_DBG))
            note("pc%d" % p, 1, True)
        pace_load(pace_reg(p))
        note("px%d" % p, 1, True)
    if check:
        g("s_branch %s" % ld)
        g.label(lw)
        g("v_mov_b32 %s, 0x%x" % (T[4], L_PACE))
        g("ds_read_b32 %s, %s" % (T[3], T[4]))
        g("s_waitcnt lgkmcnt(0)")
        g("v_readfirstlane_b32 %s, %s" % (S_T0, T[3]))
        g("s_cmp_ge_u32 %s, %d" % (S_T0, 2 * (p + 1)))
        g("s_cbranch_scc1 %s" % ld)
        g("s_sleep 1")
        timeout_loop(lw)
    g.label(ld)


def exec56():
    g("s_mov_b32 exec_lo, -1")
    g("s_mov_b32 exec_hi, 0x00ffffff")


def warm(which):
    g("s_and_b32 %s, s2, 7" % S_T0)
    g("s_lshr_b32 %s, s2, 3" % S_T1)
    if which == "wq":
        g("s_lshl_b32 %s, %s, 10" % (S_T0, S_T0))
        g("s_lshl_b32 %s, %s, 17" % (S_T1, S_T1))
        g("s_add_u32 %s, %s, %s" % (S_T0, S_T0, S_T1))
        g("s_lshl_b32 %s, %s, 15" % (S_T1, S_WAVE))
        g("s_add_u32 %s, %s, %s" % (S_T0, S_T0, S_T1))
        for i in range(4):
            g("s_add_u32 %s, %s, 0x%x" % (S_OFF, S_T0, i * 8192))
            g("buffer_load_dwordx4 %s, %s, %s, %s offen" % (vr(DUM, 4), T[3], SRD_WQ, S_OFF))
        note("warm", 4)
    elif which == "wo":
        g("s_lshl_b32 %s, %s, 19" % (S_T0, S_T0))
        g("s_lshl_b32 %s, %s, 14" % (S_T1, S_T1))
        g("s_add_u32 %s, %s, %s" % (S_T0, S_T0, S_T1))
        g("s_lshl_b32 %s, %s, 12" % (S_T1, S_WAVE))
        g("s_add_u32 %s, %s, %s" % (S_T0, S_T0, S_T1))
        for i in range(4):
            g("buffer_load_dwordx4 %s, %s, %s, %s offen offset:%d" % (vr(DUM, 4), T[3], SRD_WO, S_T0, i * 1024))
        note("warm", 4)
    elif which == "wd":
        g("s_mul_i32 %s, %s, 229376" % (S_T0, S_T0))
        g("s_mul_i32 %s, %s, 7168" % (S_T1, S_T1))
        g("s_add_u32 %s, %s, %s" % (S_T0, S_T0, S_T1))
        g("s_mul_i32 %s, %s, 1792" % (S_T1, S_WAVE))
        g("s_add_u32 %s, %s, %s" % (S_T0, S_T0, S_T1))
        exec56()
        for i in range(2):
            g("buffer_load_dwordx4 %s, %s, %s, %s offen offset:%d" % (vr(DUM, 4), T[3], SRD_WD, S_T0, i * 896))
        exec_all()
        note("warm", 2)
    elif which == "gu":
        g("s_mul_i32 %s, %s, 448" % (S_T0, S_T0))
        g("s_mul_i32 %s, %s, %d" % (S_T1, S_T1, 16 * 3584))
        g("s_add_u32 %s, %s, %s" % (S_T0, S_T0, S_T1))
        g("s_mul_i32 %s, %s, %d" % (S_T1, S_WAVE, 4 * 3584))
        g("s_add_u32 %s, %s, %s" % (S_T0, S_T0, S_T1))
        g("v_cmp_le_u32 vcc, 28, %s" % V_LANE)
        g("v_mov_b32 %s, %d" % (T[2], 3584 - 448))
        g("v_cndmask_b32 %s, 0, %s, vcc" % (T[2], T[2]))
        g("v_add_u32 %s, %s, %s" % (T[2], T[2], T[3]))
        exec56()
        for i in range(2):
            g("s_add_u32 %s, %s, %d" % (S_OFF, S_T0, i * 2 * 3584))
            g("buffer_load_dwordx4 %s, %s, %s, %s offen" % (vr(DUM, 4), T[2], SRD_WG, S_OFF))
            g("buffer_load_dwordx4 %s, %s, %s, %s offen" % (vr(DUM, 4), T[2], SRD_WU, S_OFF))
        exec_all()
        note("warm", 4)


g("v_lshlrev_b32 %s, 1, %s" % (T[3], V_LANE))
for i in range(8):
    g("buffer_load_ushort %s, %s, %s, 0 offen offset:%d" % (XF[i], T[3], SRD_X, 128 * i))
if not EARLYV:
    stream_piece(SRD_V, V_VOFF, 0, 0)
note("p0", 8)
PB = int(SRD_P[2:].split(":")[0])
GB, UB, QB = [int(x[2:].split(":")[0]) for x in (SRD_WG, SRD_WU, SRD_WQ)]
g("s_cmp_eq_u32 %s, 0" % S_WAVE)
g("s_cselect_b32 s%d, s%d, s%d" % (PB, GB, UB))
g("s_cselect_b32 s%d, s%d, s%d" % (PB + 1, GB + 1, UB + 1))
g("s_cmp_lt_u32 s2, 224")
g("s_cselect_b32 s%d, s%d, 0" % (PB + 2, GB + 2))
if VST:
    stamp(19)
if not EARLYV:
    stream_piece(SRD_V, V_VOFF, 1, 1)
note("p1", 8)
VD = int(os.environ.get("VD", "2"))
vslot = {p: (p % VD if p < 12 else p % 2) for p in range(16)}
vnext = VD
for p in range(2, VD):
    stream_piece(SRD_V, V_VOFF, p, p)
    note("p%d" % p, 8)
stamp(1)

g("v_lshlrev_b32 %s, 4, %s" % (T[5], V_LANE))
g("s_mul_i32 %s, %s, %d" % (S_T0, S_WAVE, NLDS * 1024))
g("s_add_u32 %s, %s, %d" % (S_T0, S_T0, L_V))
g("v_add_u32 %s, %s, %s" % (T[5], S_T0, T[5]))
V_LDSV = T[5]
U_Q, U_ARR = (2, 2) if EARLYV else (0, 1)
WARM = os.environ.get('WARM', '0') == '1'
for u in range(16):
    slot = vslot[u]
    R = slot_base(slot)
    wait_for("p%d" % u)
    if VST and u < 9:
        stamp(20 + u)
    for s in range(8):
        w_, b = s // 2, s % 2
        kind, loc = vop_loc(8 * u + s)
        sel = S_SELHI if b else S_SELLO
        tmpb = D + 4 * (s % 4)
        for p in range(4):
            dst = v(loc + p) if kind == "v" else v(tmpb + p)
            g("v_perm_b32 %s, %s, %s, %s" % (dst, v(R + 4 * (2 * p + 1) + w_), v(R + 4 * (2 * p) + w_), sel))
        if kind == "a":
            for p in range(4):
                g("v_accvgpr_write_b32 a%d, %s" % (loc + p, v(tmpb + p)))
        elif kind == "l":
            g("ds_write_b128 %s, %s offset:%d" % (V_LDSV, vr(tmpb, 4), loc))
            if s % 4 == 3:
                g("s_waitcnt lgkmcnt(0)")
    if THRN is not None and u >= 2 and u not in (14, 15):
        g("s_waitcnt vmcnt(%d)" % THRN)
    if os.environ.get("THR") == "1" and u >= 2:
        g("s_bitcmp1_b32 s2, 0")
        g("s_cbranch_scc1 L_thr%d" % u)
        g("s_waitcnt vmcnt(0)")
        g.label("L_thr%d" % u)
    if PACE and u >= P_FIRST:
        pace(u, PACE)
    if vnext < 16:
        if vslot[vnext] == slot:
            stream_piece(SRD_V, V_VOFF, vnext, slot)
            note("p%d" % vnext, 8)
            vnext += 1
    else:
        assert slot == vnext % 2 and u >= 14
        if vnext - 16 < STEAL:
            lb1, lb2 = newlabel("fo"), newlabel("fo")
            if_odd_(lb1)
            stream_piece(SRD_K, V_KOFF, 16 - STEAL + vnext - 16, slot, None, True)
            g("s_branch %s" % lb2)
            g.label(lb1)
        stream_piece(SRD_K, V_KOFF, vnext - 16, slot)
        if vnext - 16 < STEAL:
            g.label(lb2)
        note("p%d" % vnext, 8)
        vnext += 1
    if WARM and u in (6, 8, 10):
        g("v_lshlrev_b32 %s, 4, %s" % (T[3], V_LANE))
        warm({6: "wo", 8: "gu", 10: "wd"}[u])
    if u == U_Q:
        g.comment("x, wq have landed (older than the piece just waited for): LN, q projection, publish q1 slice")
        for i in range(8):
            g("v_lshlrev_b32 %s, 16, %s" % (XF[i], XF[i]))
        g("s_cmp_lg_u32 %s, 0" % S_WAVE)
        g("s_cbranch_scc1 L_nox")
        g("v_lshlrev_b32 %s, 2, %s" % (T[2], V_LANE))
        for i in range(8):
            g("ds_write_b32 %s, %s offset:%d" % (T[2], XF[i], L_X + 256 * i))
        g("s_waitcnt lgkmcnt(0)")
        g.label("L_nox")
        g("s_cmp_lt_u32 %s, 2" % S_WAVE)
        g("s_cbranch_scc1 L_noq1")
        for i in range(8):
            g("v_lshlrev_b32 %s, 16, %s" % (XF2[i], XF2[i]))
        layernorm(XF, XF2, XN, T[2], T[3], T[4])
        q_base()
        gemv_publish(ACC, XN, PK, 2, S_T2, "0")
        g.label("L_noq1")
    if u == U_ARR:
        g.comment("clears and the q1 store are complete (older than the piece just waited for): arrive")
        g("s_barrier")
        g("s_cmp_lg_u32 %s, 0" % S_WAVE)
        g("s_cbranch_scc1 L_noarr")
        g("v_mov_b32 %s, 0" % T[0])
        g("v_mov_b32 %s, 1" % T[1])
        g("s_mov_b64 exec, 1")
        g("buffer_atomic_add %s, %s, %s, 0 offen sc1" % (T[1], T[0], SRD_DBG))
        exec_all()
        g.label("L_noarr")
    if u == 13:
        g("v_mov_b32 %s, 0" % T[0])
        g("buffer_load_dword %s, %s, %s, 0 offen sc1" % (v(CNT), T[0], SRD_DBG))
        note("cnt", 1)
    if u == 14:
        stamp(2)
        lp, done = newlabel("cnt"), newlabel("cdone")
        wait_for("cnt")
        g("v_mov_b32 %s, 0" % T[0])
        g.label(lp)
        g("v_readfirstlane_b32 %s, %s" % (S_T0, v(CNT)))
        g("s_cmp_ge_u32 %s, 256" % S_T0)
        g("s_cbranch_scc1 %s" % done)
        g("buffer_load_dword %s, %s, %s, 0 offen sc1" % (v(CNT), T[0], SRD_DBG))
        g("s_waitcnt vmcnt(0)")
        timeout_loop(lp)
        g.label(done)
        gather_q_addr()
        gather_q_issue(QG, "0")
        note("qg", 8)
        stamp(3)
wait_for("qg")
umax(T[1], [v(QG + i) for i in range(32)])
g("v_cmp_eq_u32 vcc, -1, %s" % T[1])
gather_q_sum(QG)
g("s_cbranch_vccz L_q1ok")
gather_q("0")
g.label("L_q1ok")
g("s_waitcnt lgkmcnt(0)")

stamp(4)
WW = LAND
DW = LAND + 16
DW2 = ACC
GML = PKS
GW = LAND + 32
QW = LAND + 32
GO = ACC


def wo_dw_loads():
    g("s_lshr_b32 %s, %s, 4" % (S_T0, S_WR))
    g("s_lshl_b32 %s, %s, 18" % (S_T0, S_T0))
    g("s_and_b32 %s, %s, 15" % (S_T1, S_WR))
    g("s_lshl_b32 %s, %s, 6" % (S_T1, S_T1))
    g("s_add_u32 %s, %s, %s" % (S_T0, S_T0, S_T1))
    g("s_lshl_b32 %s, %s, 16" % (S_T1, S_WAVE))
    g("s_add_u32 %s, %s, %s" % (S_T0, S_T0, S_T1))
    g("v_lshrrev_b32 %s, 2, %s" % (T[1], V_LANE))
    g("v_lshlrev_b32 %s, 12, %s" % (T[1], T[1]))
    g("v_and_b32 %s, 3, %s" % (T[2], V_LANE))
    g("v_lshl_add_u32 %s, %s, 4, %s" % (T[1], T[2], T[1]))
    for i in range(4):
        g("buffer_load_dwordx4 %s, %s, %s, %s offen offset:%d%s" % (vr(WW + 4 * i, 4), T[1], SRD_WO, S_T0, i * 1024, WPOL))


ORD1 = list(range(16))
ORD2 = [int(x) for x in os.environ["ORD2"].split(",")] if os.environ.get("ORD2") else None
assert ORD2 is None or sorted(ORD2) == ORD1
assert ORD2 or not PACE
assert not STEAL or (ORD2 and S_BLK == "s2" and not PACE and ROT == "1")


def softmax_pv(order, ch):
    g.comment("softmax for chunk %d" % ch)
    g("v_max3_f32 %s, %s, %s, %s" % (T[0], v(Z), v(Z + 1), v(Z + 2)))
    g("v_max3_f32 %s, %s, %s, %s" % (T[0], T[0], v(Z + 3), v(Z + 4)))
    g("v_max3_f32 %s, %s, %s, %s" % (T[0], T[0], v(Z + 5), v(Z + 6)))
    g("v_max_f32 %s, %s, %s" % (T[0], T[0], v(Z + 7)))
    dpp("max_f32", T[0], T[0], T[0], "row_ror:4")
    dpp("max_f32", T[0], T[0], T[0], "row_ror:8")
    for sw in ("16", "32"):
        g("v_mov_b32 %s, %s" % (T[1], T[0]))
        g("v_permlane%s_swap_b32 %s, %s" % (sw, T[0], T[1]))
        g("v_max_f32 %s, %s, %s" % (T[0], T[0], T[1]))
    if ch == 0:
        g("v_mov_b32 %s, %s" % (V_M, T[0]))
    else:
        g("v_max_f32 %s, %s, %s" % (T[0], T[0], V_M))
        g("v_sub_f32 %s, %s, %s" % (T[1], V_M, T[0]))
        g("v_mul_f32 %s, %s, %s" % (T[1], S_C, T[1]))
        g("v_exp_f32 %s, %s" % (T[1], T[1]))
        g("v_mov_b32 %s, %s" % (V_M, T[0]))
        g("v_mul_f32 %s, %s, %s" % (V_L, V_L, T[1]))
        for r, sr in enumerate((S_R0, S_R1, S_R2, S_R3)):
            g("v_readlane_b32 %s, %s, %d" % (sr, T[1], r))
        for s in range(8):
            for r, sr in enumerate((S_R0, S_R1, S_R2, S_R3)):
                g("v_mul_f32 %s, %s, %s" % (v(ACC + 4 * s + r), sr, v(ACC + 4 * s + r)))
    g("v_mul_f32 %s, %s, %s" % (T[1], S_C, V_M))
    for a in range(8):
        g("v_fma_f32 %s, %s, %s, -%s" % (v(Z + a), v(Z + a), S_C, T[1]))
    for a in range(8):
        g("v_exp_f32 %s, %s" % (v(Z + a), v(Z + a)))
    for a in range(8):
        g("v_add_f32 %s, %s, %s" % (V_L, V_L, v(Z + a)))
    for p in range(4):
        g("v_cvt_pk_bf16_f32 %s, %s, %s" % (v(PK + p), v(Z + 2 * p), v(Z + 2 * p + 1)))
    g.comment("PV for chunk %d" % ch)
    pvops = [(pn, s) for pn in range(4) for s in range(8)]
    ldsq = [k for k, (pn, s) in enumerate(pvops) if vop_loc(8 * order[4 * ch + k // 8] + k % 8)[0] == "l"]
    issued = 0

    def issue_lds(k):
        slotr = D + 4 * (ldsq.index(k) % 4)
        g("ds_read_b128 %s, %s offset:%d" % (vr(slotr, 4), V_LDSV, vop_loc(8 * order[4 * ch + k // 8] + k % 8)[1]))
    for k in ldsq[:4]:
        issue_lds(k)
        issued += 1
    for k, (pn, s) in enumerate(pvops):
        if s == 0 and pn > 0:
            for p in range(4):
                g("v_mov_b32_dpp %s, %s row_shl:%d row_mask:0xf bank_mask:0xf" % (v(PKS + p), v(PK + p), 4 * pn))
        A = vr(PK if pn == 0 else PKS, 4)
        kind, loc = vop_loc(8 * order[4 * ch + k // 8] + k % 8)
        if kind == "a":
            B = "a[%d:%d]" % (loc, loc + 3)
        elif kind == "v":
            B = vr(loc, 4)
        else:
            idx = ldsq.index(k)
            B = vr(D + 4 * (idx % 4), 4)
            g("s_waitcnt lgkmcnt(%d)" % (issued - idx - 1))
        g("v_mfma_f32_16x16x32_bf16 %s, %s, %s, %s" % (vr(ACC + 4 * s, 4), A, B, vr(ACC + 4 * s, 4)))
        if kind == "l" and issued < len(ldsq):
            issue_lds(ldsq[issued])
            issued += 1


def qk_mfma_(R, n):
    g("v_mfma_f32_16x16x32_bf16 %s, %s, %s, 0" % (vr(D + 4 * (n % 4), 4), vr(R + 4 * n, 4), vr(QOP, 4)))


def qk_red_(pn, n):
    db = D + 4 * (n % 4)
    others = [t for t in range(4) if t != pn]
    first = True
    for k, t in enumerate(others):
        rot = (16 - 4 * (t - pn)) % 16
        src1 = v(db + pn) if first else T[0]
        last = k == 2
        dst = v(Z + n) if last else T[0]
        dpp("add_f32", dst, v(db + t), src1, "row_ror:%d" % rot, bank=(1 << pn) if last else 0xF)
        first = False


def sc_addr(t, t2):
    g("v_lshrrev_b32 %s, 4, %s" % (t, V_LANE))
    g("v_lshlrev_b32 %s, 8, %s" % (t, t))
    g("v_and_b32 %s, 7, %s" % (t2, V_LANE))
    g("v_lshl_add_u32 %s, %s, 5, %s" % (t, t2, t))
    g("s_lshr_b32 %s, s2, 1" % S_T0)
    g("s_lshl_b32 %s, %s, 12" % (S_T0, S_T0))
    g("s_lshl_b32 %s, %s, 10" % (S_T1, S_WAVE))
    g("s_add_u32 %s, %s, %s" % (S_T0, S_T0, S_T1))
    g("s_add_u32 %s, %s, 0x%x" % (S_T0, S_T0, O_SC))
    g("v_add_u32 %s, %s, %s" % (t, S_T0, t))


def sc_exec():
    g("s_mov_b32 exec_lo, 0x%x" % SC_MASK)
    g("s_mov_b32 exec_hi, 0x%x" % SC_MASK)


def sc_loads(t):
    for k in range(2):
        g("buffer_load_dwordx4 %s, %s, %s, 0 offen offset:%d sc1" % (vr(LAND + 32 + 4 * k, 4), t, SRD_WS, 16 * k))


def if_odd(lb):
    g("s_bitcmp1_b32 s2, 0")
    g("s_cbranch_scc1 %s" % lb)


def steal_preloop():
    if_odd("L_main")
    for k in range(STEAL):
        pn = 4 - STEAL + k
        R = LAND + 32 * k
        g("s_waitcnt vmcnt(8)")
        for n in range(4):
            qk_mfma_(R, n)
        for n in range(4):
            qk_red_(pn, n)
            qk_mfma_(R, n + 4)
        if k < STEAL - 1 or STEAL == 1:
            stream_piece(SRD_K, V_KOFF, k, k)
        for n in range(4, 8):
            qk_red_(pn, n)
    sc_addr(T[1], T[2])
    sc_exec()
    for k in range(2):
        g("buffer_store_dwordx4 %s, %s, %s, 0 offen offset:%d sc1" % (vr(Z + 4 * k, 4), T[1], SRD_WS, 16 * k))
    exec_all()
    if STEAL == 1:
        g("s_waitcnt vmcnt(0)")
    else:
        stream_piece(SRD_K, V_KOFF, 1, 1)


def attn_pass(order, tag):
    st = STEAL if not tag else 0
    slack = PACE2 if tag else PACE
    pt = (lambda i: "q%d" % i) if tag else (lambda i: "p%d" % (16 + i))
    if tag:
        del ops[:]
        note(pt(0), 8)
        note(pt(1), 8)
    for s in range(8):
        for r in range(4):
            g("v_mov_b32 %s, 0" % v(ACC + 4 * s + r))
    g("v_mov_b32 %s, 0" % V_L)
    for ch in range(4):
        for pn in range(4):
            i = 4 * ch + pn
            slot = i % 2
            R = LAND + 32 * slot
            if i == 15:
                g("s_cmp_lt_u32 %s, 2" % S_WAVE)
                g("s_cbranch_scc1 L_w15%s" % tag + "")
                g("s_waitcnt vmcnt(4)")
                g.label("L_w15%s" % tag + "")
            skipqk = st and i >= 16 - st
            if skipqk and i == 14:
                if_odd("L_st14a")
            if st and i == 15 - st:
                lb = newlabel("stw")
                g("s_bitcmp0_b32 s2, 0")
                g("s_cbranch_scc1 %s" % lb)
                g("s_waitcnt vmcnt(%d)" % (0 if st == 2 else 2))
                g.label(lb)
            if slack and i < 15:
                wait_for(pt(i))
            else:
                g("s_waitcnt vmcnt(8)")
            if skipqk and i == 15:
                if_odd("L_st15a")
            if not tag and i >= 16 - TOUCH:
                g("v_and_b32 %s, 0xfffffc00, %s" % (T[3], V_KOFF))
                g("v_lshl_add_u32 %s, %s, 7, %s" % (T[3], V_LANE, T[3]))
                g("s_add_u32 %s, %s, 0x%x" % (S_OFF, S_ROT, order[i] * 8192))
                g("s_and_b32 %s, %s, 0x1ffff" % (S_OFF, S_OFF))
                g("buffer_load_dword %s, %s, %s, %s offen%s" % (V_VOFF, T[3], SRD_K, S_OFF, TOUCHPOL))
            for n in range(4):
                qk_mfma_(R, n)
            for n in range(4):
                qk_red_(pn, n)
                qk_mfma_(R, n + 4)
            if skipqk and i == 14:
                g.label("L_st14a")
            if skipqk and i == 15:
                g("s_branch L_st15b")
                g.label("L_st15a")
                sc_exec()
                umax(T[2], [v(LAND + 32 + e) for e in range(8)])
                g("v_cmp_eq_u32 vcc, -1, %s" % T[2])
                g("s_cbranch_vccz L_scok")
                sc_addr(T[1], T[2])
                poll(lambda: sc_loads(T[1]), [v(LAND + 32 + e) for e in range(8)], T[2], restore=sc_exec)
                g.label("L_scok")
                for e in range(8):
                    g("v_mov_b32 %s, %s" % (v(Z + e), v(LAND + 32 + e)))
                exec_all()
                g.label("L_st15b")
            if i + 2 < 16:
                if slack:
                    pace((30 if tag else 16) + i, slack)
                if (THRN2 if tag else THRN) is not None:
                    g("s_waitcnt vmcnt(%d)" % (THRN2 if tag else THRN))
                note(pt(i + 2), 8)
                if st and i + 2 >= 16 - st:
                    if_odd("L_sti%d" % i)
                stream_piece(SRD_K, V_KOFF, order[i + 2], slot, TAILPOL if tag == "" and ORD2 and i + 2 >= 16 - TAILN else None)
                if st and i == 13:
                    g("s_branch L_stj%d" % i)
                    g.label("L_sti%d" % i)
                    sc_addr(T[1], T[2])
                    sc_exec()
                    sc_loads(T[1])
                    exec_all()
                    g.label("L_stj%d" % i)
                elif st and i + 2 >= 16 - st:
                    g.label("L_sti%d" % i)
            elif i == 14:
                wo_dw_loads()
                g("s_cmp_ge_u32 %s, 2" % S_WAVE)
                g("s_cbranch_scc1 L_nodw%s" % tag + "")
                dw_loads(DW)
                g.label("L_nodw%s" % tag + "")
            else:
                g("s_cmp_ge_u32 %s, 2" % S_WAVE)
                g("s_cbranch_scc1 L_nogl%s" % tag + "")
                gu_loads(GW)
                g.label("L_nogl%s" % tag + "")
            if skipqk:
                if_odd("L_stc%d" % i)
            for n in range(4, 8):
                qk_red_(pn, n)
            if skipqk:
                g.label("L_stc%d" % i)
        if ch == 3:
            stamp(5)
        softmax_pv(order, ch)


def ct_base(dst, partner, mul_sh, obase):
    if partner:
        g("s_xor_b32 %s, s2, 3" % dst)
        g("s_lshl_b32 %s, %s, 2" % (dst, dst))
    else:
        g("s_lshl_b32 %s, s2, 2" % dst)
    g("s_add_u32 %s, %s, %s" % (dst, dst, S_WAVE))
    g("s_lshl_b32 %s, %s, %d" % (dst, dst, mul_sh))
    g("s_add_u32 %s, %s, 0x%x" % (dst, dst, obase))


def ct_load(r, partner, off):
    ct_base(S_T0, partner, 8, O_CT + off)
    g("v_mov_b32 %s, 0" % T[4])
    g("s_mov_b64 exec, 1")
    g("buffer_load_dword %s, %s, %s, %s offen sc1" % (r, T[4], SRD_WS, S_T0))
    exec_all()


def ct_store(val, partner, off):
    ct_base(S_T0, partner, 8, O_CT + off)
    g("v_mov_b32 %s, 0" % T[4])
    g("v_mov_b32 %s, %s" % (T[2], val))
    g("s_mov_b64 exec, 1")
    g("buffer_store_dword %s, %s, %s, %s offen sc1" % (T[2], T[4], SRD_WS, S_T0))
    exec_all()


def foreign_piece(piece, slot):
    base = slot_base(slot)
    g("s_xor_b32 %s, s2, 3" % S_T0)
    g("s_lshl_b32 %s, %s, 2" % (S_T0, S_T0))
    g("s_add_u32 %s, %s, %s" % (S_T0, S_T0, S_WAVE))
    g("s_add_u32 %s, %s, %d" % (S_T0, S_T0, piece))
    g("s_and_b32 %s, %s, 15" % (S_T0, S_T0))
    g("s_lshl_b32 %s, %s, 13" % (S_OFF, S_T0))
    for half in range(2):
        if half:
            g("s_add_u32 %s, %s, 0x1000" % (S_OFF, S_OFF))
        for n in range(4):
            r = base + 16 * half + 4 * n
            g("buffer_load_dwordx4 %s, %s, %s, %s offen offset:%d%s" % (vr(r, 4), V_VOFF, SRD_K, S_OFF, n * 1024, KPOL))


def either(cond, a, b):
    l1, l2 = newlabel("ea"), newlabel("eb")
    cond()
    g("s_cbranch_scc1 %s" % l1)
    b()
    g("s_branch %s" % l2)
    g.label(l1)
    a()
    g.label(l2)


def dsc_exec():
    g("s_cmp_eq_u32 %s, 4" % S_N)
    g("s_cselect_b32 exec_lo, -1, 0xff00ff00")
    g("s_cselect_b32 exec_hi, -1, 0xff00ff00")


def dsc_loads():
    for k in range(2):
        g("buffer_load_dwordx4 %s, %s, %s, %s offen offset:%d sc1" % (vr(LAND + 32 + 4 * k, 4), T[1], SRD_WS, S_T2, 16 * k))


def dsc_addr(partner):
    ct_base(S_T2, partner, 11, O_DSC)
    g("v_lshlrev_b32 %s, 5, %s" % (T[1], V_LANE))


def foreign_block(pieces, nxt):
    for k, pc in enumerate(pieces):
        R = LAND + 32 * k
        g("s_waitcnt vmcnt(8)")
        for n in range(4):
            qk_mfma_(R, n)
        for n in range(4):
            qk_red_(pc & 3, n)
            qk_mfma_(R, n + 4)
        nxt(k)
        for n in range(4, 8):
            qk_red_(pc & 3, n)
    dsc_addr(True)
    m = sum(0xf << (4 * (pc & 3)) for pc in pieces) * 0x10001
    g("s_mov_b32 exec_lo, 0x%x" % m)
    g("s_mov_b32 exec_hi, 0x%x" % m)
    for k in range(2):
        g("buffer_store_dwordx4 %s, %s, %s, %s offen offset:%d sc1" % (vr(Z + 4 * k, 4), T[1], SRD_WS, S_T2, 16 * k))
    exec_all()


def attn_pass_dst():
    order = ORD1
    ct_store("1", False, 0)
    g("s_xor_b32 %s, s2, 3" % S_T0)
    g("s_sub_u32 %s, %s, s2" % (S_T0, S_T0))
    g("s_lshl_b32 %s, %s, 19" % (S_T0, S_T0))
    g("v_add_u32 %s, %s, %s" % (V_VOFF, S_T0, V_KOFF))
    g("s_mov_b32 %s, 0" % S_H)
    g("s_mov_b32 %s, 0" % S_N)
    for s in range(8):
        for r in range(4):
            g("v_mov_b32 %s, 0" % v(ACC + 4 * s + r))
    g("v_mov_b32 %s, 0" % V_L)
    for ch in range(4):
        for pn in range(4):
            i = 4 * ch + pn
            slot = i % 2
            R = LAND + 32 * slot
            lskip, lred, lend = "L_ds%d" % i, "L_dr%d" % i, "L_de%d" % i
            if i == 15:
                g("s_cmp_lt_u32 %s, 2" % S_WAVE)
                g("s_cbranch_scc1 L_w15")
                g("s_waitcnt vmcnt(4)")
                g.label("L_w15")
                g("s_waitcnt vmcnt(8)")
            if i >= 12:
                g("s_cmp_gt_u32 %s, %d" % (S_N, 15 - i))
                g("s_cbranch_scc1 %s" % lskip)
            if i in (11, 13):
                lb = newlabel("dw")
                g("s_cmp_lg_u32 %s, %d" % (S_N, 15 - i))
                g("s_cbranch_scc1 %s" % lb)
                g("s_waitcnt vmcnt(0)")
                g.label(lb)
            if i < 15:
                g("s_waitcnt vmcnt(8)")
            for n in range(4):
                qk_mfma_(R, n)
            for n in range(4):
                qk_red_(pn, n)
                qk_mfma_(R, n + 4)
            if i == 15:
                g("s_branch %s" % lred)
                g.label(lskip)
                dsc_exec()
                umax(T[2], [v(LAND + 32 + e) for e in range(8)])
                g("v_cmp_eq_u32 vcc, -1, %s" % T[2])
                g("s_cbranch_vccz L_scok")
                dsc_addr(False)
                poll(dsc_loads, [v(LAND + 32 + e) for e in range(8)], T[2], restore=dsc_exec)
                g.label("L_scok")
                for e in range(8):
                    g("v_mov_b32 %s, %s" % (v(Z + e), v(LAND + 32 + e)))
                exec_all()
                g.label(lred)
            elif i >= 12:
                g.label(lskip)
            if i == DS1 + 1:
                g("v_readfirstlane_b32 %s, %s" % (S_H, T[3]))
            if i == DS2 + 1:
                g("v_readfirstlane_b32 %s, %s" % (S_T1, T[3]))
                g("s_cmp_eq_u32 %s, 0" % S_T1)
                g("s_cselect_b32 %s, 4, 2" % S_T1)
                g("s_cmp_eq_u32 %s, 0" % S_H)
                g("s_cselect_b32 %s, %s, 0" % (S_H, S_T1))
                g("s_cbranch_scc0 L_nocommit")
                ct_store(S_H, True, 128)
                g.label("L_nocommit")
            if i in (DS1, DS2):
                ct_load(T[3], True, 0)
            if i == 8:
                ct_load(T[3], False, 128)
            if i == 9:
                g("v_readfirstlane_b32 %s, %s" % (S_N, T[3]))
            if i in (6, 7):
                either(lambda: g("s_cmp_lg_u32 %s, 0" % S_H), lambda: foreign_piece(8 + i, slot),
                       lambda: stream_piece(SRD_K, V_KOFF, i + 2, slot))
            elif i < 10:
                stream_piece(SRD_K, V_KOFF, i + 2, slot)
            elif i < 13:
                lb = newlabel("di")
                g("s_cmp_gt_u32 %s, %d" % (S_N, 13 - i))
                g("s_cbranch_scc1 %s" % lb)
                stream_piece(SRD_K, V_KOFF, i + 2, slot)
                g.label(lb)
            elif i == 13:
                def scl():
                    dsc_addr(False)
                    dsc_exec()
                    dsc_loads()
                    exec_all()
                either(lambda: g("s_cmp_lg_u32 %s, 0" % S_N), scl, lambda: stream_piece(SRD_K, V_KOFF, 15, slot))
            elif i == 14:
                wo_dw_loads()
                g("s_cmp_ge_u32 %s, 2" % S_WAVE)
                g("s_cbranch_scc1 L_nodw")
                dw_loads(DW)
                g.label("L_nodw")
            else:
                g("s_cmp_ge_u32 %s, 2" % S_WAVE)
                g("s_cbranch_scc1 L_nogl")
                gu_loads(GW)
                g.label("L_nogl")
            if i >= 12:
                g("s_cmp_gt_u32 %s, %d" % (S_N, 15 - i))
                g("s_cbranch_scc1 %s" % lend)
            for n in range(4, 8):
                qk_red_(pn, n)
            if i >= 12:
                g.label(lend)
        if ch == 3:
            stamp(5)
        softmax_pv(order, ch)
        if ch == 1:
            g("s_cmp_eq_u32 %s, 0" % S_H)
            g("s_cbranch_scc1 L_nohelp")
            foreign_block((14, 15), lambda k: either(lambda: g("s_cmp_eq_u32 %s, 4" % S_H), lambda: foreign_piece(12 + k, k),
                                                     lambda: stream_piece(SRD_K, V_KOFF, 8 + k, k)))
            g("s_cmp_lg_u32 %s, 4" % S_H)
            g("s_cbranch_scc1 L_nohelp")
            foreign_block((12, 13), lambda k: stream_piece(SRD_K, V_KOFF, 8 + k, k))
            g.label("L_nohelp")


if STEAL:
    steal_preloop()
g.label("L_main")
if DST:
    assert ORD2 and S_BLK == "s2" and not PACE and not STEAL and ROT == "1" and DS1 + 1 <= DS2 <= 4
    attn_pass_dst()
else:
    attn_pass(ORD1, "")
g.label("L_endpass")
stamp(6)
dpp("add_f32", V_L, V_L, V_L, "row_ror:4")
dpp("add_f32", V_L, V_L, V_L, "row_ror:8")
for sw in ("16", "32"):
    g("v_mov_b32 %s, %s" % (T[1], V_L))
    g("v_permlane%s_swap_b32 %s, %s" % (sw, V_L, T[1]))
    g("v_add_f32 %s, %s, %s" % (V_L, V_L, T[1]))
g("s_lshl_b32 %s, %s, 11" % (S_T0, S_WAVE))
g("v_lshlrev_b32 %s, 4, %s" % (T[0], V_LANE))
g("v_add_u32 %s, %s, %s" % (T[0], S_T0, T[0]))
g("s_lshl_b32 %s, %s, 5" % (S_T0, S_WAVE))
g("v_lshlrev_b32 %s, 3, %s" % (T[1], V_LANE))
g("v_add_u32 %s, %s, %s" % (T[1], S_T0, T[1]))
g("s_mov_b64 exec, 0xffff")
for s in range(8):
    g("ds_write_b128 %s, %s offset:%d" % (T[0], vr(ACC + 4 * s, 4), L_A + 256 * s))
g("s_mov_b64 exec, 0xf")
g("ds_write_b64 %s, %s offset:%d" % (T[1], vr(10, 2), L_ML))
exec_all()
g("s_waitcnt lgkmcnt(0)")
g("s_barrier")
g("v_and_b32 %s, 3, %s" % (T[0], V_LANE))
g("v_lshlrev_b32 %s, 9, %s" % (T[0], T[0]))
g("v_lshrrev_b32 %s, 2, %s" % (T[1], V_LANE))
g("v_lshlrev_b32 %s, 4, %s" % (T[1], T[1]))
g("v_add_u32 %s, %s, %s" % (T[0], T[0], T[1]))
g("s_lshl_b32 %s, %s, 2" % (S_T0, S_WAVE))
g("v_add_u32 %s, %s, %s" % (T[0], S_T0, T[0]))
g("s_lshl_b32 %s, %s, 3" % (S_T0, S_WAVE))
g("v_mov_b32 %s, %s" % (T[1], S_T0))
for vv in range(4):
    g("ds_read_b32 %s, %s offset:%d" % (v(D + 2 * vv), T[0], L_A + 2048 * vv))
    g("ds_read_b32 %s, %s offset:%d" % (v(D + 2 * vv + 1), T[0], L_A + 2048 * vv + 256))
    g("ds_read_b64 %s, %s offset:%d" % (vr(Z + 2 * vv, 2), T[1], L_ML + 32 * vv))
g("s_waitcnt lgkmcnt(0)")
g("v_max3_f32 %s, %s, %s, %s" % (T[2], v(Z), v(Z + 2), v(Z + 4)))
g("v_max_f32 %s, %s, %s" % (T[2], T[2], v(Z + 6)))
for vv in range(4):
    g("v_sub_f32 %s, %s, %s" % (v(Z + 2 * vv), v(Z + 2 * vv), T[2]))
    g("v_mul_f32 %s, %s, %s" % (v(Z + 2 * vv), S_C, v(Z + 2 * vv)))
    g("v_exp_f32 %s, %s" % (v(Z + 2 * vv), v(Z + 2 * vv)))
g("v_mul_f32 %s, %s, %s" % (v(PK), v(Z), v(D)))
g("v_mul_f32 %s, %s, %s" % (v(PK + 1), v(Z), v(D + 1)))
g("v_mul_f32 %s, %s, %s" % (T[3], v(Z), v(Z + 1)))
for vv in range(1, 4):
    g("v_fmac_f32 %s, %s, %s" % (v(PK), v(Z + 2 * vv), v(D + 2 * vv)))
    g("v_fmac_f32 %s, %s, %s" % (v(PK + 1), v(Z + 2 * vv), v(D + 2 * vv + 1)))
    g("v_fmac_f32 %s, %s, %s" % (T[3], v(Z + 2 * vv), v(Z + 2 * vv + 1)))
g("v_lshlrev_b32 %s, 3, %s" % (T[0], V_TID))
g("s_lshl_b32 %s, %s, 11" % (S_T0, S_BLK))
g("v_add_u32 %s, %s, %s" % (T[0], S_T0, T[0]))
g("buffer_store_dwordx2 %s, %s, %s, %s offen sc1" % (vr(PK, 2), T[0], SRD_WS, S_WSOFF))
g("s_cmp_lg_u32 %s, 0" % S_WAVE)
g("s_cbranch_scc1 L_noml")
g("v_lshlrev_b32 %s, 3, %s" % (T[1], V_LANE))
g("s_mov_b64 exec, 0xf")
for vv in range(4):
    g("ds_read_b64 %s, %s offset:%d" % (vr(Z + 2 * vv, 2), T[1], L_ML + 32 * vv))
g("s_lshl_b32 %s, %s, 7" % (S_T0, S_BLK))
g("s_add_u32 %s, %s, 0x%x" % (S_T0, S_T0, O_ML))
g("v_add_u32 %s, %s, %s" % (T[1], S_T0, T[1]))
g("s_waitcnt lgkmcnt(0)")
g("v_max3_f32 %s, %s, %s, %s" % (T[2], v(Z), v(Z + 2), v(Z + 4)))
g("v_max_f32 %s, %s, %s" % (T[2], T[2], v(Z + 6)))
for vv in range(4):
    g("v_sub_f32 %s, %s, %s" % (v(Z + 2 * vv), v(Z + 2 * vv), T[2]))
    g("v_mul_f32 %s, %s, %s" % (v(Z + 2 * vv), S_C, v(Z + 2 * vv)))
    g("v_exp_f32 %s, %s" % (v(Z + 2 * vv), v(Z + 2 * vv)))
g("v_mul_f32 %s, %s, %s" % (T[3], v(Z), v(Z + 1)))
for vv in range(1, 4):
    g("v_fmac_f32 %s, %s, %s" % (T[3], v(Z + 2 * vv), v(Z + 2 * vv + 1)))
g("buffer_store_dwordx2 %s, %s, %s, %s offen sc1" % (vr(6, 2), T[1], SRD_WS, S_WSOFF))
exec_all()
g.label("L_noml")

stamp(7)
g("s_lshr_b32 %s, %s, 5" % (S_T0, S_WR))
g("s_lshl_b32 %s, %s, 16" % (S_T0, S_T0))
g("s_lshl_b32 %s, %s, 14" % (S_T1, S_WAVE))
g("s_add_u32 %s, %s, %s" % (S_T0, S_T0, S_T1))
g("s_bfe_u32 %s, %s, 0x10004" % (S_T1, S_WR))
g("s_lshl_b32 %s, %s, 10" % (S_T1, S_T1))
g("s_add_u32 %s, %s, %s" % (S_T0, S_T0, S_T1))
g("v_lshlrev_b32 %s, 4, %s" % (T[0], V_LANE))
g("v_add_u32 %s, %s, %s" % (T[0], S_T0, T[0]))
g("s_lshr_b32 %s, %s, 5" % (S_T0, S_WR))
g("s_lshl_b32 %s, %s, 12" % (S_T0, S_T0))
g("s_bfe_u32 %s, %s, 0x10004" % (S_T1, S_WR))
g("s_lshl_b32 %s, %s, 4" % (S_T1, S_T1))
g("s_add_u32 %s, %s, %s" % (S_T0, S_T0, S_T1))
g("s_add_u32 %s, %s, 0x%x" % (S_T0, S_T0, O_ML))
g("v_and_b32 %s, 31, %s" % (T[1], V_LANE))
g("v_lshlrev_b32 %s, 7, %s" % (T[1], T[1]))
g("v_lshrrev_b32 %s, 5, %s" % (T[2], V_LANE))
g("v_lshlrev_b32 %s, 3, %s" % (T[2], T[2]))
g("v_add3_u32 %s, %s, %s, %s" % (T[1], T[1], T[2], S_T0))


def e1_issue(i):
    def f():
        if i < 8:
            g("s_add_u32 %s, %s, 0x%x" % (S_OFF, S_WSOFF, i * 2048))
            g("buffer_load_dwordx4 %s, %s, %s, %s offen sc1" % (vr(GO + 4 * i, 4), T[0], SRD_WS, S_OFF))
        else:
            g("buffer_load_dwordx2 %s, %s, %s, %s offen sc1" % (vr(GML, 2), T[1], SRD_WS, S_WSOFF))
    return f


poll_instr([e1_issue(i) for i in range(9)],
           [[v(GO + 4 * i + e) for e in range(4)] for i in range(8)] + [[v(GML), v(GML + 1)]], T[2])
stamp(8)
g("s_cmp_lt_u32 %s, 2" % S_WAVE)
g("s_cbranch_scc1 L_nok1")
g("s_cmp_lg_u32 %s, 0" % S_IT)
g("s_cbranch_scc1 L_nok1")
stream_piece(SRD_K, V_KOFF, (ORD2 or ORD1)[1], 1)
g.label("L_nok1")
g("v_mov_b32 %s, %s" % (T[2], v(GML)))
for ctl in ("quad_perm:[1,0,3,2]", "quad_perm:[2,3,0,1]", "row_ror:4", "row_ror:8"):
    dpp("max_f32", T[2], T[2], T[2], ctl)
g("v_mov_b32 %s, %s" % (T[3], T[2]))
g("v_permlane16_swap_b32 %s, %s" % (T[2], T[3]))
g("v_max_f32 %s, %s, %s" % (T[2], T[2], T[3]))
g("v_sub_f32 %s, %s, %s" % (T[2], v(GML), T[2]))
g("v_mul_f32 %s, %s, %s" % (T[2], S_C, T[2]))
g("v_exp_f32 %s, %s" % (T[2], T[2]))
g("v_mul_f32 %s, %s, %s" % (T[3], T[2], v(GML + 1)))
for ctl in ("quad_perm:[1,0,3,2]", "quad_perm:[2,3,0,1]", "row_ror:4", "row_ror:8"):
    dpp("add_f32", T[3], T[3], T[3], ctl)
g("v_mov_b32 %s, %s" % (T[4], T[3]))
g("v_permlane16_swap_b32 %s, %s" % (T[3], T[4]))
g("v_add_f32 %s, %s, %s" % (T[3], T[3], T[4]))
g("v_rcp_f32 %s, %s" % (T[4], T[3]))
g("v_fma_f32 %s, -%s, %s, 1.0" % (T[3], T[3], T[4]))
g("v_fma_f32 %s, %s, %s, %s" % (T[4], T[3], T[4], T[4]))
g("v_mul_f32 %s, %s, %s" % (T[2], T[2], T[4]))
g("v_and_b32 %s, 32, %s" % (T[3], V_LANE))
g("s_lshl_b32 %s, %s, 3" % (S_T0, S_WAVE))
g("v_add_u32 %s, %s, %s" % (T[3], S_T0, T[3]))
g("v_lshlrev_b32 %s, 2, %s" % (T[3], T[3]))
for i in range(8):
    g("v_add_u32 %s, %d, %s" % (T[4], 4 * i, T[3]))
    g("ds_bpermute_b32 %s, %s, %s" % (v(Z + i), T[4], T[2]))
g("s_waitcnt lgkmcnt(0)")
for e in range(4):
    g("v_mul_f32 %s, %s, %s" % (v(PK + e), v(Z), v(GO + e)))
for i in range(1, 8):
    for e in range(4):
        g("v_fmac_f32 %s, %s, %s" % (v(PK + e), v(Z + i), v(GO + 4 * i + e)))
g("s_lshl_b32 %s, %s, 10" % (S_T0, S_WAVE))
g("v_lshlrev_b32 %s, 4, %s" % (T[0], V_LANE))
g("v_add_u32 %s, %s, %s" % (T[1], S_T0, T[0]))
g("ds_write_b128 %s, %s offset:%d" % (T[1], vr(PK, 4), L_B))
g("s_waitcnt lgkmcnt(0)")
g("s_barrier")
g("v_lshrrev_b32 %s, 2, %s" % (T[0], V_LANE))
g("v_lshlrev_b32 %s, 4, %s" % (T[0], T[0]))
g("s_lshl_b32 %s, %s, 8" % (S_T0, S_WAVE))
g("v_add_u32 %s, %s, %s" % (T[0], S_T0, T[0]))
for vv in range(4):
    g("ds_read_b128 %s, %s offset:%d" % (vr(D + 4 * vv, 4), T[0], L_B + 1024 * vv))
g("s_waitcnt lgkmcnt(0)")
for e in range(4):
    g("v_add_f32 %s, %s, %s" % (v(D + e), v(D + e), v(D + 4 + e)))
    g("v_add_f32 %s, %s, %s" % (v(D + 8 + e), v(D + 8 + e), v(D + 12 + e)))
    g("v_add_f32 %s, %s, %s" % (v(D + e), v(D + e), v(D + 8 + e)))
rne2(v(D), v(D + 1), T[2])
rne2(v(D + 2), v(D + 3), T[2])
acc8 = [v(Z + i) for i in range(8)]
for a in acc8:
    g("v_mov_b32 %s, 0" % a)
for i in range(4):
    fma_pairs(acc8, [v(WW + 4 * i + k) for k in range(4)], v(D + i), T[2])
reduce_x(acc8, ("row_ror:4", "row_ror:8"), [v(D + 8 + i) for i in range(4)])
hand_in_l(Z, 4, EX_Y, T[2])
g("s_barrier")
hand_out(8, EX_Y, S_WR, O_Y, S_WSOFF, D, T[2], nsum=4)
stamp(9)


def read_x_all(XFb):
    g("v_lshlrev_b32 %s, 2, %s" % (T[0], V_LANE))
    g("v_add_u32 %s, 0x%x, %s" % (T[0], L_X, T[0]))
    for k in range(4):
        g("ds_read2st64_b32 %s, %s offset0:%d offset1:%d" % (vr(XFb + 2 * k, 2), T[0], 2 * k, 2 * k + 1))


def read_x_rows(XB, lb, srow):
    step = 64 >> lb
    g("v_lshrrev_b32 %s, %d, %s" % (T[1], lb, V_LANE))
    g("v_add_u32 %s, %s, %s" % (T[1], srow, T[1]))
    g("v_lshlrev_b32 %s, 2, %s" % (T[1], T[1]))
    g("v_add_u32 %s, 0x%x, %s" % (T[1], L_X, T[1]))
    for k in range(4):
        g("ds_read2_b32 %s, %s offset0:%d offset1:%d" % (vr(XB + 2 * k, 2), T[1], 2 * k * step, (2 * k + 1) * step))
    g("s_waitcnt lgkmcnt(0)")


def residual_update4(dsts, obase, rstride, lsh, XQ, tail="lds"):
    g("s_sub_u32 %s, %s, 2" % (S_T1, S_WAVE))
    g("s_lshl_b32 %s, %s, 10" % (S_T0, S_T1))
    g("v_lshlrev_b32 %s, 4, %s" % (T[0], V_LANE))
    g("v_add_u32 %s, %s, %s" % (T[0], S_T0, T[0]))
    g("ds_read_b128 %s, %s offset:%d" % (vr(XQ, 4), T[0], L_X))
    g("v_lshrrev_b32 %s, %d, %s" % (T[1], lsh - 2, V_LANE))
    g("v_lshlrev_b32 %s, 7, %s" % (T[1], T[1]))
    g("v_and_b32 %s, %d, %s" % (T[2], (1 << (lsh - 2)) - 1, V_LANE))
    g("v_lshlrev_b32 %s, 4, %s" % (T[2], T[2]))
    g("s_lshl_b32 %s, %s, %d" % (S_T0, S_T1, 15 - lsh))
    g("s_add_u32 %s, %s, 0x%x" % (S_T0, S_T0, obase))
    g("v_add3_u32 %s, %s, %s, %s" % (T[1], T[1], T[2], S_T0))

    def issue():
        for i, d in enumerate(dsts):
            g("s_add_u32 %s, %s, 0x%x" % (S_OFF, S_WSOFF, i * rstride))
            g("buffer_load_dwordx4 %s, %s, %s, %s offen sc1" % (vr(d, 4), T[1], SRD_WS, S_OFF))
    poll(issue, [v(d + e) for d in dsts for e in range(4)], T[2])
    cur = list(dsts)
    while len(cur) > 1:
        nxt = []
        for i in range(0, len(cur), 2):
            if i + 1 < len(cur):
                for e in range(4):
                    g("v_add_f32 %s, %s, %s" % (v(cur[i] + e), v(cur[i] + e), v(cur[i + 1] + e)))
            nxt.append(cur[i])
        cur = nxt
    S = cur[0]
    rne2(v(S), v(S + 1), T[2])
    rne2(v(S + 2), v(S + 3), T[3])
    g("s_waitcnt lgkmcnt(0)")
    for e in range(4):
        g("v_add_f32 %s, %s, %s" % (v(XQ + e), v(XQ + e), v(S + e)))
    rne2(v(XQ), v(XQ + 1), T[2])
    rne2(v(XQ + 2), v(XQ + 3), T[3])
    if tail == "out":
        g("v_lshrrev_b32 %s, 1, %s" % (T[0], T[0]))
        g("buffer_store_dwordx2 %s, %s, %s, 0 offen" % (vr(6, 2), T[0], SRD_OUT))
        g("s_waitcnt vmcnt(0)")
        return
    g("ds_write_b128 %s, %s offset:%d" % (T[0], vr(XQ, 4), L_X))
    g("s_waitcnt lgkmcnt(0)")


XFb = D
g("s_cmp_lt_u32 %s, 2" % S_WAVE)
g("s_cbranch_scc1 L_e2a")
residual_update4([ACC + 4 * i for i in range(8)] + [LAND + 4 * i for i in range(8)], O_Y, 2048, 5, QOP)
stamp(10)
g("s_barrier")
LATEQ = os.environ.get("LATEQ", "0")
g("s_cmp_ge_u32 %s, 112" % S_DR)
g("s_cbranch_scc1 L_nodw2")
dw_loads(Z)
if LATEQ == "1":
    g("s_branch L_gudone")
elif LATEQ == "2":
    g("s_cmp_lg_u32 %s, 0" % S_IT)
    g("s_cbranch_scc1 L_gudone")
    qproj_loads(ACC)
    g("s_branch L_gudone")
g.label("L_nodw2")
g("s_cmp_lg_u32 %s, 0" % S_IT)
g("s_cbranch_scc1 L_gudone")
qproj_loads(ACC)
stream_piece(SRD_K, V_KOFF, (ORD2 or ORD1)[0], 0)
g("s_branch L_gudone")
g.label("L_e2a")
g("s_barrier")
stamp(10)
g("s_cmp_ge_u32 s2, 224")
g("s_cbranch_scc1 L_gudone")
read_x_all(XFb)
g("s_and_b32 %s, %s, 7" % (S_T0, S_HR))
g("s_lshl_b32 %s, %s, 6" % (S_T0, S_T0))
read_x_rows(XFb + 8, 3, S_T0)
layernorm([v(XFb + i) for i in range(8)], [v(XFb + 8 + i) for i in range(8)], XN, T[0], T[1], T[2])
h_base()
gemv_publish(GW, XN, PK, 3, S_T2, S_WSOFF)
for k in range(16):
    g("v_mov_b32 %s, %s" % (v(Z + k), v(DW + k)))
g.label("L_gudone")

stamp(11)
g("s_cmp_ge_u32 %s, 112" % S_DR)
g("s_cbranch_scc1 L_noe3")
g("s_lshr_b32 %s, %s, 4" % (S_T0, S_DR))
g("s_lshl_b32 %s, %s, 14" % (S_T0, S_T0))
g("s_lshl_b32 %s, %s, 12" % (S_T1, S_WAVE))
g("s_add_u32 %s, %s, %s" % (S_T0, S_T0, S_T1))
g("s_add_u32 %s, %s, 0x%x" % (S_T0, S_T0, O_H))
g("v_lshrrev_b32 %s, 4, %s" % (T[0], V_LANE))
g("v_lshlrev_b32 %s, 9, %s" % (T[0], T[0]))
g("v_and_b32 %s, 15, %s" % (T[1], V_LANE))
g("v_lshlrev_b32 %s, 4, %s" % (T[1], T[1]))
g("v_add3_u32 %s, %s, %s, %s" % (T[0], T[0], T[1], S_T0))
accd = [v(D + 8 + i) for i in range(8)]


def e3_issue():
    for k, off in enumerate((0, 256, 2048, 2304)):
        g("buffer_load_dwordx4 %s, %s, %s, %s offen offset:%d sc1" % (vr(D + 4 * k, 4), T[0], SRD_WS, S_WSOFF, off))


poll(e3_issue, [v(D + i) for i in range(16)], T[1])
stamp(12)
if LATEQ == "0":
    g("s_cmp_ge_u32 %s, 2" % S_WAVE)
    g("s_cbranch_scc1 L_nok0")
g("s_cmp_lg_u32 %s, 0" % S_IT)
g("s_cbranch_scc1 L_nok0")
if LATEQ == "1":
    g("s_cmp_lt_u32 %s, 2" % S_WAVE)
    g("s_cbranch_scc1 L_noqp")
    qproj_loads(ACC)
    g.label("L_noqp")
stream_piece(SRD_K, V_KOFF, (ORD2 or ORD1)[0], 0)
g.label("L_nok0")
for e in range(8):
    g("v_add_f32 %s, %s, %s" % (v(D + e), v(D + e), v(D + 8 + e)))
reduce_x([v(D + e) for e in range(8)], (), [v(D + 8 + i) for i in range(8)])
for k in range(0, 8, 2):
    rne2(v(D + k), v(D + k + 1), v(D + 8 + k))
for e in range(4):
    g("v_max_f32 %s, 0, %s" % (v(D + e), v(D + e)))
for e in range(4):
    g("v_mul_f32 %s, %s, %s" % (v(D + e), v(D + e), v(D + 4 + e)))
rne2(v(D), v(D + 1), v(D + 8))
rne2(v(D + 2), v(D + 3), v(D + 9))
for a in accd:
    g("v_mov_b32 %s, 0" % a)
for i in range(4):
    fma_pairs(accd, [v(Z + 4 * i + k) for k in range(4)], v(D + i), T[1])
for ctl in ("quad_perm:[1,0,3,2]", "quad_perm:[2,3,0,1]", "row_ror:4", "row_ror:8"):
    for r in accd:
        dpp("add_f32", r, r, r, ctl)
g("s_lshl_b32 %s, %s, 7" % (S_T0, S_WAVE))
g("v_lshlrev_b32 %s, 1, %s" % (T[0], V_LANE))
g("v_add_u32 %s, %s, %s" % (T[0], S_T0, T[0]))
g("s_mov_b32 exec_lo, 0x00010001")
g("s_mov_b32 exec_hi, 0x00010001")
for k in range(2):
    g("ds_write_b128 %s, %s offset:%d" % (T[0], vr(D + 8 + 4 * k, 4), EX_DN + 16 * k))
exec_all()
g("s_waitcnt lgkmcnt(0)")
g("s_barrier")
hand_out(8, EX_DN, S_DR, O_DN, S_WSOFF, D, T[0], nsum=4)
g.label("L_noe3")
stamp(13)
g("s_cmp_lg_u32 %s, 0" % S_IT)
g("s_cbranch_scc1 L_final")

g("s_cmp_lt_u32 %s, 2" % S_WAVE)
g("s_cbranch_scc1 L_e4a")
residual_update4([Z + 4 * i for i in range(7)], O_DN, 2048, 5, QOP)
stamp(14)
g("s_barrier")
read_x_all(XFb)
g("s_and_b32 %s, %s, 3" % (S_T0, S_WR))
g("s_lshl_b32 %s, %s, 7" % (S_T0, S_T0))
read_x_rows(XFb + 8, 2, S_T0)
layernorm([v(XFb + i) for i in range(8)], [v(XFb + 8 + i) for i in range(8)], XN, T[0], T[1], T[2])
q_base()
gemv_publish(ACC, XN, PK, 2, S_T2, S_WSNEXT)
g("s_branch L_noq2")
g.label("L_e4a")
g("s_cmp_lt_u32 %s, 112" % S_DR)
g("s_cbranch_scc1 L_k0done")
stream_piece(SRD_K, V_KOFF, (ORD2 or ORD1)[0], 0)
g.label("L_k0done")
g("s_barrier")
stamp(14)
stream_piece(SRD_K, V_KOFF, (ORD2 or ORD1)[1], 1)
g.label("L_noq2")
stamp(15)
gather_q_shared(S_WSNEXT)
stamp(16)
stamp_shift()
g("s_mov_b32 %s, 1" % S_IT)
g("s_mov_b32 %s, 0x%x" % (S_WSOFF, ITS))
if ORD2:
    attn_pass(ORD2, "b")
    g("s_branch L_endpass")
else:
    g("s_branch L_main")

g.label("L_final")
stamp_dump()
g("s_cmp_lg_u32 s2, 0")
g("s_cbranch_scc1 L_exit")
g("s_cmp_lt_u32 %s, 2" % S_WAVE)
g("s_cbranch_scc1 L_exit")
residual_update4([Z + 4 * i for i in range(7)], O_DN, 2048, 5, QOP, tail="out")
if DEBUG and sys.argv[2] == "dbgo":
    g("s_memrealtime s[100:101]")
    g("s_waitcnt lgkmcnt(0)")
    g("s_mov_b64 exec, 1")
    g("v_mov_b32 v255, 0")
    g("v_mov_b32 v254, s100")
    g("buffer_atomic_umax v254, v255, %s, 0 offen offset:56 sc1" % SRD_DBG)
    g("s_waitcnt vmcnt(0)")
g.label("L_exit")
g("s_endpgm")

body = g.finalize()

ref = open("interleave_layers__gqa_block_cached__glu_gated_reglu__decode.s.ref").read()
head = []
for l in ref.splitlines():
    if l.startswith("; @launch"):
        head.append("; @launch grid=(256,1,1) block=(256,1,1) lds=%d" % LDS_BYTES)
        break
    head.append(l)
out = "\n".join(head) + """
.amdgcn_target "amdgcn-amd-amdhsa--gfx950"
.text
.globl %s
.p2align 8
.type %s,@function
%s:
""" % (NAME, NAME, NAME) + body + """
.section .rodata,"a"
.p2align 6
.amdhsa_kernel %s
  .amdhsa_next_free_vgpr 512
  .amdhsa_next_free_sgpr 102
  .amdhsa_accum_offset 256
  .amdhsa_group_segment_fixed_size 0
  .amdhsa_kernarg_size 96
  .amdhsa_user_sgpr_count 2
  .amdhsa_user_sgpr_kernarg_segment_ptr 1
  .amdhsa_system_sgpr_workgroup_id_x 1
  .amdhsa_float_denorm_mode_32 3
.end_amdhsa_kernel
""" % NAME
path = sys.argv[1] if len(sys.argv) > 1 else "interleave_layers__gqa_block_cached__glu_gated_reglu__decode.s"
open(path, "w").write(out)
print("wrote", path, len(out.splitlines()), "lines")
```

```python
import re

TRANS = ("v_exp_f32", "v_rcp_f32", "v_rsq_f32", "v_sqrt_f32", "v_log_f32", "v_sin_f32", "v_cos_f32")

_reg1 = re.compile(r"^-?(?:abs\()?([vas])(\d+)\)?$")
_regN = re.compile(r"^-?([vas])\[(\d+):(\d+)\]$")


def split_ops(s):
    out, depth, cur = [], 0, ""
    for ch in s:
        if ch == "[":
            depth += 1
        elif ch == "]":
            depth -= 1
        if ch == "," and depth == 0:
            out.append(cur.strip())
            cur = ""
        else:
            cur += ch
    if cur.strip():
        out.append(cur.strip())
    return out


def regs_of(tok):
    tok = tok.split()[0] if tok else tok
    if tok in ("vcc", "exec"):
        return [tok]
    m = _reg1.match(tok)
    if m:
        return [m.group(1) + m.group(2)]
    m = _regN.match(tok)
    if m:
        return [m.group(1) + str(i) for i in range(int(m.group(2)), int(m.group(3)) + 1)]
    return []


class Asm:
    def __init__(self):
        self.lines = []

    def __call__(self, s):
        for l in s.split("\n"):
            l = l.strip()
            if l:
                self.lines.append(l)

    def label(self, name):
        self.lines.append(name + ":")

    def comment(self, s):
        self.lines.append("; " + s)

    def finalize(self, smart=False):
        if not smart:
            return self._pass(None)[0]
        back = None
        prev = None
        for _ in range(10):
            txt, nback = self._pass(back, smart=True)
            if txt == prev and nback == back:
                return txt
            prev, back = txt, nback
        raise RuntimeError("no fixpoint")

    def _pass(self, back, smart=False):
        out = []
        pos = 0
        valu_w, trans_w, mfma_w, mfma_c, vsgpr_w, st_data = {}, {}, {}, {}, {}, {}
        mfma_dst_sig = {}
        dot_w, dot_op = {}, {}
        dicts = (valu_w, trans_w, mfma_w, mfma_c, vsgpr_w, st_data, dot_w)
        fwd, nback, seen = {}, {}, set()
        targets = set()
        for l in self.lines:
            c = l.split(";")[0].split()
            if c and (c[0].startswith("s_cbranch") or c[0] == "s_branch"):
                targets.add(c[1])

        def need(d, regs, req):
            n = 0
            for r in regs:
                if r in d:
                    dist = pos - d[r] - 1
                    n = max(n, req - dist)
            return n

        for l in self.lines:
            if l.startswith(";"):
                out.append("    " + l)
                continue
            if l.endswith(":"):
                out.append(l)
                name = l[:-1]
                seen.add(name)
                if not smart or (back is None and name in self._backward()):
                    out.append("    s_nop 7")
                    out.append("    s_nop 1")
                    pos += 10
                    continue
                for snap, sig in fwd.get(name, []) + (back or {}).get(name, []):
                    for d, sd in zip(dicts, snap):
                        for r, rel in sd.items():
                            w = pos - rel
                            if d is mfma_w and mfma_dst_sig.get(r) != sig.get(r):
                                mfma_dst_sig[r] = None
                            if d is dot_w:
                                dot_op[r] = None
                            if d.get(r, -10 ** 9) < w:
                                d[r] = w
                continue
            code = l.split(";")[0].strip()
            parts = code.split(None, 1)
            mn = parts[0]
            ops = split_ops(parts[1]) if len(parts) > 1 else []
            nn = 0
            dst, src = [], []
            kind = None
            if mn == "s_nop":
                out.append("    " + l)
                pos += int(ops[0], 0) + 1
                continue
            if mn.startswith("v_mfma"):
                kind = "mfma"
                dst = regs_of(ops[0])
                A, B, C = regs_of(ops[1]), regs_of(ops[2]), regs_of(ops[3])
                nn = max(nn, need(valu_w, A + B + C, 2))
                nn = max(nn, need(dot_w, A + B + C + dst, 3))
                nn = max(nn, need(mfma_w, A + B, 8))
                sig = (dst[0], dst[-1])
                csig = (C[0], C[-1]) if C else None
                for r in C:
                    if r in mfma_w and mfma_dst_sig.get(r) != csig:
                        nn = max(nn, need(mfma_w, [r], 6))
                for r in dst:
                    if r in mfma_w and mfma_dst_sig.get(r) != sig:
                        nn = max(nn, need(mfma_w, [r], 6))
            elif mn.startswith("v_"):
                kind = "valu"
                if mn.startswith("v_permlane") and "swap" in mn:
                    dst = regs_of(ops[0]) + regs_of(ops[1])
                    src = list(dst)
                    nn = max(nn, need(valu_w, src, 2))
                elif mn.startswith("v_add_co") or mn.startswith("v_addc_co") or mn.startswith("v_sub_co"):
                    dst = regs_of(ops[0]) + regs_of(ops[1])
                    for o in ops[2:]:
                        src += regs_of(o)
                else:
                    dst = regs_of(ops[0])
                    for o in ops[1:]:
                        src += regs_of(o)
                    if mn.startswith("v_fmac") or "_dpp" in mn or mn.startswith("v_dot2c"):
                        src += dst
                vsrc = [r for r in src if r[0] in "va" and r not in ("vcc",)]
                ssrc = [r for r in src if r[0] == "s" or r == "vcc"]
                vdst = [r for r in dst if r[0] in "va" and r != "vcc"]
                if "_dpp" in mn:
                    nn = max(nn, need(valu_w, vsrc, 2))
                if mn.startswith("v_readlane") or mn.startswith("v_readfirstlane"):
                    nn = max(nn, need(valu_w, vsrc, 1))
                if mn not in TRANS:
                    nn = max(nn, need(trans_w, vsrc, 1))
                else:
                    nn = max(nn, need(trans_w, vsrc, 1))
                nn = max(nn, need(vsgpr_w, ssrc, 2))
                nn = max(nn, need(mfma_w, vsrc + vdst, 8))
                nn = max(nn, need(mfma_c, vdst, 3))
                nn = max(nn, need(st_data, vdst, 2))
                if mn.startswith("v_dot"):
                    nn = max(nn, need(dot_w, regs_of(ops[1]) + regs_of(ops[2]), 3))
                    nn = max(nn, need(dot_w, [r for r in vsrc + vdst if dot_op.get(r) != mn], 3))
                else:
                    nn = max(nn, need(dot_w, vsrc + vdst, 3))
                if mn.startswith("v_cndmask") and len(ops) == 3:
                    nn = max(nn, need(vsgpr_w, ["vcc"], 2))
            elif mn.startswith("buffer_") or mn.startswith("global_"):
                kind = "vmem"
                isload = "_load" in mn
                allr = []
                for o in ops:
                    allr += regs_of(o)
                if isload:
                    dst = regs_of(ops[0])
                    for o in ops[1:]:
                        src += regs_of(o)
                else:
                    src = allr
                nn = max(nn, need(vsgpr_w, [r for r in src if r[0] == "s"], 5))
                nn = max(nn, need(dot_w, src + dst, 3))
                nn = max(nn, need(mfma_w, [r for r in src + dst if r[0] in "va"], 8))
                nn = max(nn, need(st_data, dst, 1))
            elif mn.startswith("ds_"):
                kind = "ds"
                if mn.startswith("ds_write"):
                    for o in ops:
                        src += regs_of(o)
                else:
                    dst = regs_of(ops[0])
                    for o in ops[1:]:
                        src += regs_of(o)
                nn = max(nn, need(mfma_w, [r for r in src + dst if r[0] in "va"], 8))
                nn = max(nn, need(st_data, dst, 1))
                nn = max(nn, need(dot_w, src + dst, 3))
            elif mn.startswith("s_"):
                kind = "salu"
                for o in ops:
                    src += regs_of(o)
                nn = max(nn, need(vsgpr_w, [r for r in src if r[0] == "s" or r == "vcc"], 1))
            else:
                raise ValueError("unknown instr " + l)
            while nn > 0:
                k = min(nn, 16)
                out.append("    s_nop %d" % (k - 1))
                pos += k
                nn -= k
            out.append("    " + l)
            if kind == "mfma":
                for r in dst:
                    mfma_w[r] = pos
                    mfma_dst_sig[r] = (dst[0], dst[-1])
                for r in regs_of(ops[3]):
                    mfma_c[r] = pos
            elif kind == "valu":
                for r in dst:
                    if r[0] in "va" and r != "vcc":
                        valu_w[r] = pos
                        if mn.startswith("v_dot"):
                            dot_w[r] = pos
                            dot_op[r] = mn
                        if mn in TRANS:
                            trans_w[r] = pos
                        else:
                            trans_w.pop(r, None)
                    else:
                        vsgpr_w[r] = pos
            elif kind == "vmem":
                if ("store" in mn) and ("x4" in mn or "x3" in mn):
                    for r in regs_of(ops[0]):
                        st_data[r] = pos
            if mn.startswith("s_cbranch") or mn == "s_branch":
                snap = tuple({r: pos + 1 - w for r, w in d.items() if pos + 1 - w <= 20} for d in dicts)
                sig = {r: mfma_dst_sig.get(r) for r in snap[2]}
                (nback if ops[0] in seen else fwd).setdefault(ops[0], []).append((snap, sig))
            pos += 1
        return "\n".join(out), nback

    def _backward(self):
        if not hasattr(self, "_bw"):
            seen, bw = set(), set()
            for l in self.lines:
                if l.endswith(":") and not l.startswith(";"):
                    seen.add(l[:-1])
                    continue
                c = l.split(";")[0].split()
                if c and (c[0].startswith("s_cbranch") or c[0] == "s_branch") and c[1] in seen:
                    bw.add(c[1])
            self._bw = bw
        return self._bw
```

```python
import os
import struct
import sys
from asmlib import Asm

NAME = "interleave_layers__gqa_block_cached__glu_gated_reglu__decode_kernel"
NT = " nt"
DEBUG = len(sys.argv) > 2 and sys.argv[2].startswith("dbg")

PSTR = 2560
O_PART, O_Y, O_DN, O_Q, O_H = 0x0, 0xA0000, 0xA8000, 0xB0000, 0xC0000
ITS = 0x100000
WS_BYTES = 0x800000
O_DBG = 0x200000

NLDS = 36
L_V = 16384
L_A = 0
L_ML = L_A + 8192
EX_Y = L_ML + 128
EX_DN = EX_Y + 512
EX_Q = EX_DN + 512
L_X = EX_Q + 1024 + 128
LDS_BYTES = 163840
assert L_X % 256 == 0 and L_X + 2048 <= L_V and L_V + 4 * NLDS * 1024 <= LDS_BYTES

SRD_K, SRD_V, SRD_WS, SRD_WQ, SRD_WO, SRD_WG, SRD_WU, SRD_WD, SRD_X, SRD_OUT, SRD_DBG = [
    "s[%d:%d]" % (i, i + 3) for i in range(8, 52, 4)]
S_WAVE, S_OFF, S_IT, S_WSOFF, S_TMO, S_SELLO, S_SELHI, S_HIM, S_C, S_WSNEXT = [
    "s%d" % i for i in range(52, 62)]
S_R0, S_R1, S_R2, S_R3 = "s62", "s63", "s64", "s65"
P_R0, P_R2, P_A = "s[62:63]", "s[64:65]", "s[0:1]"
S_T0, S_T1, S_T2, S_T3 = "s66", "s67", "s68", "s69"
S_ROT = "s99"
S_WR, S_HR, S_MLO, S_DR, S_GUB = "s3", "s4", "s5", "s6", "s7"
SRD_P = SRD_X
S_BLK = S_WR

V_TID, V_LANE, V_KOFF, V_VOFF = "v0", "v1", "v2", "v3"
V_SP = V_VOFF
T = ["v%d" % i for i in range(4, 10)]
V_M, V_L = "v10", "v11"
QOP = 12
Z = 16
PK = 24
PKS = 28
D = 32
ACC = 48
LAND = 80
VC = 144


def v(i):
    return "v%d" % i


def vr(i, n):
    return "v[%d:%d]" % (i, i + n - 1)


def f32bits(x):
    return "0x%08x" % struct.unpack("<I", struct.pack("<f", x))[0]


g = Asm()
_lbl = [0]


def newlabel(p):
    _lbl[0] += 1
    return "L_%s_%d" % (p, _lbl[0])


def dpp(op, dst, s0, s1, ctl, row=0xF, bank=0xF):
    g("v_%s_dpp %s, %s, %s %s row_mask:0x%x bank_mask:0x%x" % (op, dst, s0, s1, ctl, row, bank))


def bc(reg):
    return vr(reg & ~1, 2), reg & 1, reg & 1


def pk_add(d, a, b):
    g("v_pk_add_f32 %s, %s, %s" % (vr(d, 2), vr(a, 2), vr(b, 2)))


def pk_mul_b(d, a, breg):
    p, lo, hi = bc(breg)
    g("v_pk_mul_f32 %s, %s, %s op_sel:[0,%d] op_sel_hi:[1,%d]" % (vr(d, 2), vr(a, 2), p, lo, hi))


def pk_fma_b(d, a, breg, c):
    p, lo, hi = bc(breg)
    g("v_pk_fma_f32 %s, %s, %s, %s op_sel:[0,%d,0] op_sel_hi:[1,%d,1]" % (vr(d, 2), vr(a, 2), p, vr(c, 2), lo, hi))


def reduce_row3(regs, op="add_f32"):
    for ctl in ("quad_perm:[1,0,3,2]", "quad_perm:[2,3,0,1]", "row_ror:4", "row_ror:8"):
        for r in regs:
            dpp(op, r, r, r, ctl)
    for r in regs:
        dpp(op, r, r, r, "row_bcast:15", row=0xA)
    for r in regs:
        dpp(op, r, r, r, "row_bcast:31", row=0xC)


def rs_swap(sw, pairs):
    for a, b in pairs:
        g("v_permlane%d_swap_b32 %s, %s" % (sw, v(a), v(b)))
    for a, b in pairs:
        g("v_add_f32 %s, %s, %s" % (v(a), v(a), v(b)))


def rne1(dst, src):
    g("v_cvt_pk_bf16_f32 %s, %s, %s" % (dst, src, src))
    g("v_lshlrev_b32 %s, 16, %s" % (dst, dst))


def unpack(a, b, p):
    g("v_lshlrev_b32 %s, 16, %s" % (a, p))
    g("v_and_b32 %s, %s, %s" % (b, S_HIM, p))


def umax(tmp, rs):
    rs = list(rs)
    if len(rs) == 1:
        g("v_mov_b32 %s, %s" % (tmp, rs[0]))
        return
    if len(rs) >= 3:
        g("v_max3_u32 %s, %s, %s, %s" % (tmp, rs[0], rs[1], rs[2]))
        rs = rs[3:]
    else:
        g("v_max_u32 %s, %s, %s" % (tmp, rs[0], rs[1]))
        rs = rs[2:]
    while rs:
        if len(rs) >= 2:
            g("v_max3_u32 %s, %s, %s, %s" % (tmp, tmp, rs[0], rs[1]))
            rs = rs[2:]
        else:
            g("v_max_u32 %s, %s, %s" % (tmp, tmp, rs[0]))
            rs = rs[1:]


def timeout_loop(lp):
    g("s_sub_u32 %s, %s, 1" % (S_TMO, S_TMO))
    g("s_cmp_eq_u32 %s, 0" % S_TMO)
    g("s_cbranch_scc0 %s" % lp)
    g("s_mov_b32 %s, 1" % S_TMO)


def exec_all():
    g("s_mov_b64 exec, -1")


def exec_rep(m32):
    g("s_mov_b32 exec_lo, 0x%x" % m32)
    g("s_mov_b32 exec_hi, 0x%x" % m32)


def poll(issue, regs, tmp):
    lp, done = newlabel("poll"), newlabel("pdone")
    g.label(lp)
    issue()
    g("s_waitcnt vmcnt(0)")
    umax(tmp, regs)
    g("v_cmp_eq_u32 vcc, -1, %s" % tmp)
    g("s_cbranch_vccz %s" % done)
    g("s_mov_b64 exec, vcc")
    timeout_loop(lp)
    g.label(done)
    exec_all()


slow_paths = []


CNTDBG = DEBUG and os.environ.get("CNT") == "1"


def spec_poll(first, shadow, compute, reissue, cnt=None):
    lc, lr, ld, lf = [newlabel(x) for x in ("pc", "pr", "pd", "pf")]
    first()
    if shadow:
        shadow()
    g("s_waitcnt vmcnt(0)")
    g.label(lc)
    compute(lr)
    g.label(ld)

    def slow():
        g.label(lr)
        if CNTDBG and cnt:
            g("s_add_u32 %s, %s, 1" % (cnt, cnt))
        reissue()
        g("s_cmp_eq_u64 %s, 0" % P_A)
        g("s_cbranch_scc1 %s" % lf)
        g("s_waitcnt vmcnt(0)")
        timeout_loop(lc)
        g.label(lf)
        compute(None)
        g("s_branch %s" % ld)
    slow_paths.append(slow)


def layernorm(XS, X, XP, t0, t1, t2, W):
    g("v_readfirstlane_b32 s0, %s" % v(XS))
    for k in range(0, 8, 2):
        g("v_pk_add_f32 %s, %s, %s op_sel_hi:[1,0] neg_lo:[0,1] neg_hi:[0,1]" % (vr(XS + k, 2), vr(XS + k, 2), P_A))
    g("v_pk_mul_f32 %s, %s, %s" % (vr(W, 2), vr(XS, 2), vr(XS, 2)))
    pk_add(W + 2, XS, XS + 2)
    g("v_pk_fma_f32 %s, %s, %s, %s" % (vr(W, 2), vr(XS + 2, 2), vr(XS + 2, 2), vr(W, 2)))
    pk_add(XS, XS + 4, XS + 6)
    g("v_pk_fma_f32 %s, %s, %s, %s" % (vr(W, 2), vr(XS + 4, 2), vr(XS + 4, 2), vr(W, 2)))
    pk_add(W + 2, W + 2, XS)
    g("v_pk_fma_f32 %s, %s, %s, %s" % (vr(W, 2), vr(XS + 6, 2), vr(XS + 6, 2), vr(W, 2)))
    g("v_add_f32 %s, %s, %s" % (t0, v(W + 2), v(W + 3)))
    g("v_add_f32 %s, %s, %s" % (t1, v(W), v(W + 1)))
    reduce_row3([t0, t1])
    g("v_mul_f32 %s, %s, %s" % (t0, f32bits(1.0 / 512), t0))
    g("v_mul_f32 %s, %s, %s" % (t1, f32bits(1.0 / 512), t1))
    g("v_fma_f32 %s, -%s, %s, %s" % (t1, t0, t0, t1))
    g("v_add_f32 %s, s0, %s" % (t0, t0))
    g("v_max_f32 %s, 0, %s" % (t1, t1))
    g("v_cvt_pk_bf16_f32 %s, %s, %s" % (t2, t0, t1))
    unpack(t0, t1, t2)
    g("v_add_f32 %s, %s, %s" % (t1, f32bits(1e-5), t1))
    g("v_readlane_b32 %s, %s, 63" % (S_R0, t0))
    rne1(t1, t1)
    g("v_sqrt_f32 %s, %s" % (t1, t1))
    g("s_waitcnt lgkmcnt(0)")
    for k in range(0, 8, 2):
        g("v_pk_add_f32 %s, %s, %s op_sel_hi:[1,0] neg_lo:[0,1] neg_hi:[0,1]" % (vr(X + k, 2), vr(X + k, 2), P_R0))
    rne1(t1, t1)
    g("v_rcp_f32 %s, %s" % (t2, t1))
    for k in range(4):
        g("v_cvt_pk_bf16_f32 %s, %s, %s" % (v(XP + k), v(X + 2 * k), v(X + 2 * k + 1)))
    g("v_readlane_b32 %s, %s, 63" % (S_R2, t1))
    g("v_readlane_b32 s0, %s, 63" % t2)
    for k in range(4):
        unpack(v(X + 2 * k), v(X + 2 * k + 1), v(XP + k))
    for k in range(0, 8, 2):
        g("v_pk_mul_f32 %s, %s, %s op_sel_hi:[1,0]" % (vr(XS + k, 2), vr(X + k, 2), P_A))
    for k in range(0, 8, 2):
        g("v_pk_fma_f32 %s, %s, %s, %s op_sel_hi:[1,0,1] neg_lo:[1,0,0] neg_hi:[1,0,0]" % (vr(X + k, 2), vr(XS + k, 2), P_R2, vr(X + k, 2)))
    for k in range(0, 8, 2):
        g("v_pk_fma_f32 %s, %s, %s, %s op_sel_hi:[1,0,1]" % (vr(XS + k, 2), vr(X + k, 2), P_A, vr(XS + k, 2)))
    for k in range(4):
        g("v_cvt_pk_bf16_f32 %s, %s, %s" % (v(XP + k), v(XS + 2 * k), v(XS + 2 * k + 1)))


def pair_rows(W, nrows, spare=None, dst=None):
    m = {}
    for i in range(0, nrows, 2):
        for k in range(4):
            a, b = v(W + 4 * i + k), v(W + 4 * i + 4 + k)
            if dst is not None:
                lo, hi = v(dst + 4 * i + 2 * k), v(dst + 4 * i + 2 * k + 1)
            else:
                lo, hi = spare, b
            g("v_perm_b32 %s, %s, %s, %s" % (lo, b, a, S_SELLO))
            g("v_perm_b32 %s, %s, %s, %s" % (hi, b, a, S_SELHI))
            if dst is None:
                spare = a
            m[(i // 2, 2 * k)], m[(i // 2, 2 * k + 1)] = lo, hi
    return m


def pair_map(W, nrows, spare=None, dst=None):
    keep = g.lines
    g.lines = []
    m = pair_rows(W, nrows, spare, dst)
    g.lines = keep
    return m


def dots(A, m, XP, npair):
    for p in range(npair):
        for c in range(8):
            if p == 0:
                g("v_dot2_f32_bf16 %s, %s, %s, 0" % (v(A + c), m[(p, c)], XP[p]))
            else:
                g("v_dot2c_f32_bf16 %s, %s, %s" % (v(A + c), m[(p, c)], XP[p]))


def reduce_q(A):
    rs_swap(32, [(A + e, A + 4 + e) for e in range(4)])
    rs_swap(16, [(A + e, A + 2 + e) for e in range(2)])
    for ctl in ("row_ror:4", "row_ror:8"):
        for e in range(2):
            dpp("add_f32", v(A + e), v(A + e), v(A + e), ctl)


def slot_base(slot):
    return LAND + 32 * slot


def stream_piece(srd, voff, piece, slot):
    base = slot_base(slot)
    for half in range(2):
        if half == 0:
            g("s_add_u32 %s, %s, 0x%x" % (S_OFF, S_ROT, piece * 8192))
            g("s_and_b32 %s, %s, 0x1ffff" % (S_OFF, S_OFF))
        else:
            g("s_add_u32 %s, %s, 0x1000" % (S_OFF, S_OFF))
        for n in range(4):
            r = base + 16 * half + 4 * n
            g("buffer_load_dwordx4 %s, %s, %s, %s offen offset:%d%s" % (vr(r, 4), voff, srd, S_OFF, n * 1024, NT))


def qproj_loads(W):
    g("v_lshrrev_b32 %s, 2, %s" % (T[0], V_LANE))
    g("v_lshlrev_b32 %s, 13, %s" % (T[0], T[0]))
    g("v_and_b32 %s, 3, %s" % (T[1], V_LANE))
    g("v_lshl_add_u32 %s, %s, 4, %s" % (T[0], T[1], T[0]))
    g("s_and_b32 %s, %s, 3" % (S_T0, S_WR))
    g("s_lshl_b32 %s, %s, 20" % (S_T0, S_T0))
    g("s_lshr_b32 %s, %s, 2" % (S_T1, S_WR))
    g("s_lshl_b32 %s, %s, 7" % (S_T1, S_T1))
    g("s_add_u32 %s, %s, %s" % (S_T0, S_T0, S_T1))
    g("s_lshl_b32 %s, %s, 6" % (S_T1, S_WAVE))
    g("s_add_u32 %s, %s, %s" % (S_T0, S_T0, S_T1))
    g("s_sub_u32 %s, %s, 128" % (S_T0, S_T0))
    for j in range(8):
        g("s_add_u32 %s, %s, 0x%x" % (S_OFF, S_T0, j * 16 * 8192))
        g("buffer_load_dwordx4 %s, %s, %s, %s offen" % (vr(W + 4 * j, 4), T[0], SRD_WQ, S_OFF))


GUS = ["s%d" % i for i in range(28, 36)]


def gu_addr(t, t2):
    g("v_lshrrev_b32 %s, 3, %s" % (t, V_LANE))
    g("s_movk_i32 %s, 3584" % S_T0)
    g("v_mul_lo_u32 %s, %s, %s" % (t, S_T0, t))
    g("v_and_b32 %s, 7, %s" % (t2, V_LANE))
    g("v_lshl_add_u32 %s, %s, 4, %s" % (t, t2, t))


def gu_loads(W, t):
    for j in range(8):
        g("buffer_load_dwordx4 %s, %s, %s, %s offen" % (vr(W + 4 * j, 4), t, SRD_P, GUS[j]))


def dw_loads(W):
    g("s_lshr_b32 %s, %s, 4" % (S_T0, S_DR))
    g("s_lshl_b32 %s, %s, 18" % (S_T0, S_T0))
    g("s_and_b32 %s, %s, 15" % (S_T1, S_DR))
    g("s_lshl_b32 %s, %s, 6" % (S_T1, S_T1))
    g("s_add_u32 %s, %s, %s" % (S_T0, S_T0, S_T1))
    g("s_lshl_b32 %s, %s, 16" % (S_T1, S_WAVE))
    g("s_add_u32 %s, %s, %s" % (S_T0, S_T0, S_T1))
    g("v_and_b32 %s, 1, %s" % (T[1], V_LANE))
    g("v_lshlrev_b32 %s, 15, %s" % (T[1], T[1]))
    g("v_bfe_u32 %s, %s, 1, 3" % (T[2], V_LANE))
    g("v_lshl_add_u32 %s, %s, 10, %s" % (T[1], T[2], T[1]))
    g("v_lshrrev_b32 %s, 4, %s" % (T[2], V_LANE))
    g("v_lshl_add_u32 %s, %s, 4, %s" % (T[1], T[2], T[1]))
    for i in range(4):
        if i:
            g("s_add_u32 %s, %s, 0x2000" % (S_T0, S_T0))
        g("buffer_load_dwordx4 %s, %s, %s, %s offen" % (vr(W + 4 * i, 4), T[1], SRD_WD, S_T0))


def q_base():
    g("s_lshl_b32 %s, %s, 8" % (S_T2, S_WR))
    g("s_lshl_b32 %s, %s, 7" % (S_T3, S_WAVE))
    g("s_add_u32 %s, %s, %s" % (S_T2, S_T2, S_T3))
    g("s_add_u32 %s, %s, 0x%x" % (S_T2, S_T2, O_Q - 256))


def h_base():
    g("s_lshl_b32 %s, %s, 9" % (S_T2, S_HR))
    g("s_lshl_b32 %s, %s, 8" % (S_T3, S_WAVE))
    g("s_add_u32 %s, %s, %s" % (S_T2, S_T2, S_T3))
    g("s_add_u32 %s, %s, 0x%x" % (S_T2, S_T2, O_H))


def q_store_addr(t, t2):
    q_base()
    g("v_and_b32 %s, 3, %s" % (t, V_LANE))
    g("v_lshlrev_b32 %s, 3, %s" % (t, t))
    g("v_lshrrev_b32 %s, 4, %s" % (t2, V_LANE))
    g("v_lshl_add_u32 %s, %s, 5, %s" % (t, t2, t))
    g("v_add_u32 %s, %s, %s" % (t, S_T2, t))


def q_store(A, t, soff):
    for e in range(2):
        g("v_mov_b32_dpp %s, %s quad_perm:[1,1,3,3] row_mask:0xf bank_mask:0xf" % (v(A + 2 + e), v(A + e)))
    exec_rep(0x00050005)
    g("buffer_store_dwordx4 %s, %s, %s, %s offen sc1" % (vr(A, 4), t, SRD_WS, soff))
    exec_all()


def gather_q_addr():
    g("v_and_b32 %s, 3, %s" % (T[0], V_LANE))
    g("v_lshlrev_b32 %s, 11, %s" % (T[0], T[0]))
    g("v_lshrrev_b32 %s, 5, %s" % (T[1], V_LANE))
    g("v_lshl_add_u32 %s, %s, 10, %s" % (T[0], T[1], T[0]))
    g("v_bfe_u32 %s, %s, 4, 1" % (T[1], V_LANE))
    g("v_lshl_add_u32 %s, %s, 7, %s" % (T[0], T[1], T[0]))
    g("v_bfe_u32 %s, %s, 2, 2" % (T[1], V_LANE))
    g("v_lshl_add_u32 %s, %s, 3, %s" % (T[0], T[1], T[0]))
    g("s_lshr_b32 %s, %s, 5" % (S_T0, S_BLK))
    g("s_lshl_b32 %s, %s, 13" % (S_T0, S_T0))
    g("s_add_u32 %s, %s, 0x%x" % (S_T0, S_T0, O_Q))
    g("v_add_u32 %s, %s, %s" % (T[0], S_T0, T[0]))


def gather_q_issue(G, soff):
    for r in range(4):
        for k in range(4):
            g("buffer_load_dwordx2 %s, %s, %s, %s offen offset:%d sc1" % (vr(G + 8 * r + 2 * k, 2), T[0], SRD_WS, soff, 256 * r + 32 * k))


def gather_q_sum(G):
    for e in range(8):
        g("v_add_f32 %s, %s, %s" % (v(G + e), v(G + e), v(G + 8 + e)))
        g("v_add_f32 %s, %s, %s" % (v(G + 16 + e), v(G + 16 + e), v(G + 24 + e)))
    for e in range(8):
        g("v_add_f32 %s, %s, %s" % (v(G + e), v(G + e), v(G + 16 + e)))
    for p in range(4):
        g("v_cvt_pk_bf16_f32 %s, %s, %s" % (v(QOP + p), v(G + 2 * p), v(G + 2 * p + 1)))


def gather_q(soff):
    gather_q_addr()
    poll(lambda: gather_q_issue(Z, soff), [v(Z + i) for i in range(32)], T[1])
    gather_q_sum(Z)


def vop_loc(o):
    if o < 64:
        return ("a", 4 * o)
    if o < 64 + NLDS:
        return ("l", (o - 64) * 1024)
    return ("v", VC + 4 * (o - 64 - NLDS))


def stamp(k):
    if not DEBUG:
        return
    g("s_memrealtime s[100:101]")
    g("s_waitcnt lgkmcnt(0)")
    g("s_mov_b32 s%d, s100" % (70 + k))


def stamp_shift():
    if not DEBUG:
        return
    for k in range(12):
        g("s_mov_b32 s%d, s%d" % (87 + k, 75 + k))
    if CNTDBG:
        g("s_mov_b32 s73, s71")
        g("s_mov_b32 s71, 0")


def stamp_dump():
    if not DEBUG:
        return
    g("s_lshl_b32 s100, s2, 2")
    g("s_add_u32 s100, s100, %s" % S_WAVE)
    g("s_lshl_b32 s100, s100, 8")
    g("s_add_u32 s100, s100, 0x%x" % O_DBG)
    g("s_mov_b64 exec, 1")
    g("v_mov_b32 v255, s100")
    for k in range(29):
        g("v_mov_b32 v254, s%d" % (70 + k))
        g("buffer_store_dword v254, v255, %s, 0 offen offset:%d" % (SRD_WS, 4 * k))
        g("s_waitcnt vmcnt(0)")
    g("s_mov_b64 exec, -1")


g("s_load_dwordx16 s[64:79], s[0:1], 0")
g("s_load_dwordx8 s[80:87], s[0:1], 64")
g("v_and_b32 %s, 63, %s" % (V_LANE, V_TID))
g("v_lshrrev_b32 %s, 6, %s" % (T[0], V_TID))
g("v_readfirstlane_b32 %s, %s" % (S_WAVE, T[0]))
g("s_cmp_ge_u32 s2, 256")
g("s_cbranch_scc1 L_exit")
g("s_waitcnt lgkmcnt(0)")


def mk_srd(srd, plo, nbytes):
    b = int(srd[2:].split(":")[0])
    g("s_mov_b32 s%d, s%d" % (b, plo))
    g("s_and_b32 s%d, s%d, 0xffff" % (b + 1, plo + 1))
    g("s_mov_b32 s%d, 0x%x" % (b + 2, nbytes))
    g("s_mov_b32 s%d, 0x00020000" % (b + 3))


mk_srd(SRD_X, 64, 1024)
mk_srd(SRD_K, 66, 0x8000000)
mk_srd(SRD_V, 68, 0x8000000)
mk_srd(SRD_WQ, 70, 512 * 4096 * 2)
mk_srd(SRD_WO, 72, 4096 * 512 * 2)
mk_srd(SRD_WG, 76, 512 * 1792 * 2)
mk_srd(SRD_WU, 78, 512 * 1792 * 2)
mk_srd(SRD_WD, 80, 1792 * 512 * 2)
mk_srd(SRD_OUT, 82, 1024)
mk_srd(SRD_DBG, 84, 256)
mk_srd(SRD_WS, 86, WS_BYTES)
g("s_mov_b32 %s, 0" % S_IT)
stamp(0)
g("s_mov_b32 %s, 0" % S_WSOFF)
g("s_and_b32 %s, s2, 7" % S_T0)
g("s_lshr_b32 %s, s2, 3" % S_T1)
g("s_lshl_b32 %s, %s, 5" % (S_WR, S_T0))
g("s_add_u32 %s, %s, %s" % (S_WR, S_WR, S_T1))
g("s_mul_i32 %s, %s, 28" % (S_HR, S_T0))
g("s_add_u32 %s, %s, %s" % (S_HR, S_HR, S_T1))
g("s_lshr_b32 %s, %s, 1" % (S_DR, S_HR))
g("s_bitcmp1_b32 %s, 0" % S_HR)
g("s_cselect_b32 %s, 0x100, %s" % (S_DR, S_DR))
g("s_cmp_ge_u32 s2, 224")
g("s_cselect_b32 %s, 0x100, %s" % (S_DR, S_DR))
g("s_mov_b32 %s, 0x%x" % (S_WSNEXT, ITS))
g("s_mov_b32 %s, 400000" % S_TMO)
g("s_mov_b32 %s, 0x05040100" % S_SELLO)
g("s_mov_b32 %s, 0x07060302" % S_SELHI)
g("s_mov_b32 %s, 0xffff0000" % S_HIM)
g("s_mov_b32 %s, %s" % (S_C, f32bits(128 ** -0.5 * 1.4426950408889634)))
g("s_lshl_b32 %s, s2, 2" % S_ROT)
g("s_add_u32 %s, %s, %s" % (S_ROT, S_ROT, S_WAVE))
g("s_and_b32 %s, %s, 15" % (S_ROT, S_ROT))
g("s_lshl_b32 %s, %s, 13" % (S_ROT, S_ROT))
g("s_lshl_b32 %s, %s, 19" % (S_T0, S_BLK))
g("s_lshl_b32 %s, %s, 17" % (S_T1, S_WAVE))
g("s_add_u32 %s, %s, %s" % (S_T0, S_T0, S_T1))
g("v_bfe_u32 %s, %s, 2, 2" % (T[0], V_LANE))
g("v_lshlrev_b32 %s, 8, %s" % (T[0], T[0]))
g("v_lshrrev_b32 %s, 4, %s" % (T[1], V_LANE))
g("v_lshlrev_b32 %s, 6, %s" % (T[1], T[1]))
g("v_and_b32 %s, 3, %s" % (T[2], V_LANE))
g("v_lshlrev_b32 %s, 4, %s" % (T[2], T[2]))
g("v_add3_u32 %s, %s, %s, %s" % (V_KOFF, T[0], T[1], T[2]))
g("v_add_u32 %s, %s, %s" % (V_KOFF, S_T0, V_KOFF))
g("v_lshlrev_b32 %s, 4, %s" % (V_VOFF, V_LANE))
g("v_add_u32 %s, %s, %s" % (V_VOFF, S_T0, V_VOFF))
stream_piece(SRD_V, V_VOFF, 0, 0)
stream_piece(SRD_V, V_VOFF, 1, 1)

g("v_mov_b32 %s, -1" % T[4])
g("v_mov_b32 %s, -1" % T[5])
g("v_lshlrev_b32 %s, 3, %s" % (T[0], V_TID))
g("s_mul_i32 %s, %s, %d" % (S_MLO, S_BLK, PSTR))
g("v_add_u32 %s, %s, %s" % (T[0], S_MLO, T[0]))
g("buffer_store_dwordx2 %s, %s, %s, 0 offen sc1" % (vr(8, 2), T[0], SRD_WS))
g("buffer_store_dwordx2 %s, %s, %s, %s offen sc1" % (vr(8, 2), T[0], SRD_WS, S_WSNEXT))
g("v_lshlrev_b32 %s, 3, %s" % (T[1], V_LANE))
g("s_lshl_b32 %s, %s, 7" % (S_T0, S_WAVE))
g("s_add_u32 %s, %s, %s" % (S_MLO, S_MLO, S_T0))
g("s_add_u32 %s, %s, 2048" % (S_MLO, S_MLO))


def clear_small(nl, sbase_code):
    sbase_code()
    g("v_add_u32 %s, %s, %s" % (T[0], S_T0, T[1]))
    g("s_mov_b64 exec, 0x%x" % ((1 << nl) - 1))
    g("buffer_store_dwordx2 %s, %s, %s, 0 offen sc1" % (vr(8, 2), T[0], SRD_WS))
    g("buffer_store_dwordx2 %s, %s, %s, %s offen sc1" % (vr(8, 2), T[0], SRD_WS, S_WSNEXT))
    exec_all()


def role_base(srole, obase):
    def f():
        g("s_lshl_b32 %s, %s, 7" % (S_T0, srole))
        g("s_add_u32 %s, %s, 0x%x" % (S_T0, S_T0, obase))
    return f


XF = PK
XF2 = VC


def copy_t2():
    g("s_mov_b32 %s, %s" % (S_T0, S_T2))


clear_small(1, lambda: g("s_mov_b32 %s, %s" % (S_T0, S_MLO)))
g("s_cmp_lt_u32 %s, 2" % S_WAVE)
g("s_cbranch_scc1 L_clear0")
q_base()
clear_small(16, copy_t2)
g("s_and_b32 %s, %s, 3" % (S_T0, S_WR))
g("s_lshl_b32 %s, %s, 8" % (S_T0, S_T0))
g("v_lshrrev_b32 %s, 2, %s" % (T[3], V_LANE))
g("v_lshlrev_b32 %s, 1, %s" % (T[3], T[3]))
for j in range(8):
    g("buffer_load_ushort %s, %s, %s, %s offen offset:%d" % (v(XF2 + j), T[3], SRD_X, S_T0, 32 * j))
qproj_loads(ACC)
g("s_branch L_noclear")
g.label("L_clear0")
g("s_cmp_ge_u32 s2, 224")
g("s_cbranch_scc1 L_clear1")
h_base()
clear_small(32, copy_t2)
g.label("L_clear1")
g("s_cmp_lg_u32 %s, 0" % S_WAVE)
g("s_cbranch_scc1 L_noclear")
clear_small(16, role_base(S_WR, O_Y))
g("s_cmp_ge_u32 %s, 112" % S_DR)
g("s_cbranch_scc1 L_noclear")
clear_small(16, role_base(S_DR, O_DN))
g.label("L_noclear")

CNT = QOP
QG = ACC
ops = []


def note(tag, n):
    ops.extend([tag] * n)


def wait_for(tag):
    last = max(i for i, t in enumerate(ops) if t == tag)
    g("s_waitcnt vmcnt(%d)" % (len(ops) - 1 - last))


g("v_lshlrev_b32 %s, 1, %s" % (T[3], V_LANE))
for i in range(8):
    g("buffer_load_ushort %s, %s, %s, 0 offen offset:%d" % (v(XF + i), T[3], SRD_X, 128 * i))
note("p0", 8)
PB = int(SRD_P[2:].split(":")[0])
GB, UB = [int(x[2:].split(":")[0]) for x in (SRD_WG, SRD_WU)]
g("s_cmp_eq_u32 %s, 0" % S_WAVE)
g("s_cselect_b32 s%d, s%d, s%d" % (PB, GB, UB))
g("s_cselect_b32 s%d, s%d, s%d" % (PB + 1, GB + 1, UB + 1))
g("s_cmp_lt_u32 s2, 224")
g("s_cselect_b32 s%d, s%d, 0" % (PB + 2, GB + 2))
g("s_and_b32 %s, %s, 7" % (S_T0, S_HR))
g("s_mul_i32 %s, %s, %d" % (S_T0, S_T0, 64 * 3584))
g("s_lshr_b32 %s, %s, 3" % (S_T1, S_HR))
g("s_lshl_b32 %s, %s, 7" % (S_T1, S_T1))
g("s_add_u32 %s, %s, %s" % (S_T0, S_T0, S_T1))
for j in range(8):
    g("s_add_u32 %s, %s, %d" % (GUS[j], S_T0, j * 8 * 3584))
note("p1", 8)
vnext = 2
stamp(1)

g("v_lshlrev_b32 %s, 4, %s" % (T[5], V_LANE))
g("s_mul_i32 %s, %s, %d" % (S_T0, S_WAVE, NLDS * 1024))
g("s_add_u32 %s, %s, %d" % (S_T0, S_T0, L_V))
g("v_add_u32 %s, %s, %s" % (T[5], S_T0, T[5]))
V_LDSV = T[5]
U_Q, U_ARR = 2, 2
for u in range(16):
    slot = u % 2
    R = slot_base(slot)
    wait_for("p%d" % u)
    for s in range(8):
        w_, b = s // 2, s % 2
        kind, loc = vop_loc(8 * u + s)
        sel = S_SELHI if b else S_SELLO
        tmpb = D + 4 * (s % 4)
        for p in range(4):
            dst = v(loc + p) if kind == "v" else v(tmpb + p)
            g("v_perm_b32 %s, %s, %s, %s" % (dst, v(R + 4 * (2 * p + 1) + w_), v(R + 4 * (2 * p) + w_), sel))
        if kind == "a":
            for p in range(4):
                g("v_accvgpr_write_b32 a%d, %s" % (loc + p, v(tmpb + p)))
        elif kind == "l":
            g("ds_write_b128 %s, %s offset:%d" % (V_LDSV, vr(tmpb, 4), loc))
            if s % 4 == 3:
                g("s_waitcnt lgkmcnt(0)")
    if vnext < 16:
        stream_piece(SRD_V, V_VOFF, vnext, slot)
    else:
        stream_piece(SRD_K, V_KOFF, vnext - 16, slot)
    note("p%d" % vnext, 8)
    vnext += 1
    if u == U_Q:
        g.comment("x, wq have landed (older than the piece just waited for): LN, q projection, publish q1 slice")
        for i in range(8):
            g("v_lshlrev_b32 %s, 16, %s" % (v(XF + i), v(XF + i)))
        g("s_cmp_lg_u32 %s, 0" % S_WAVE)
        g("s_cbranch_scc1 L_nox")
        g("v_lshlrev_b32 %s, 2, %s" % (T[2], V_LANE))
        for i in range(8):
            g("ds_write_b32 %s, %s offset:%d" % (T[2], v(XF + i), L_X + 256 * i))
        g("s_waitcnt lgkmcnt(0)")
        g.label("L_nox")
        g("s_cmp_lt_u32 %s, 2" % S_WAVE)
        g("s_cbranch_scc1 L_noq1")
        for i in range(8):
            g("v_lshlrev_b32 %s, 16, %s" % (v(XF2 + i), v(XF2 + i)))
        mq = pair_rows(ACC, 8, spare=v(VC + 8))
        layernorm(XF, XF2, D, T[0], T[1], T[2], D + 4)
        q_store_addr(T[3], T[4])
        dots(Z, mq, [v(D + k) for k in range(4)], 4)
        reduce_q(Z)
        q_store(Z, T[3], "0")
        g.label("L_noq1")
    if u == U_ARR:
        g.comment("the clears are complete (older than the piece just waited for): arrive")
        g("s_barrier")
        g("s_cmp_lg_u32 %s, 0" % S_WAVE)
        g("s_cbranch_scc1 L_noarr")
        g("v_mov_b32 %s, 0" % T[0])
        g("v_mov_b32 %s, 1" % T[1])
        g("s_mov_b64 exec, 1")
        g("buffer_atomic_add %s, %s, %s, 0 offen sc1" % (T[1], T[0], SRD_DBG))
        exec_all()
        g.label("L_noarr")
    if u == 13:
        g("v_mov_b32 %s, 0" % T[0])
        g("buffer_load_dword %s, %s, %s, 0 offen sc1" % (v(CNT), T[0], SRD_DBG))
        note("cnt", 1)
    if u == 14:
        stamp(2)
        lp, done = newlabel("cnt"), newlabel("cdone")
        wait_for("cnt")
        g("v_mov_b32 %s, 0" % T[0])
        g.label(lp)
        g("v_readfirstlane_b32 %s, %s" % (S_T0, v(CNT)))
        g("s_cmp_ge_u32 %s, 256" % S_T0)
        g("s_cbranch_scc1 %s" % done)
        g("buffer_load_dword %s, %s, %s, 0 offen sc1" % (v(CNT), T[0], SRD_DBG))
        g("s_waitcnt vmcnt(0)")
        timeout_loop(lp)
        g.label(done)
        gather_q_addr()
        gather_q_issue(QG, "0")
        note("qg", 16)
        stamp(3)
wait_for("qg")
umax(T[1], [v(QG + i) for i in range(32)])
g("v_cmp_eq_u32 vcc, -1, %s" % T[1])
gather_q_sum(QG)
g("s_cbranch_vccz L_q1ok")
gather_q("0")
g.label("L_q1ok")
g("s_waitcnt lgkmcnt(0)")

stamp(4)
if CNTDBG:
    g("s_mov_b32 s71, 0")
    g("s_mov_b32 s72, 0")
WW = LAND
DW = LAND + 16
GW = LAND + 32
GO = ACC


def wo_loads():
    g("s_lshr_b32 %s, %s, 4" % (S_T0, S_WR))
    g("s_lshl_b32 %s, %s, 18" % (S_T0, S_T0))
    g("s_and_b32 %s, %s, 15" % (S_T1, S_WR))
    g("s_lshl_b32 %s, %s, 6" % (S_T1, S_T1))
    g("s_add_u32 %s, %s, %s" % (S_T0, S_T0, S_T1))
    g("s_lshl_b32 %s, %s, 16" % (S_T1, S_WAVE))
    g("s_add_u32 %s, %s, %s" % (S_T0, S_T0, S_T1))
    g("v_and_b32 %s, 15, %s" % (T[1], V_LANE))
    g("v_lshlrev_b32 %s, 12, %s" % (T[1], T[1]))
    g("v_lshrrev_b32 %s, 4, %s" % (T[2], V_LANE))
    g("v_lshl_add_u32 %s, %s, 4, %s" % (T[1], T[2], T[1]))
    for i in range(4):
        g("buffer_load_dwordx4 %s, %s, %s, %s offen offset:%d" % (vr(WW + 4 * i, 4), T[1], SRD_WO, S_T0, i * 1024))


CHUNKS = [[0, 1, 2, 3], [4, 5, 6, 7], [8, 9, 10, 11], [12, 13, 14], [15]]


def z_fill(bank):
    g("v_mov_b32 %s, 0xff800000" % T[1])
    for a in range(8):
        g("v_mov_b32_dpp %s, %s quad_perm:[0,1,2,3] row_mask:0xf bank_mask:0x%x" % (v(Z + a), T[1], bank))


def l_reduce():
    dpp("add_f32", V_L, V_L, V_L, "row_ror:4")
    dpp("add_f32", V_L, V_L, V_L, "row_ror:8")
    for sw in ("16", "32"):
        g("v_mov_b32 %s, %s" % (T[1], V_L))
        g("v_permlane%s_swap_b32 %s, %s" % (sw, V_L, T[1]))
        g("v_add_f32 %s, %s, %s" % (V_L, V_L, T[1]))


def rescale(s):
    g("v_pk_mul_f32 %s, %s, %s" % (vr(ACC + 4 * s, 2), vr(ACC + 4 * s, 2), P_R0))
    g("v_pk_mul_f32 %s, %s, %s" % (vr(ACC + 4 * s + 2, 2), vr(ACC + 4 * s + 2, 2), P_R2))


def softmax_pv(ch):
    pieces = CHUNKS[ch]
    last = ch == len(CHUNKS) - 1
    g.comment("softmax for chunk %d" % ch)
    g("v_max3_f32 %s, %s, %s, %s" % (T[0], v(Z), v(Z + 1), v(Z + 2)))
    g("v_max3_f32 %s, %s, %s, %s" % (T[1], v(Z + 3), v(Z + 4), v(Z + 5)))
    g("v_max3_f32 %s, %s, %s, %s" % (T[0], T[0], v(Z + 6), v(Z + 7)))
    if ch == 0:
        g("v_max_f32 %s, %s, %s" % (T[0], T[0], T[1]))
    else:
        g("v_max3_f32 %s, %s, %s, %s" % (T[0], T[0], T[1], V_M))
    dpp("max_f32", T[0], T[0], T[0], "row_ror:4")
    dpp("max_f32", T[0], T[0], T[0], "row_ror:8")
    for sw in ("16", "32"):
        g("v_mov_b32 %s, %s" % (T[1], T[0]))
        g("v_permlane%s_swap_b32 %s, %s" % (sw, T[0], T[1]))
        g("v_max_f32 %s, %s, %s" % (T[0], T[0], T[1]))
    AL = v(PKS + 3)
    if ch:
        g("v_sub_f32 %s, %s, %s" % (AL, V_M, T[0]))
        g("v_mul_f32 %s, %s, %s" % (AL, S_C, AL))
        g("v_exp_f32 %s, %s" % (AL, AL))
    g("v_mul_f32 %s, %s, %s" % (T[1], S_C, T[0]))
    g("v_mov_b32 %s, %s" % (V_M, T[0]))
    for a in range(8):
        g("v_fma_f32 %s, %s, %s, -%s" % (v(Z + a), v(Z + a), S_C, T[1]))
    if ch:
        for r, sr in enumerate((S_R0, S_R1, S_R2, S_R3)):
            g("v_readlane_b32 %s, %s, %d" % (sr, AL, r))
    for a in range(8):
        g("v_exp_f32 %s, %s" % (v(Z + a), v(Z + a)))
    if last:
        rescale(0)
        rescale(1)
    for p in range(4):
        g("v_cvt_pk_bf16_f32 %s, %s, %s" % (v(PK + p), v(Z + 2 * p), v(Z + 2 * p + 1)))
    if last:
        g.comment("PV of the last piece; the other accumulators are rescaled in its shadow")
        for s in range(8):
            kind, loc = vop_loc(8 * pieces[0] + s)
            assert kind == "v"
            g("v_mfma_f32_16x16x32_bf16 %s, %s, %s, %s" % (vr(ACC + 4 * s, 4), vr(PK, 4), vr(loc, 4), vr(ACC + 4 * s, 4)))
            if s + 2 < 8:
                rescale(s + 2)
        pk_add(Z, Z, Z + 2)
        pk_add(Z + 4, Z + 4, Z + 6)
        pk_add(Z, Z, Z + 4)
        g("v_add_f32 %s, %s, %s" % (T[0], v(Z), v(Z + 1)))
        for sw in ("16", "32"):
            g("v_mov_b32 %s, %s" % (T[1], T[0]))
            g("v_permlane%s_swap_b32 %s, %s" % (sw, T[0], T[1]))
            g("v_add_f32 %s, %s, %s" % (T[0], T[0], T[1]))
        g("v_fma_f32 %s, %s, %s, %s" % (V_L, V_L, AL, T[0]))
        return
    if ch:
        g("v_mul_f32 %s, %s, %s" % (V_L, V_L, AL))
        for s in range(8):
            rescale(s)
    for a in range(8):
        g("v_add_f32 %s, %s, %s" % (V_L, V_L, v(Z + a)))
    g.comment("PV for chunk %d" % ch)
    pvops = [(pn, s) for pn in range(len(pieces)) for s in range(8)]
    ldsq = [k for k, (pn, s) in enumerate(pvops) if vop_loc(8 * pieces[pn] + s)[0] == "l"]
    issued = 0

    def issue_lds(k):
        slotr = D + 4 * (ldsq.index(k) % 4)
        g("ds_read_b128 %s, %s offset:%d" % (vr(slotr, 4), V_LDSV, vop_loc(8 * pieces[k // 8] + k % 8)[1]))
    for k in ldsq[:4]:
        issue_lds(k)
        issued += 1
    for k, (pn, s) in enumerate(pvops):
        if s == 0 and pn > 0:
            for p in range(4):
                g("v_mov_b32_dpp %s, %s row_shl:%d row_mask:0xf bank_mask:0xf" % (v(PKS + p), v(PK + p), 4 * pn))
        A = vr(PK if pn == 0 else PKS, 4)
        kind, loc = vop_loc(8 * pieces[pn] + s)
        if kind == "a":
            B = "a[%d:%d]" % (loc, loc + 3)
        elif kind == "v":
            B = vr(loc, 4)
        else:
            idx = ldsq.index(k)
            B = vr(D + 4 * (idx % 4), 4)
            g("s_waitcnt lgkmcnt(%d)" % (issued - idx - 1))
        g("v_mfma_f32_16x16x32_bf16 %s, %s, %s, %s" % (vr(ACC + 4 * s, 4), A, B, vr(ACC + 4 * s, 4)))
        if kind == "l" and issued < len(ldsq):
            issue_lds(ldsq[issued])
            issued += 1


def qk_mfma_(R, n):
    g("v_mfma_f32_16x16x32_bf16 %s, %s, %s, 0" % (vr(D + 4 * (n % 4), 4), vr(R + 4 * n, 4), vr(QOP, 4)))


def qk_red_(pn, n):
    db = D + 4 * (n % 4)
    others = [t for t in range(4) if t != pn]
    first = True
    for k, t in enumerate(others):
        rot = (16 - 4 * (t - pn)) % 16
        src1 = v(db + pn) if first else T[0]
        last = k == 2
        dst = v(Z + n) if last else T[0]
        dpp("add_f32", dst, v(db + t), src1, "row_ror:%d" % rot, bank=(1 << pn) if last else 0xF)
        first = False


A_W, A_MW, A_R, A_S, A_GU = T[2], T[3], T[4], V_SP, v(PKS)


def attn_pass():
    g.comment("---- attention pass: stream K, PV from the on-chip V ----")
    for s in range(8):
        for r in range(4):
            g("v_mov_b32 %s, 0" % v(ACC + 4 * s + r))
    g("v_mov_b32 %s, 0" % V_L)
    for ch, pieces in enumerate(CHUNKS):
        for pn, i in enumerate(pieces):
            slot = i % 2
            R = LAND + 32 * slot
            if i == 15:
                g("s_cmp_lt_u32 %s, 2" % S_WAVE)
                g("s_cbranch_scc1 L_w15")
                g("s_waitcnt vmcnt(4)")
                g.label("L_w15")
            g("s_waitcnt vmcnt(8)")
            for n in range(4):
                qk_mfma_(R, n)
            for n in range(4):
                qk_red_(pn, n)
                qk_mfma_(R, n + 4)
            if i + 2 < 16:
                stream_piece(SRD_K, V_KOFF, i + 2, slot)
            elif i == 14:
                wo_loads()
                g("s_cmp_ge_u32 %s, 2" % S_WAVE)
                g("s_cbranch_scc1 L_nodw")
                dw_loads(DW)
                g.label("L_nodw")
            else:
                g("s_cmp_ge_u32 %s, 2" % S_WAVE)
                g("s_cbranch_scc1 L_nogl")
                gu_loads(GW, A_GU)
                g.label("L_nogl")
            for n in range(4, 8):
                qk_red_(pn, n)
        if ch == 4:
            stamp(5)
        softmax_pv(ch)
        if ch == 2:
            z_fill(0x8)
        if ch == 3:
            z_fill(0xe)
            l_reduce()
            g("s_lshl_b32 %s, %s, 11" % (S_T0, S_WAVE))
            g("v_lshlrev_b32 %s, 4, %s" % (A_W, V_LANE))
            g("v_add_u32 %s, %s, %s" % (A_W, S_T0, A_W))
            g("s_lshl_b32 %s, %s, 3" % (S_T0, S_WAVE))
            g("v_lshlrev_b32 %s, 5, %s" % (A_MW, V_LANE))
            g("v_add_u32 %s, %s, %s" % (A_MW, S_T0, A_MW))
            g("v_and_b32 %s, 3, %s" % (A_R, V_LANE))
            g("v_lshlrev_b32 %s, 9, %s" % (A_R, A_R))
            g("v_lshrrev_b32 %s, 2, %s" % (T[1], V_LANE))
            g("v_lshl_add_u32 %s, %s, 4, %s" % (A_R, T[1], A_R))
            g("s_lshl_b32 %s, %s, 2" % (S_T0, S_WAVE))
            g("v_add_u32 %s, %s, %s" % (A_R, S_T0, A_R))
            g("s_mul_i32 %s, %s, %d" % (S_T0, S_BLK, PSTR))
            g("v_lshlrev_b32 %s, 3, %s" % (A_S, V_TID))
            g("v_add_u32 %s, %s, %s" % (A_S, S_T0, A_S))
            gu_addr(A_GU, T[1])
            g("s_add_u32 %s, %s, %s" % (S_GUB, S_MLO, S_WSOFF))
            g("s_lshl_b32 %s, %s, 5" % (S_T3, S_WAVE))


g.label("L_main")
attn_pass()
stamp(6)
g("s_mov_b64 exec, 0xffff")
for s in range(8):
    g("ds_write_b128 %s, %s offset:%d" % (A_W, vr(ACC + 4 * s, 4), L_A + 256 * s))
g("s_mov_b64 exec, 0xf")
g("ds_write_b64 %s, %s offset:%d" % (A_MW, vr(10, 2), L_ML))
exec_all()
g("v_mov_b32 %s, %s" % (A_MW, S_T3))
g("s_waitcnt lgkmcnt(0)")
g("s_barrier")
for k in range(2):
    g("ds_read_b128 %s, %s offset:%d" % (vr(Z + 4 * k, 4), A_MW, L_ML + 16 * k))
for vv in range(4):
    g("ds_read2st64_b32 %s, %s offset0:%d offset1:%d" % (vr(D + 2 * vv, 2), A_R, L_A // 256 + 8 * vv, L_A // 256 + 8 * vv + 1))
g("s_waitcnt lgkmcnt(4)")
g("v_max3_f32 %s, %s, %s, %s" % (T[0], v(Z), v(Z + 2), v(Z + 4)))
g("v_max_f32 %s, %s, %s" % (T[0], T[0], v(Z + 6)))
g("v_mul_f32 %s, %s, %s" % (T[1], S_C, T[0]))
for vv in range(4):
    g("v_fma_f32 %s, %s, %s, -%s" % (v(Z + 2 * vv), v(Z + 2 * vv), S_C, T[1]))
for vv in range(4):
    g("v_exp_f32 %s, %s" % (v(Z + 2 * vv), v(Z + 2 * vv)))
g("s_waitcnt lgkmcnt(0)")
pk_mul_b(PK, D, Z)
for vv in range(1, 4):
    pk_fma_b(PK, D + 2 * vv, Z + 2 * vv, PK)
g("v_mul_f32 %s, %s, %s" % (T[1], v(Z), v(Z + 1)))
g("v_fmac_f32 %s, %s, %s" % (T[1], v(Z + 2), v(Z + 3)))
for e in range(2):
    g("v_mov_b32_dpp %s, %s quad_perm:[1,1,3,3] row_mask:0xf bank_mask:0xf" % (v(PK + 2 + e), v(PK + e)))
exec_rep(0x55555555)
g("buffer_store_dwordx4 %s, %s, %s, %s offen sc1" % (vr(PK, 4), A_S, SRD_WS, S_WSOFF))
for vv in range(2, 4):
    g("v_fmac_f32 %s, %s, %s" % (T[1], v(Z + 2 * vv), v(Z + 2 * vv + 1)))
g("s_mov_b64 exec, 1")
g("buffer_store_dwordx2 %s, off, %s, %s sc1" % (vr(4, 2), SRD_WS, S_GUB))
exec_all()

stamp(7)
GM = D
WB = D + 2
A_YW, A_YR, A_YS = v(PKS), v(PKS + 1), v(PKS + 2)
g("s_lshr_b32 %s, %s, 5" % (S_T0, S_WR))
g("s_mul_i32 %s, %s, %d" % (S_T0, S_T0, 32 * PSTR))
g("s_bfe_u32 %s, %s, 0x10004" % (S_T1, S_WR))
g("s_lshl_b32 %s, %s, 2" % (S_T1, S_T1))
g("s_add_u32 %s, %s, %s" % (S_T1, S_T1, S_WAVE))
g("s_lshl_b32 %s, %s, 8" % (S_T2, S_T1))
g("s_add_u32 %s, %s, %s" % (S_T2, S_T2, S_T0))
g("s_lshr_b32 %s, %s, 1" % (S_T1, S_T1))
g("s_lshl_b32 %s, %s, 7" % (S_T1, S_T1))
g("s_add_u32 %s, %s, %s" % (S_T1, S_T1, S_T0))
g("s_add_u32 %s, %s, 2048" % (S_T1, S_T1))
g("v_lshrrev_b32 %s, 4, %s" % (T[2], V_LANE))
g("v_mul_u32_u24 %s, %d, %s" % (T[2], PSTR, T[2]))
g("v_and_b32 %s, 15, %s" % (T[3], V_LANE))
g("v_lshl_add_u32 %s, %s, 4, %s" % (T[0], T[3], T[2]))
g("v_add_u32 %s, %s, %s" % (T[0], S_T2, T[0]))
g("v_and_b32 %s, 7, %s" % (T[3], V_LANE))
g("v_mul_u32_u24 %s, %d, %s" % (T[3], 4 * PSTR, T[3]))
g("v_add3_u32 %s, %s, %s, %s" % (T[1], S_T1, T[2], T[3]))


def e1_load(i):
    g("s_add_u32 %s, %s, 0x%x" % (S_OFF, S_WSOFF, i * 4 * PSTR))
    g("buffer_load_dwordx4 %s, %s, %s, %s offen sc1" % (vr(GO + 4 * i, 4), T[0], SRD_WS, S_OFF))


def e1_ml():
    g("buffer_load_dwordx2 %s, %s, %s, %s offen sc1" % (vr(GM, 2), T[1], SRD_WS, S_WSOFF))


def e1_first():
    e1_ml()
    for i in range(8):
        e1_load(i)


mw = pair_map(WW, 4, spare=V_SP)
mg = pair_map(GW, 8, spare=v(QOP))


def e1_shadow():
    g("s_lshl_b32 %s, %s, 7" % (S_T0, S_WAVE))
    g("v_lshlrev_b32 %s, 1, %s" % (A_YW, V_LANE))
    g("v_add_u32 %s, %s, %s" % (A_YW, S_T0, A_YW))
    g("v_lshlrev_b32 %s, 4, %s" % (A_YR, V_LANE))
    g("s_lshl_b32 %s, %s, 7" % (S_T0, S_WR))
    g("s_add_u32 %s, %s, 0x%x" % (S_T0, S_T0, O_Y))
    g("v_add_u32 %s, %s, %s" % (A_YS, S_T0, A_YR))
    g("s_waitcnt vmcnt(11)")
    pair_rows(WW, 4, spare=V_SP)
    g("s_cmp_ge_u32 %s, 2" % S_WAVE)
    g("s_cbranch_scc1 L_nogp")
    pair_rows(GW, 8, spare=v(QOP))
    g.label("L_nogp")


def e1_compute(retry):
    M, X, LW, RC = T[2], T[3], T[4], v(Z)
    dpp("max_f32", M, v(GM), v(GM), "quad_perm:[1,0,3,2]")
    dpp("max_f32", M, M, M, "quad_perm:[2,3,0,1]")
    dpp("max_f32", M, M, M, "row_half_mirror")
    for sw in ("16", "32"):
        g("v_mov_b32 %s, %s" % (X, M))
        g("v_permlane%s_swap_b32 %s, %s" % (sw, M, X))
        g("v_max_f32 %s, %s, %s" % (M, M, X))
    g("v_mul_f32 %s, %s, %s" % (M, S_C, M))
    g("v_fma_f32 %s, %s, %s, -%s" % (M, v(GM), S_C, M))
    g("v_exp_f32 %s, %s" % (M, M))
    g("v_mul_f32 %s, %s, %s" % (LW, M, v(GM + 1)))
    lred = [lambda: dpp("add_f32", LW, LW, LW, "quad_perm:[1,0,3,2]"),
            lambda: dpp("add_f32", LW, LW, LW, "quad_perm:[2,3,0,1]"),
            lambda: dpp("add_f32", LW, LW, LW, "row_half_mirror")]
    for sw in ("16", "32"):
        lred += [lambda: g("v_mov_b32 %s, %s" % (X, LW)),
                 lambda sw=sw: g("v_permlane%s_swap_b32 %s, %s" % (sw, LW, X)),
                 lambda: g("v_add_f32 %s, %s, %s" % (LW, LW, X))]
    lred += [lambda: g("v_rcp_f32 %s, %s" % (RC, LW)),
             lambda: g("v_fma_f32 %s, -%s, %s, 1.0" % (LW, LW, RC)),
             lambda: g("v_fma_f32 %s, %s, %s, %s" % (RC, LW, RC, RC))]
    for i in range(8):
        g("v_mov_b32_dpp %s, %s row_newbcast:%d row_mask:0xf bank_mask:0xf" % (v(WB + i), M, i))
        if i % 2:
            lred.pop(0)()
    for i in range(8):
        if i == 0:
            pk_mul_b(PK, GO, WB)
            pk_mul_b(PK + 2, GO + 2, WB)
        else:
            pk_fma_b(PK, GO + 4 * i, WB + i, PK)
            pk_fma_b(PK + 2, GO + 4 * i + 2, WB + i, PK + 2)
        lred.pop(0)()
    assert not lred
    rs_swap(32, [(PK, PK + 2), (PK + 1, PK + 3)])
    rs_swap(16, [(PK, PK + 1)])
    g("v_mul_f32 %s, %s, %s" % (T[2], v(PK), RC))
    g("v_mul_f32 %s, %s, %s" % (T[3], v(PK), RC))
    if retry:
        g("v_cmp_u_f32 vcc, %s, %s" % (T[2], T[2]))
    g("v_permlane16_swap_b32 %s, %s" % (T[2], T[3]))
    if retry:
        g("s_cbranch_vccnz %s" % retry)


def e1_reissue():
    umax(T[2], [v(GM), v(GM + 1)])
    g("v_cmp_eq_u32 %s, -1, %s" % (P_A, T[2]))
    g("s_mov_b64 exec, %s" % P_A)
    e1_ml()
    exec_all()
    for i in range(8):
        umax(T[2], [v(GO + 4 * i + e) for e in range(4)])
        g("v_cmp_eq_u32 vcc, -1, %s" % T[2])
        g("s_or_b64 %s, %s, vcc" % (P_A, P_A))
        g("s_mov_b64 exec, vcc")
        e1_load(i)
        exec_all()


def row_reduce(AD):
    for e in range(4):
        dpp("add_f32", v(AD + e), v(AD + e), v(AD + e), "row_ror:8", bank=0x3)
    for e in range(4):
        dpp("add_f32", v(AD + e), v(AD + 4 + e), v(AD + 4 + e), "row_ror:8", bank=0xc)
    for e in range(2):
        dpp("add_f32", v(AD + e), v(AD + e), v(AD + e), "row_half_mirror", bank=0x5)
    for e in range(2):
        dpp("add_f32", v(AD + e), v(AD + 2 + e), v(AD + 2 + e), "row_half_mirror", bank=0xa)
    for ctl in ("quad_perm:[1,0,3,2]", "quad_perm:[2,3,0,1]"):
        for e in range(2):
            dpp("add_f32", v(AD + e), v(AD + e), v(AD + e), ctl)


spec_poll(e1_first, e1_shadow, e1_compute, e1_reissue, cnt="s71")
stamp(8)
g("v_cvt_pk_bf16_f32 %s, %s, %s" % (T[2], T[2], T[3]))
g("s_cmp_lt_u32 %s, 2" % S_WAVE)
g("v_mov_b32 %s, %s" % (T[3], T[2]))
g("v_permlane32_swap_b32 %s, %s" % (T[2], T[3]))
g("s_cbranch_scc1 L_nok1")
g("s_cmp_lg_u32 %s, 0" % S_IT)
g("s_cbranch_scc1 L_nok1")
stream_piece(SRD_K, V_KOFF, 1, 1)
g.label("L_nok1")
dots(Z, mw, [T[2], T[3]], 2)
row_reduce(Z)
exec_rep(0x11111111)
g("ds_write_b64 %s, %s offset:%d" % (A_YW, vr(Z, 2), EX_Y))
exec_all()
g("s_waitcnt lgkmcnt(0)")
g("s_barrier")


def hand_out(ex, a_r, a_s, A):
    skip = newlabel("nopub")
    g("s_cmp_lg_u32 %s, 0" % S_WAVE)
    g("s_cbranch_scc1 %s" % skip)
    g("s_mov_b64 exec, 0xff")
    for k in range(4):
        g("ds_read_b128 %s, %s offset:%d" % (vr(A + 4 * k, 4), a_r, ex + 128 * k))
    g("s_waitcnt lgkmcnt(2)")
    pk_add(A, A, A + 4)
    pk_add(A + 2, A + 2, A + 6)
    g("s_waitcnt lgkmcnt(0)")
    pk_add(A + 8, A + 8, A + 12)
    pk_add(A + 10, A + 10, A + 14)
    pk_add(A, A, A + 8)
    pk_add(A + 2, A + 2, A + 10)
    g("buffer_store_dwordx4 %s, %s, %s, %s offen sc1" % (vr(A, 4), a_s, SRD_WS, S_WSOFF))
    exec_all()
    g.label(skip)


hand_out(EX_Y, A_YR, A_YS, D)
stamp(9)


def x_addrs(a_all, a_rows, lb, srow):
    g("v_lshlrev_b32 %s, 2, %s" % (a_all, V_LANE))
    g("v_lshrrev_b32 %s, %d, %s" % (a_rows, lb, V_LANE))
    g("v_add_u32 %s, %s, %s" % (a_rows, srow, a_rows))
    g("v_lshlrev_b32 %s, 2, %s" % (a_rows, a_rows))
    g("v_add_u32 %s, 0x%x, %s" % (a_rows, L_X, a_rows))


def x_reads(XS, XB, a_all, a_rows, lb):
    step = 64 >> lb
    for k in range(4):
        g("ds_read2st64_b32 %s, %s offset0:%d offset1:%d" % (vr(XS + 2 * k, 2), a_all, L_X // 256 + 2 * k, L_X // 256 + 2 * k + 1))
    for k in range(4):
        g("ds_read2_b32 %s, %s offset0:%d offset1:%d" % (vr(XB + 2 * k, 2), a_rows, 2 * k * step, (2 * k + 1) * step))
    g("s_waitcnt lgkmcnt(4)")


def residual_update4(dsts, obase, XQ, tail="lds", shadow=None):
    g("s_sub_u32 %s, %s, 2" % (S_T1, S_WAVE))
    g("s_lshl_b32 %s, %s, 10" % (S_T0, S_T1))
    g("v_lshlrev_b32 %s, 4, %s" % (T[0], V_LANE))
    g("v_add_u32 %s, %s, %s" % (T[0], S_T0, T[0]))
    g("ds_read_b128 %s, %s offset:%d" % (vr(XQ, 4), T[0], L_X))
    g("s_add_u32 %s, %s, 0x%x" % (S_T0, S_T0, obase))
    g("v_lshlrev_b32 %s, 4, %s" % (T[1], V_LANE))
    g("v_add_u32 %s, %s, %s" % (T[1], S_T0, T[1]))
    lp, lc, done = newlabel("poll"), newlabel("pchk"), newlabel("pdone")

    def issue():
        for i, d in enumerate(dsts):
            if i % 2 == 0:
                g("s_add_u32 %s, %s, 0x%x" % (S_OFF, S_WSOFF, i * 2048))
            g("buffer_load_dwordx4 %s, %s, %s, %s offen offset:%d sc1" % (vr(d, 4), T[1], SRD_WS, S_OFF, (i % 2) * 2048))
    if shadow:
        issue()
        shadow()
        g("s_branch %s" % lc)
    g.label(lp)
    issue()
    g.label(lc)
    g("s_waitcnt vmcnt(0) lgkmcnt(0)")
    cur = list(dsts)
    while len(cur) > 1:
        nxt = []
        for i in range(0, len(cur), 2):
            if i + 1 < len(cur):
                pk_add(cur[i], cur[i], cur[i + 1])
                pk_add(cur[i] + 2, cur[i] + 2, cur[i + 1] + 2)
            nxt.append(cur[i])
        cur = nxt
    S = cur[0]
    g("v_cmp_u_f32 vcc, %s, %s" % (v(S), v(S + 1)))
    g("v_cmp_u_f32 %s, %s, %s" % (P_A, v(S + 2), v(S + 3)))
    g("v_cvt_pk_bf16_f32 %s, %s, %s" % (T[2], v(S), v(S + 1)))
    g("v_cvt_pk_bf16_f32 %s, %s, %s" % (T[3], v(S + 2), v(S + 3)))
    g("s_or_b64 vcc, vcc, %s" % P_A)
    g("s_cbranch_scc0 %s" % done)
    g("s_mov_b64 exec, vcc")
    timeout_loop(lp)
    g.label(done)
    exec_all()
    unpack(v(S), v(S + 1), T[2])
    unpack(v(S + 2), v(S + 3), T[3])
    pk_add(XQ, XQ, S)
    pk_add(XQ + 2, XQ + 2, S + 2)
    g("v_cvt_pk_bf16_f32 %s, %s, %s" % (T[2], v(XQ), v(XQ + 1)))
    g("v_cvt_pk_bf16_f32 %s, %s, %s" % (T[3], v(XQ + 2), v(XQ + 3)))
    if tail == "out":
        g("v_lshrrev_b32 %s, 1, %s" % (T[0], T[0]))
        g("buffer_store_dwordx2 %s, %s, %s, 0 offen" % (vr(6, 2), T[0], SRD_OUT))
        g("s_waitcnt vmcnt(0)")
        return
    unpack(v(XQ), v(XQ + 1), T[2])
    unpack(v(XQ + 2), v(XQ + 3), T[3])
    g("ds_write_b128 %s, %s offset:%d" % (T[0], vr(XQ, 4), L_X))
    g("s_waitcnt lgkmcnt(0)")


XS, XB = D, D + 8
DWP = Z
g("s_cmp_lt_u32 %s, 2" % S_WAVE)
g("s_cbranch_scc1 L_e2a")
residual_update4([ACC + 4 * i for i in range(8)] + [LAND + 4 * i for i in range(8)], O_Y, QOP)
stamp(10)
g("s_barrier")
g("s_cmp_ge_u32 %s, 112" % S_DR)
g("s_cbranch_scc1 L_nodw2")
dw_loads(ACC)
g("s_branch L_gudone")
g.label("L_nodw2")
g("s_cmp_lg_u32 %s, 0" % S_IT)
g("s_cbranch_scc1 L_gudone")
qproj_loads(ACC)
stream_piece(SRD_K, V_KOFF, 0, 0)
g("s_branch L_gudone")
g.label("L_e2a")
g("s_and_b32 %s, %s, 7" % (S_T0, S_HR))
g("s_lshl_b32 %s, %s, 6" % (S_T0, S_T0))
x_addrs(T[3], T[4], 3, S_T0)
h_base()
g("v_lshlrev_b32 %s, 2, %s" % (v(PKS), V_LANE))
g("v_add_u32 %s, %s, %s" % (v(PKS), S_T2, v(PKS)))
g("s_cmp_ge_u32 s2, 224")
g("s_barrier")
stamp(10)
g("s_cbranch_scc1 L_gudone")
x_reads(XS, XB, T[3], T[4], 3)
layernorm(XS, XB, PK, T[0], T[1], T[2], ACC)
dots(Z, mg, [v(PK + k) for k in range(4)], 4)
rs_swap(32, [(Z + e, Z + 4 + e) for e in range(4)])
rs_swap(16, [(Z + e, Z + 2 + e) for e in range(2)])
dpp("add_f32", v(Z), v(Z), v(Z), "row_ror:8", bank=0x3)
dpp("add_f32", v(Z), v(Z + 1), v(Z + 1), "row_ror:8", bank=0xc)
for e in range(1, 4):
    g("v_mov_b32_dpp %s, %s quad_perm:[%d,%d,%d,%d] row_mask:0xf bank_mask:0xf" % (v(Z + e), v(Z), e, e, e, e))
exec_rep(0x11111111)
g("buffer_store_dwordx4 %s, %s, %s, %s offen sc1" % (vr(Z, 4), v(PKS), SRD_WS, S_WSOFF))
exec_all()
md = pair_rows(DW, 4, dst=DWP)
g.label("L_gudone")

stamp(11)
g("s_cmp_ge_u32 %s, 112" % S_DR)
g("s_cbranch_scc1 L_noe3")
g("s_lshr_b32 %s, %s, 4" % (S_T0, S_DR))
g("s_lshl_b32 %s, %s, 14" % (S_T0, S_T0))
g("s_lshl_b32 %s, %s, 12" % (S_T1, S_WAVE))
g("s_add_u32 %s, %s, %s" % (S_T0, S_T0, S_T1))
g("s_add_u32 %s, %s, 0x%x" % (S_T0, S_T0, O_H))
g("v_lshrrev_b32 %s, 4, %s" % (T[0], V_LANE))
g("v_lshlrev_b32 %s, 9, %s" % (T[0], T[0]))
g("v_and_b32 %s, 15, %s" % (T[1], V_LANE))
g("v_lshlrev_b32 %s, 4, %s" % (T[1], T[1]))
g("v_add3_u32 %s, %s, %s, %s" % (T[0], T[0], T[1], S_T0))
SH = ACC + 16
AD = ACC + 24
A_DW, A_DR, A_DS = v(QOP), v(QOP + 1), v(QOP + 2)


def e3_first():
    for k, off in enumerate((0, 256, 2048, 2304)):
        g("buffer_load_dwordx4 %s, %s, %s, %s offen offset:%d sc1" % (vr(D + 4 * k, 4), T[0], SRD_WS, S_WSOFF, off))


def e3_shadow():
    g("s_lshl_b32 %s, %s, 7" % (S_T0, S_WAVE))
    g("v_lshlrev_b32 %s, 1, %s" % (A_DW, V_LANE))
    g("v_add_u32 %s, %s, %s" % (A_DW, S_T0, A_DW))
    g("v_lshlrev_b32 %s, 4, %s" % (A_DR, V_LANE))
    g("s_lshl_b32 %s, %s, 7" % (S_T0, S_DR))
    g("s_add_u32 %s, %s, 0x%x" % (S_T0, S_T0, O_DN))
    g("v_add_u32 %s, %s, %s" % (A_DS, S_T0, A_DR))
    g("s_cmp_lt_u32 %s, 2" % S_WAVE)
    g("s_cbranch_scc1 L_nodp")
    g("s_waitcnt vmcnt(4)")
    pair_rows(ACC, 4, dst=DWP)
    g.label("L_nodp")


def e3_compute(retry):
    for e in range(0, 8, 2):
        pk_add(SH + e, D + e, D + 8 + e)
    rs_swap(32, [(SH, SH + 2), (SH + 1, SH + 3), (SH + 4, SH + 6), (SH + 5, SH + 7)])
    rs_swap(16, [(SH, SH + 1), (SH + 4, SH + 5)])
    if retry:
        g("v_cmp_u_f32 vcc, %s, %s" % (v(SH), v(SH + 4)))
    g("v_cvt_pk_bf16_f32 %s, %s, %s" % (T[1], v(SH), v(SH + 4)))
    if retry:
        g("s_cbranch_vccnz %s" % retry)


def e3_reissue():
    umax(T[1], [v(D + i) for i in range(16)])
    g("v_cmp_eq_u32 %s, -1, %s" % (P_A, T[1]))
    g("s_mov_b64 exec, %s" % P_A)
    e3_first()
    exec_all()


spec_poll(e3_first, e3_shadow, e3_compute, e3_reissue, cnt="s72")
stamp(12)
unpack(T[2], T[3], T[1])
g("v_max_f32 %s, 0, %s" % (T[2], T[2]))
g("v_mul_f32 %s, %s, %s" % (T[2], T[2], T[3]))
g("v_mul_f32 %s, %s, %s" % (T[3], T[2], "1.0"))
g("v_permlane16_swap_b32 %s, %s" % (T[2], T[3]))
g("v_cvt_pk_bf16_f32 %s, %s, %s" % (T[2], T[2], T[3]))
g("v_mov_b32 %s, %s" % (T[3], T[2]))
g("v_permlane32_swap_b32 %s, %s" % (T[2], T[3]))
dots(AD, md, [T[2], T[3]], 2)
row_reduce(AD)
exec_rep(0x11111111)
g("ds_write_b64 %s, %s offset:%d" % (A_DW, vr(AD, 2), EX_DN))
exec_all()
g("s_waitcnt lgkmcnt(0)")
g("s_barrier")
hand_out(EX_DN, A_DR, A_DS, D)
g("s_cmp_lg_u32 %s, 0" % S_IT)
g("s_cbranch_scc1 L_final")
g("s_cmp_lt_u32 %s, 2" % S_WAVE)
g("s_cbranch_scc1 L_noqp")
qproj_loads(ACC)
g.label("L_noqp")
stream_piece(SRD_K, V_KOFF, 0, 0)
g.label("L_noe3")
stamp(13)
g("s_cmp_lg_u32 %s, 0" % S_IT)
g("s_cbranch_scc1 L_final")

g("s_cmp_lt_u32 %s, 2" % S_WAVE)
g("s_cbranch_scc1 L_e4a")
A_XA, A_XR, A_QS = v(D + 12), v(D + 13), v(D + 14)
XS4, XB4 = Z, PK
mq2 = pair_map(ACC, 8, spare=V_SP)


def e4_shadow():
    g("s_and_b32 %s, %s, 3" % (S_T0, S_WR))
    g("s_lshl_b32 %s, %s, 7" % (S_T0, S_T0))
    x_addrs(A_XA, A_XR, 2, S_T0)
    q_store_addr(A_QS, T[2])
    g("s_waitcnt vmcnt(7)")
    pair_rows(ACC, 8, spare=V_SP)


residual_update4([Z + 4 * i for i in range(7)], O_DN, QOP, shadow=e4_shadow)
stamp(14)
g("s_barrier")
x_reads(XS4, XB4, A_XA, A_XR, 2)
layernorm(XS4, XB4, D, T[0], T[1], T[2], D + 4)
dots(Z, mq2, [v(D + k) for k in range(4)], 4)
reduce_q(Z)
q_store(Z, A_QS, S_WSNEXT)
g("s_branch L_noq2")
g.label("L_e4a")
g("s_cmp_lt_u32 %s, 112" % S_DR)
g("s_cbranch_scc1 L_k0done")
stream_piece(SRD_K, V_KOFF, 0, 0)
g.label("L_k0done")
g("s_barrier")
stamp(14)
stream_piece(SRD_K, V_KOFF, 1, 1)
g.label("L_noq2")
stamp(15)
g("s_lshr_b32 %s, %s, 5" % (S_T0, S_BLK))
g("s_lshl_b32 %s, %s, 13" % (S_T0, S_T0))
g("s_lshl_b32 %s, %s, 11" % (S_T1, S_WAVE))
g("s_add_u32 %s, %s, %s" % (S_T0, S_T0, S_T1))
g("s_add_u32 %s, %s, 0x%x" % (S_T0, S_T0, O_Q))
g("v_lshlrev_b32 %s, 4, %s" % (T[0], V_LANE))
g("v_add_u32 %s, %s, %s" % (T[0], S_T0, T[0]))
lp, lc, done = newlabel("poll"), newlabel("pchk"), newlabel("pdone")


def e5_issue():
    for k in range(2):
        g("buffer_load_dwordx4 %s, %s, %s, %s offen offset:%d sc1" % (vr(Z + 4 * k, 4), T[0], SRD_WS, S_WSNEXT, 1024 * k))


e5_issue()
g("v_bfe_u32 %s, %s, 1, 2" % (T[2], V_LANE))
g("v_lshlrev_b32 %s, 2, %s" % (T[2], T[2]))
g("v_lshrrev_b32 %s, 5, %s" % (T[3], V_LANE))
g("v_lshl_add_u32 %s, %s, 7, %s" % (T[2], T[3], T[2]))
g("v_bfe_u32 %s, %s, 4, 1" % (T[3], V_LANE))
g("v_lshl_add_u32 %s, %s, 4, %s" % (T[2], T[3], T[2]))
g("v_bfe_u32 %s, %s, 3, 1" % (T[3], V_LANE))
g("v_lshl_add_u32 %s, %s, 6, %s" % (T[2], T[3], T[2]))
g("v_and_b32 %s, 1, %s" % (T[3], V_LANE))
g("v_lshl_add_u32 %s, %s, 5, %s" % (T[2], T[3], T[2]))
g("s_lshl_b32 %s, %s, 8" % (S_T0, S_WAVE))
g("v_add_u32 %s, %s, %s" % (T[2], S_T0, T[2]))
g("v_and_b32 %s, 3, %s" % (T[3], V_LANE))
g("v_lshlrev_b32 %s, 8, %s" % (T[3], T[3]))
g("v_and_b32 %s, 0x3c, %s" % (T[4], V_LANE))
g("v_lshl_add_u32 %s, %s, 2, %s" % (T[3], T[4], T[3]))
g("s_branch %s" % lc)
g.label(lp)
e5_issue()
g.label(lc)
g("s_waitcnt vmcnt(0)")
rs_swap(32, [(Z + e, Z + 4 + e) for e in range(4)])
rs_swap(16, [(Z + e, Z + 2 + e) for e in range(2)])
g("v_cmp_u_f32 vcc, %s, %s" % (v(Z), v(Z + 1)))
g("v_cvt_pk_bf16_f32 %s, %s, %s" % (T[1], v(Z), v(Z + 1)))
g("s_cbranch_vccz %s" % done)
timeout_loop(lp)
g.label(done)
g("ds_write_b32 %s, %s offset:%d" % (T[2], T[1], EX_Q))
g("s_waitcnt lgkmcnt(0)")
g("s_barrier")
g("ds_read_b128 %s, %s offset:%d" % (vr(QOP, 4), T[3], EX_Q))
g("s_waitcnt lgkmcnt(0)")
stamp(16)
stamp_shift()
g("s_mov_b32 %s, 1" % S_IT)
g("s_mov_b32 %s, 0x%x" % (S_WSOFF, ITS))
g("s_branch L_main")

g.label("L_final")
stamp(13)
stamp_dump()
g("s_cmp_lg_u32 s2, 0")
g("s_cbranch_scc1 L_exit")
g("s_cmp_lt_u32 %s, 2" % S_WAVE)
g("s_cbranch_scc1 L_exit")
residual_update4([Z + 4 * i for i in range(7)], O_DN, QOP, tail="out")
g.label("L_exit")
g("s_endpgm")
for f in slow_paths:
    f()

body = g.finalize(smart=True)

ref = open("interleave_layers__gqa_block_cached__glu_gated_reglu__decode.s.ref").read()
head = []
for l in ref.splitlines():
    if l.startswith("; @launch"):
        head.append("; @launch grid=(256,1,1) block=(256,1,1) lds=%d" % LDS_BYTES)
        break
    head.append(l)
out = "\n".join(head) + """
.amdgcn_target "amdgcn-amd-amdhsa--gfx950"
.text
.globl %s
.p2align 8
.type %s,@function
%s:
""" % (NAME, NAME, NAME) + body + """
.section .rodata,"a"
.p2align 6
.amdhsa_kernel %s
  .amdhsa_next_free_vgpr 512
  .amdhsa_next_free_sgpr 102
  .amdhsa_accum_offset 256
  .amdhsa_group_segment_fixed_size 0
  .amdhsa_kernarg_size 96
  .amdhsa_user_sgpr_count 2
  .amdhsa_user_sgpr_kernarg_segment_ptr 1
  .amdhsa_system_sgpr_workgroup_id_x 1
  .amdhsa_float_denorm_mode_32 3
.end_amdhsa_kernel
""" % NAME
path = sys.argv[1] if len(sys.argv) > 1 else "out3.s"
open(path, "w").write(out)
print("wrote", path, len(out.splitlines()), "lines")
```
